```python
import torch

def _softmax(x, axis=-1):
    return torch.softmax(x, dim=axis)
def _gelu(x):
    return torch.nn.functional.gelu(x, approximate="tanh")
def _silu(x):
    return torch.nn.functional.silu(x)
def _sigmoid(x):
    return torch.sigmoid(x)
def _layernorm(x, axis=-1, eps=1e-5):
    m = x.mean(dim=axis, keepdim=True)
    v = x.var(dim=axis, keepdim=True, unbiased=False)
    return (x - m) / torch.sqrt(v + eps)
def _scatter_add(tgt, idx, src, axis=0):
    return tgt.clone().index_add_(axis, idx, src)
def _segment_sum(src, seg, n):
    out = torch.zeros((n,) + src.shape[1:], dtype=src.dtype)
    return out.index_add_(0, seg, src)
def _pad(x, pw):
    flat = tuple(v for pair in reversed(pw) for v in pair)
    return torch.nn.functional.pad(x, flat)

kernel_name = 'standalone__weight_only_int_quip__prompt'

def setup_inputs():

    _w = (lambda a: (lambda t: t.to(torch.bfloat16) if t.is_floating_point() else t)(torch.as_tensor(a)))
    B, S, D, F = 1, 2048, 1024, 3584
    G = 32 if 32 > 0 else D
    D = (D // G) * G
    ng = D // G
    bits = 8 if 8 > 0 else 4
    qmax = 1 << bits
    qw = torch.randint(0, qmax, (D, F)).to(torch.int32)
    U, _ = (lambda *_a, **_k: torch.linalg.qr(*[torch.as_tensor(_x).float() for _x in _a], **_k))((lambda *s: torch.randn(*s, dtype=torch.bfloat16) * 0.05)(D, D))
    V, _ = (lambda *_a, **_k: torch.linalg.qr(*[torch.as_tensor(_x).float() for _x in _a], **_k))((lambda *s: torch.randn(*s, dtype=torch.bfloat16) * 0.05)(F, F))
    return {
        "x": _w((lambda *s: torch.randn(*s, dtype=torch.bfloat16) * 0.05)(B, S, D)),
        "qw": _w(qw),
        "scales": _w(torch.abs((lambda *s: torch.randn(*s, dtype=torch.bfloat16) * 0.05)(ng, F)) * 0.02 + 0.005),
        "zeros": _w(torch.full((ng, F), qmax / 2.0, dtype=float)),
        "U": _w(U.to(float)),
        "V": _w(V.to(float)),
    }

def reference(x, qw, scales, zeros, U, V):
    B, S, D = x.shape
    ng, F = scales.shape
    G = D // ng
    s = (lambda x, n, axis: torch.repeat_interleave(x, n, dim=axis))(scales, G, axis=0)
    z = (lambda x, n, axis: torch.repeat_interleave(x, n, dim=axis))(zeros, G, axis=0)
    wq = ((lambda x, dt: x.to(dt))(qw, x.dtype) - z) * s
    xr = torch.einsum("bsd,de->bse", x, U)
    h  = torch.einsum("bse,ef->bsf", xr, wq)
    y  = torch.einsum("bsf,fg->bsg", h, V)
    return y
```

```python
import sys

WS_WQ = 0
WS_WV = 8 << 20
WS_XR = 16 << 20
WS_STAMP = 0xff00000

class A:
    def __init__(s): s.L = []
    def e(s, t):
        for ln in t.split("\n"): s.L.append(ln)
    def text(s): return "\n".join(s.L) + "\n"

def srd(a, d, lo, hi, nbytes):
    a.e(f"s_mov_b32 s{d}, s{lo}\ns_mov_b32 s{d+1}, s{hi}\ns_mov_b32 s{d+2}, {nbytes}\ns_mov_b32 s{d+3}, 0x20000")

def srd_off(a, d, lo, hi, off, nbytes):
    a.e(f"s_add_u32 s{d}, s{lo}, {off}\ns_addc_u32 s{d+1}, s{hi}, 0\ns_mov_b32 s{d+2}, {nbytes}\ns_mov_b32 s{d+3}, 0x20000")

def descriptor(a, name, vgpr, sgpr=96):
    a.e(f""".amdhsa_kernel {name}
  .amdhsa_next_free_vgpr {vgpr}
  .amdhsa_next_free_sgpr {sgpr}
  .amdhsa_accum_offset {(vgpr+3)//4*4}
  .amdhsa_group_segment_fixed_size 0
  .amdhsa_kernarg_size 72
  .amdhsa_user_sgpr_count 2
  .amdhsa_user_sgpr_kernarg_segment_ptr 1
  .amdhsa_system_sgpr_workgroup_id_x 1
  .amdhsa_float_denorm_mode_32 3
.end_amdhsa_kernel""")

class Op:
    def __init__(s, kind, nblk, stepbytes, pitch=0):
        s.kind = kind
        s.nblk = nblk
        s.stepbytes = stepbytes
        s.pitch = pitch
        s.stage = nblk * 2048
        s.npieces = nblk * 2
        s.R = nblk * 32

def gemm_body(a, nm, P, Q, S, nsteps, lead, epilogue, cfg):
    e = a.e
    ops = [P, Q]
    base = [0, P.stage * S]
    total_lds = (P.stage + Q.stage) * S
    npw = [P.npieces // 4, Q.npieces // 4]
    assert P.npieces % 4 == 0 and Q.npieces % 4 == 0
    nld = npw[0] + npw[1]
    first_slot = (S - (nsteps % S)) % S
    e(f"s_cmp_ge_u32 s16, 4\ns_cbranch_scc1 {nm}_prod")
    nPw, nQw = P.nblk // 2, Q.nblk // 2
    ACC = 0
    nacc = nPw * nQw * 4
    FR = nacc
    setsz = (nPw + nQw) * 4
    AD = FR + 2 * setsz
    def acc(p, q): return ACC + (p * nQw + q) * 4
    def frag(st, o, b): return FR + st * setsz + (b if o == 0 else nPw + b) * 4
    e("s_lshr_b32 s17, s16, 1\ns_and_b32 s18, s16, 1")
    naddr = 0
    for o, op in enumerate(ops):
        nwin = (op.stage * S + 65535) // 65536
        naddr += nwin * ((nPw, nQw)[o] if op.kind == 'tr' else 1)
    vt = AD + naddr
    e(f"v_and_b32 v{vt}, 63, v0")
    addr = {}
    nxt = AD
    for o, op in enumerate(ops):
        nw = (nPw, nQw)[o]
        sw = (17, 18)[o]
        region = op.stage * S
        nwin = (region + 65535) // 65536
        if op.kind == 'tr':
            e(f"v_lshrrev_b32 v{vt+1}, 4, v{vt}")
            e(f"v_bfe_u32 v{vt+2}, v{vt}, 2, 2")
            e(f"v_and_b32 v{vt+3}, 3, v{vt}")
            e(f"v_lshl_add_u32 v{vt+4}, v{vt+1}, 3, v{vt+2}")
            e(f"v_mul_u32_u24 v{vt+4}, {op.R}, v{vt+4}")
            e(f"v_and_b32 v{vt+5}, 1, v{vt+1}")
            e(f"v_lshl_add_u32 v{vt+5}, v{vt+5}, 2, v{vt+2}")
            e(f"v_lshlrev_b32 v{vt+5}, 1, v{vt+5}")
            e(f"v_lshlrev_b32 v{vt+3}, 3, v{vt+3}")
            e(f"v_add_u32 v{vt+4}, v{vt+4}, v{vt+3}")
            e(f"s_mul_i32 s19, s{sw}, {2*nw}")
            for b in range(nw):
                e(f"s_add_u32 s23, s19, {2*b}")
                e(f"v_xor_b32 v{vt+6}, s23, v{vt+5}")
                e(f"v_lshl_add_u32 v{vt+6}, v{vt+6}, 4, v{vt+4}")
                for w in range(nwin):
                    e(f"v_add_u32 v{nxt}, {base[o] + w*65536}, v{vt+6}")
                    addr[(o, b, w)] = nxt; nxt += 1
        else:
            e(f"s_mul_i32 s19, s{sw}, {nw*2048}")
            e(f"v_lshl_add_u32 v{vt+6}, v{vt}, 4, s19")
            for w in range(nwin):
                e(f"v_add_u32 v{nxt}, {base[o] + w*65536}, v{vt+6}")
                addr[(o, None, w)] = nxt; nxt += 1
    assert nxt <= vt
    for i in range(nacc): e(f"v_mov_b32 v{ACC+i}, 0")
    def reads(slot, kb, st):
        out = []
        lst = [[], []]
        for o, op in enumerate(ops):
            nw = (nPw, nQw)[o]
            for b in range(nw):
                f = frag(st, o, b)
                if op.kind == 'tr':
                    for t in range(2):
                        off = slot * op.stage + (kb * 32 + t * 4) * op.R
                        w, off = off // 65536, off % 65536
                        lst[o].append(f"ds_read_b64_tr_b16 v[{f+2*t}:{f+2*t+1}], v{addr[(o,b,w)]} offset:{off}")
                else:
                    off = slot * op.stage + b * 2048 + kb * 1024
                    w, off = off // 65536, off % 65536
                    lst[o].append(f"ds_read_b128 v[{f}:{f+3}], v{addr[(o,None,w)]} offset:{off}")
        while lst[0] or lst[1]:
            for o in (1, 0):
                k = 2 if ops[o].kind == 'tr' else 1
                for _ in range(k):
                    if lst[o]: out.append(lst[o].pop(0))
        return out
    def mfmas(st):
        out = []
        for p in range(nPw):
            qs = range(nQw) if p % 2 == 0 else range(nQw - 1, -1, -1)
            for q in qs:
                c = acc(p, q)
                out.append(f"v_mfma_f32_16x16x32_bf16 v[{c}:{c+3}], v[{frag(st,0,p)}:{frag(st,0,p)+3}], v[{frag(st,1,q)}:{frag(st,1,q)+3}], v[{c}:{c+3}]")
        return out
    def interleave(rd, mf, per):
        rd = list(rd)
        for m in mf:
            if not cfg.get('nomfma'): e(m)
            for _ in range(per):
                if rd:
                    r = rd.pop(0)
                    if not cfg.get('noread'): e(r)
        for r in rd:
            if not cfg.get('noread'): e(r)
    per = cfg.get('rdper', 2)
    if cfg.get('cprio'): e(f"s_setprio {cfg['cprio']}")
    e("s_barrier")
    for r in reads(first_slot, 0, 0): e(r)
    e(f"s_mov_b32 s19, {(nsteps + first_slot) // S}")
    e("s_waitcnt lgkmcnt(0)")
    if first_slot: e(f"s_branch {nm}_c{first_slot}")
    e(".p2align 6")
    for u in range(S):
        e(f"{nm}_c{u}:")
        interleave(reads(u, 1, 1), mfmas(0), per)
        e("s_waitcnt lgkmcnt(0)")
        e("s_barrier")
        interleave(reads((u + 1) % S, 0, 0), mfmas(1), per)
        if u == S - 1:
            e("s_sub_u32 s19, s19, 1\ns_cmp_lg_u32 s19, 0")
        e("s_waitcnt lgkmcnt(0)")
    e(f"s_cbranch_scc1 {nm}_c0")
    e("s_nop 7\ns_nop 7")
    epilogue(a, acc, nPw, nQw, FR, vt)
    e("s_endpgm")
    cons_vgprs = vt + 8
    e(f"{nm}_prod:")
    if cfg.get('pprio'): e(f"s_setprio {cfg['pprio']}")
    e("s_sub_u32 s17, s16, 4")
    e("v_and_b32 v1, 63, v0")
    voff = [[], []]
    nv = 8
    for o, op in enumerate(ops):
        sb = (20, 21)[o]
        n = npw[o]
        for u in range(n):
            r = nv; nv += 1
            voff[o].append(r)
            if op.kind == 'lin':
                e(f"s_mul_i32 s19, s17, {n*1024}\ns_add_u32 s19, s19, s{sb}\ns_add_u32 s19, s19, {u*1024}")
                e(f"v_lshl_add_u32 v{r}, v1, 4, s19")
            elif op.kind == 'tr':
                cpr = op.R // 16
                rpp = 1024 // op.R
                sh = cpr.bit_length() - 1
                e(f"s_mul_i32 s19, s17, {n*rpp}\ns_add_u32 s19, s19, {u*rpp}")
                e(f"v_lshrrev_b32 v2, {sh}, v1\nv_add_u32 v2, s19, v2")
                e(f"v_and_b32 v3, {cpr-1}, v1")
                e("v_and_b32 v4, 3, v2\nv_bfe_u32 v5, v2, 3, 1\nv_lshl_add_u32 v4, v5, 2, v4\nv_lshlrev_b32 v4, 1, v4")
                e("v_xor_b32 v3, v3, v4")
                e(f"v_mul_u32_u24 v2, {op.pitch}, v2")
                e(f"v_lshl_add_u32 v2, v3, 4, v2\nv_add_u32 v{r}, s{sb}, v2")
            else:
                e(f"s_mul_i32 s19, s17, {n//2*16}\ns_add_u32 s19, s19, {(u>>1)*16}")
                e(f"v_and_b32 v2, 15, v1\nv_add_u32 v2, s19, v2\nv_mul_u32_u24 v2, {op.pitch}, v2")
                e(f"v_lshrrev_b32 v3, 4, v1\nv_lshl_add_u32 v2, v3, 4, v2")
                e(f"v_add_u32 v2, {(u&1)*64}, v2\nv_add_u32 v{r}, s{sb}, v2")
    e(f"s_mul_i32 s32, s17, {npw[0]*1024}")
    e(f"s_mul_i32 s33, s17, {npw[1]*1024}\ns_add_u32 s33, s33, {base[1]}")
    e("s_mov_b32 s34, 0")
    e(f"s_mov_b32 s35, {first_slot}")
    def issue():
        e("s_and_b32 s36, s34, 3\ns_cmp_eq_u32 s36, s22")
        e(f"s_cselect_b32 s36, {lead}, 0\ns_add_u32 s36, s36, s34")
        e(f"s_sub_u32 s37, s36, {nsteps}\ns_cmp_ge_u32 s36, {nsteps}\ns_cselect_b32 s36, s37, s36")
        e(f"s_mul_i32 s38, s36, {P.stepbytes}\ns_mul_i32 s39, s36, {Q.stepbytes}")
        e(f"s_mul_i32 s40, s35, {P.stage}\ns_add_u32 s40, s40, s32")
        e(f"s_mul_i32 s41, s35, {Q.stage}\ns_add_u32 s41, s41, s33")
        seq = []
        for u in range(max(npw)):
            for o in (0, 1):
                if u < npw[o]: seq.append((o, u))
        if cfg.get('seqorder') == 'pq': seq = sorted(seq)
        for (o, u) in seq:
            e(f"s_add_u32 m0, s{40+o}, {u*1024}")
            e("s_nop 0")
            if not cfg.get('noload'):
                e(f"buffer_load_dwordx4 v{voff[o][u]}, s[{4+4*o}:{7+4*o}], s{38+o} offen lds")
        e("s_add_u32 s34, s34, 1")
        e(f"s_add_u32 s35, s35, 1\ns_cmp_eq_u32 s35, {S}\ns_cselect_b32 s35, 0, s35")
    e(f"{nm}_p0:")
    issue()
    e(f"s_cmp_lt_u32 s34, {S-1}\ns_cbranch_scc1 {nm}_p0")
    e(f"s_waitcnt vmcnt({nld*(S-2)})\ns_barrier")
    e(f"{nm}_p1:")
    issue()
    e(f"s_waitcnt vmcnt({nld*(S-2)})\ns_barrier")
    e(f"s_cmp_lt_u32 s34, {nsteps}\ns_cbranch_scc1 {nm}_p1")
    for i in range(S - 1):
        rem = max(S - 3 - i, 0)
        e(f"s_waitcnt vmcnt({nld*rem})\ns_barrier")
    e("s_endpgm")
    return total_lds, max(cons_vgprs, nv)

def pack4(a, dst, c0, c1):
    a.e(f"v_cvt_pk_bf16_f32 v{dst}, v{c0}, v{c0+1}\nv_cvt_pk_bf16_f32 v{dst+1}, v{c0+2}, v{c0+3}")
    a.e(f"v_cvt_pk_bf16_f32 v{dst+2}, v{c1}, v{c1+1}\nv_cvt_pk_bf16_f32 v{dst+3}, v{c1+2}, v{c1+3}")

def stamp_begin(a, cfg):
    if cfg.get('stamp'): a.e("s_memrealtime s[80:81]\ns_memtime s[82:83]")
def stamp_end(a, cfg, kidx, vt):
    if not cfg.get('stamp'): return
    e = a.e
    e("s_waitcnt vmcnt(0)")
    e("s_memrealtime s[84:85]\ns_memtime s[86:87]\ns_load_dwordx2 s[88:89], s[0:1], 64\ns_waitcnt lgkmcnt(0)")
    e(f"s_mov_b32 s90, 0x10000000\ns_mov_b32 s91, 0x20000")
    e(f"v_mov_b32 v{vt}, s80\nv_mov_b32 v{vt+1}, s82\nv_mov_b32 v{vt+2}, s84\nv_mov_b32 v{vt+3}, s86")
    e(f"s_lshl_b32 s84, s2, 4\ns_add_u32 s84, s84, {WS_STAMP + kidx*65536}")
    e(f"v_mov_b32 v{vt+4}, 0")
    e(f"s_cmp_lg_u32 s16, 0\ns_cbranch_scc1 Lst{kidx}_{len(a.L)}")
    lbl = f"Lst{kidx}_{len(a.L)-2}"
    e("s_mov_b64 exec, 1")
    e(f"buffer_store_dwordx4 v[{vt}:{vt+3}], v{vt+4}, s[88:91], s84 offen")
    e(f"{lbl}:")

def build(cfg):
    a = A(); e = a.e
    body = A()
    b = body.e
    b(".text\n.globl deq_kernel\n.p2align 8\n.type deq_kernel,@function\ndeq_kernel:")
    b("s_cmp_ge_u32 s2, 896\ns_cbranch_scc1 deq_end")
    stamp_begin(body, cfg)
    b("s_load_dwordx2 s[24:25], s[0:1], 8\ns_load_dwordx4 s[28:31], s[0:1], 16\ns_load_dwordx2 s[26:27], s[0:1], 64")
    b("v_lshrrev_b32 v1, 6, v0\nv_and_b32 v2, 63, v0\nv_readfirstlane_b32 s16, v1")
    b("s_lshl_b32 s17, s2, 2\ns_add_u32 s17, s17, s16")
    b(f"s_mul_hi_u32 s18, s17, {(1<<32)//112+1}\ns_mul_i32 s19, s18, 112\ns_sub_u32 s19, s17, s19")
    b("v_and_b32 v3, 15, v2\nv_lshrrev_b32 v4, 4, v2")
    b("v_mul_u32_u24 v5, 14336, v3\nv_lshl_add_u32 v5, v4, 5, v5")
    b(f"s_mul_i32 s20, s18, {32*14336}\ns_lshl_b32 s21, s19, 7\ns_add_u32 s20, s20, s21")
    b(f"s_add_u32 s21, s20, {16*14336}")
    b("v_lshlrev_b32 v6, 4, v4")
    b("s_mul_i32 s22, s18, 7168\ns_lshl_b32 s23, s19, 6\ns_add_u32 s22, s22, s23")
    b("s_waitcnt lgkmcnt(0)")
    srd(body, 4, 24, 25, 1024*3584*4)
    srd(body, 8, 28, 29, 32*3584*2)
    srd(body, 12, 30, 31, 32*3584*2)
    srd_off(body, 32, 26, 27, WS_WQ, 1024*3584*2)
    b("buffer_load_dwordx4 v[8:11], v5, s[4:7], s20 offen")
    b("buffer_load_dwordx4 v[12:15], v5, s[4:7], s20 offen offset:16")
    b("buffer_load_dwordx4 v[16:19], v5, s[4:7], s21 offen")
    b("buffer_load_dwordx4 v[20:23], v5, s[4:7], s21 offen offset:16")
    b("buffer_load_dwordx4 v[24:27], v6, s[8:11], s22 offen")
    b("buffer_load_dwordx4 v[28:31], v6, s[12:15], s22 offen")
    b("s_lshr_b32 s36, s18, 2\ns_mul_i32 s36, s36, 56\ns_lshr_b32 s37, s19, 1\ns_add_u32 s36, s36, s37\ns_lshl_b32 s36, s36, 14")
    b("s_and_b32 s37, s18, 3\ns_lshl_b32 s37, s37, 12\ns_add_u32 s36, s36, s37\ns_and_b32 s37, s19, 1\ns_lshl_b32 s37, s37, 10\ns_add_u32 s36, s36, s37")
    b("v_lshlrev_b32 v7, 4, v2")
    b("s_waitcnt vmcnt(0)")
    for j in range(4):
        b(f"v_lshlrev_b32 v{32+2*j}, 16, v{24+j}\nv_and_b32 v{33+2*j}, 0xffff0000, v{24+j}")
        b(f"v_lshlrev_b32 v{40+2*j}, 16, v{28+j}\nv_and_b32 v{41+2*j}, 0xffff0000, v{28+j}")
    for h in range(2):
        q = 8 + 8*h
        for j in range(8): b(f"v_cvt_f32_i32 v{q+j}, v{q+j}")
        for j in range(4):
            b(f"v_cvt_pk_bf16_f32 v48, v{q+2*j}, v{q+2*j+1}")
            b(f"v_lshlrev_b32 v{q+2*j}, 16, v48\nv_and_b32 v{q+2*j+1}, 0xffff0000, v48")
            b(f"v_sub_f32 v{q+2*j}, v{q+2*j}, v{40+2*j}\nv_sub_f32 v{q+2*j+1}, v{q+2*j+1}, v{41+2*j}")
            b(f"v_cvt_pk_bf16_f32 v48, v{q+2*j}, v{q+2*j+1}")
            b(f"v_lshlrev_b32 v{q+2*j}, 16, v48\nv_and_b32 v{q+2*j+1}, 0xffff0000, v48")
            b(f"v_mul_f32 v{q+2*j}, v{q+2*j}, v{32+2*j}\nv_mul_f32 v{q+2*j+1}, v{q+2*j+1}, v{33+2*j}")
            b(f"v_cvt_pk_bf16_f32 v{52+4*h+j}, v{q+2*j}, v{q+2*j+1}")
        b(f"buffer_store_dwordx4 v[{52+4*h}:{55+4*h}], v7, s[32:35], s36 offen offset:{2048*h}")
    stamp_end(body, cfg, 0, 0)
    b("deq_end:\ns_endpgm")
    b(".globl g1_kernel\n.p2align 8\n.type g1_kernel,@function\ng1_kernel:")
    b("s_cmp_ge_u32 s2, 288\ns_cbranch_scc1 g1_end")
    stamp_begin(body, cfg)
    b("s_load_dwordx2 s[24:25], s[0:1], 0\ns_load_dwordx4 s[28:31], s[0:1], 32\ns_load_dwordx2 s[26:27], s[0:1], 64")
    b("v_lshrrev_b32 v1, 6, v0\ns_and_b32 s42, s2, 7\nv_readfirstlane_b32 s16, v1\ns_lshr_b32 s43, s2, 3")
    b("s_waitcnt lgkmcnt(0)")
    b("s_cmp_lt_u32 s2, 32\ns_cbranch_scc1 g1_xr\ns_cmp_ge_u32 s2, 256\ns_cbranch_scc1 g1_xr")
    srd_off(body, 4, 26, 27, WS_WQ, 1024*3584*2)
    srd(body, 8, 30, 31, 3584*3584*2)
    srd_off(body, 12, 26, 27, WS_WV, 1024*3584*2)
    b("s_sub_u32 s43, s43, 4")
    b("s_and_b32 s44, s43, 3\ns_lshr_b32 s45, s43, 2")
    b("s_add_u32 s22, s44, s45\ns_and_b32 s22, s22, 3")
    b("s_and_b32 s46, s42, 1\ns_lshl_b32 s46, s46, 2\ns_add_u32 s44, s44, s46")
    b("s_lshr_b32 s46, s42, 1\ns_mul_i32 s46, s46, 7\ns_add_u32 s45, s45, s46")
    b(f"s_mul_i32 s20, s44, {56*16384}\ns_lshl_b32 s21, s45, 8")
    def epi1(a, acc, nPw, nQw, FR, vt):
        e = a.e
        e(f"v_bfe_u32 v{vt+1}, v{vt}, 2, 1\nv_lshlrev_b32 v{vt+1}, 11, v{vt+1}")
        e(f"v_lshrrev_b32 v{vt+2}, 4, v{vt}\nv_lshl_add_u32 v{vt+1}, v{vt+2}, 8, v{vt+1}")
        e(f"v_bfe_u32 v{vt+2}, v{vt}, 3, 1\nv_lshl_add_u32 v{vt+1}, v{vt+2}, 6, v{vt+1}")
        e(f"v_and_b32 v{vt+2}, 3, v{vt}\nv_lshl_add_u32 v{vt+1}, v{vt+2}, 4, v{vt+1}")
        e("s_lshl_b32 s47, s44, 1\ns_add_u32 s47, s47, s17")
        for hb in range(2):
            e(f"s_lshl_b32 s48, s45, 2\ns_lshl_b32 s49, s18, 1\ns_add_u32 s48, s48, s49\ns_add_u32 s48, s48, {hb}")
            e(f"s_mul_hi_u32 s49, s48, {(1<<32)//7+1}\ns_mul_i32 s50, s49, 7\ns_sub_u32 s50, s48, s50")
            e(f"s_lshl_b32 s49, s49, 4\ns_add_u32 s49, s49, s47\ns_mul_i32 s49, s49, 28672\ns_lshl_b32 s50, s50, 12\ns_add_u32 s{52+hb}, s49, s50")
        k = 0
        for bq in range(nQw):
            for m in range(nPw // 2):
                d = FR + 4 * (k % 8); k += 1
                pack4(a, d, acc(2*m, bq), acc(2*m+1, bq))
                e(f"buffer_store_dwordx4 v[{d}:{d+3}], v{vt+1}, s[12:15], s{52+(bq>>1)} offen offset:{m*1024+(bq&1)*128}")
        stamp_end(a, cfg, 1, 0)
    lds1, vg1 = gemm_body(body, "p1", Op('lin', 8, 16384), Op('tr', 8, 64*7168, 7168), cfg.get('S1', 4), 56, cfg.get('lead1', 4), epi1, cfg)
    b("g1_xr:")
    srd(body, 4, 28, 29, 1024*1024*2)
    srd(body, 8, 24, 25, 2048*1024*2)
    srd_off(body, 12, 26, 27, WS_XR, 2048*1024*2)
    b("s_and_b32 s44, s43, 3\ns_lshr_b32 s45, s43, 5\ns_lshl_b32 s46, s42, 1\ns_add_u32 s45, s45, s46")
    b("s_mov_b32 s22, s44")
    b(f"s_lshl_b32 s20, s44, 9\ns_lshl_b32 s21, s45, 18")
    def epix(a, acc, nPw, nQw, FR, vt):
        e = a.e
        e(f"v_lshlrev_b32 v{vt+1}, 4, v{vt}")
        e("s_lshl_b32 s47, s45, 4\ns_lshl_b32 s48, s44, 2\ns_add_u32 s47, s47, s48\ns_lshl_b32 s48, s17, 1\ns_add_u32 s47, s47, s48")
        e("s_lshl_b32 s47, s47, 14\ns_lshl_b32 s48, s18, 13\ns_add_u32 s47, s47, s48")
        k = 0
        for mh in range(2):
            for bq in range(nQw):
                e(f"s_add_u32 s48, s47, {mh*16384 + bq*2048}")
                for kb in range(2):
                    m = mh*2 + kb
                    d = FR + 4 * (k % 8); k += 1
                    pack4(a, d, acc(2*m, bq), acc(2*m+1, bq))
                    e(f"buffer_store_dwordx4 v[{d}:{d+3}], v{vt+1}, s[12:15], s48 offen offset:{kb*1024}")
        stamp_end(a, cfg, 1, 0)
    ldsx, vgx = gemm_body(body, "px", Op('tr', 16, 64*2048, 2048), Op('gather', 8, 128, 2048), 3, 16, cfg.get('leadx', 0), epix, cfg)
    b("g1_end:\ns_endpgm")
    b(".globl g2_kernel\n.p2align 8\n.type g2_kernel,@function\ng2_kernel:")
    b("s_cmp_ge_u32 s2, 256\ns_cbranch_scc1 g2_end")
    stamp_begin(body, cfg)
    b("s_load_dwordx2 s[24:25], s[0:1], 48\ns_load_dwordx2 s[26:27], s[0:1], 64")
    b("v_lshrrev_b32 v1, 6, v0\ns_and_b32 s42, s2, 7\nv_readfirstlane_b32 s16, v1\ns_lshr_b32 s43, s2, 3")
    b("s_waitcnt lgkmcnt(0)")
    srd_off(body, 4, 26, 27, WS_WV, 1024*3584*2)
    srd_off(body, 8, 26, 27, WS_XR, 2048*1024*2)
    srd(body, 12, 24, 25, 2048*3584*2)
    b("s_and_b32 s44, s43, 7\ns_lshr_b32 s45, s43, 3")
    b("s_add_u32 s22, s44, s45\ns_and_b32 s22, s22, 3")
    b("s_and_b32 s46, s42, 1\ns_lshl_b32 s46, s46, 3\ns_add_u32 s44, s44, s46")
    b("s_lshr_b32 s46, s42, 1\ns_lshl_b32 s46, s46, 2\ns_add_u32 s45, s45, s46")
    b(f"s_mul_i32 s20, s45, {16*28672}\ns_lshl_b32 s21, s44, 18")
    def epi2(a, acc, nPw, nQw, FR, vt):
        e = a.e
        e(f"v_and_b32 v{vt+1}, 15, v{vt}\nv_mul_u32_u24 v{vt+1}, 7168, v{vt+1}")
        e(f"v_lshrrev_b32 v{vt+2}, 4, v{vt}\nv_lshl_add_u32 v{vt+1}, v{vt+2}, 4, v{vt+1}")
        e(f"s_lshl_b32 s47, s44, 1\ns_add_u32 s47, s47, s18\ns_mul_i32 s47, s47, {64*7168}\ns_mul_i32 s48, s45, 448\ns_add_u32 s47, s47, s48")
        e(f"s_cmp_eq_u32 s17, 0\ns_cbranch_scc0 g2_epi_h1")
        for h in range(2):
            if h == 1: e("g2_epi_h1:")
            k = 0
            for sb in range(nQw):
                e(f"s_add_u32 s48, s47, {sb*16*7168}")
                for pr in range(3):
                    p0 = 2*pr + h
                    gpair = pr + 4*h
                    d = FR + 4 * (k % 8); k += 1
                    pack4(a, d, acc(p0, sb), acc(p0+1, sb))
                    e(f"buffer_store_dwordx4 v[{d}:{d+3}], v{vt+1}, s[12:15], s48 offen offset:{gpair*64}")
                ps = 6 if h == 0 else 0
                d = FR + 4 * (k % 8); k += 1
                c = acc(ps, sb)
                e(f"v_cvt_pk_bf16_f32 v{d}, v{c}, v{c+1}\nv_cvt_pk_bf16_f32 v{d+1}, v{c+2}, v{c+3}")
                e(f"buffer_store_dwordx2 v[{d}:{d+1}], v{vt+1}, s[12:15], s48 offen offset:{3*64 + h*8}")
            if h == 0:
                stamp_end(a, cfg, 2, 0)
                e("s_endpgm")
    lds2, vg2 = gemm_body(body, "p2", Op('lin', 14, 28672), Op('lin', 8, 16384), 3, 16, cfg.get('lead2', 4), epi2, cfg)
    b("g2_end:\ns_endpgm")
    only = cfg.get('only', (0, 1, 2))
    if 0 in only: e("; @launch kernel=deq_kernel grid=(896,1,1) block=(256,1,1) lds=0")
    if 1 in only: e(f"; @launch kernel=g1_kernel grid=(288,1,1) block=(512,1,1) lds={max(lds1, ldsx)}")
    if 2 in only: e(f"; @launch kernel=g2_kernel grid=(256,1,1) block=(512,1,1) lds={lds2}")
    e('.amdgcn_target "amdgcn-amd-amdhsa--gfx950"')
    a.L += body.L
    e('.section .rodata,"a"\n.p2align 6')
    descriptor(a, "deq_kernel", 64)
    e(".p2align 6")
    descriptor(a, "g1_kernel", max(vg1, vgx))
    e(".p2align 6")
    descriptor(a, "g2_kernel", vg2)
    return a.text()

if __name__ == "__main__":
    out = sys.argv[1] if len(sys.argv) > 1 else "standalone__weight_only_int_quip__prompt.s"
    cfg = {}
    for kv in sys.argv[2:]:
        k, v = kv.split("=")
        cfg[k] = eval(v)
    open(out, "w").write(build(cfg))
```

```python
import sys

WS_WQ = 0
WS_WV = 8 << 20
WS_XR = 16 << 20
WS_STAMP = 0xff00000

class A:
    def __init__(s): s.L = []
    def e(s, t):
        for ln in t.split("\n"): s.L.append(ln)
    def text(s): return "\n".join(s.L) + "\n"

def srd(a, d, lo, hi, nbytes):
    a.e(f"s_mov_b32 s{d}, s{lo}\ns_mov_b32 s{d+1}, s{hi}\ns_mov_b32 s{d+2}, {nbytes}\ns_mov_b32 s{d+3}, 0x20000")

def srd_off(a, d, lo, hi, off, nbytes):
    a.e(f"s_add_u32 s{d}, s{lo}, {off}\ns_addc_u32 s{d+1}, s{hi}, 0\ns_mov_b32 s{d+2}, {nbytes}\ns_mov_b32 s{d+3}, 0x20000")

def descriptor(a, name, vgpr, sgpr=96):
    a.e(f""".amdhsa_kernel {name}
  .amdhsa_next_free_vgpr {vgpr}
  .amdhsa_next_free_sgpr {sgpr}
  .amdhsa_accum_offset {(vgpr+3)//4*4}
  .amdhsa_group_segment_fixed_size 0
  .amdhsa_kernarg_size 72
  .amdhsa_user_sgpr_count 2
  .amdhsa_user_sgpr_kernarg_segment_ptr 1
  .amdhsa_system_sgpr_workgroup_id_x 1
  .amdhsa_float_denorm_mode_32 3
.end_amdhsa_kernel""")

class Op:
    def __init__(s, kind, nblk, stepbytes, pitch=0, lay='kg', kmap='nat'):
        s.lay = lay
        s.kmap = kmap
        s.kind = kind
        s.nblk = nblk
        s.stepbytes = stepbytes
        s.pitch = pitch
        s.stage = nblk * 2048
        s.npieces = nblk * 2
        s.R = nblk * 32

def gemm_body(a, nm, P, Q, S, lag, nsteps, lead, mksrd, epilogue, cfg):
    e = a.e
    ops = [P, Q]
    base = [0, P.stage * S]
    total_lds = (P.stage + Q.stage) * S
    npw = [P.npieces // 4, Q.npieces // 4]
    nld = npw[0] + npw[1]
    D = S - 1 - lag
    first_slot = (S - (nsteps % S)) % S
    e(f"s_cmp_lt_u32 s16, 4\ns_cbranch_scc1 {nm}_cons")
    if cfg.get('pprio'): e(f"s_setprio {cfg['pprio']}")
    e("s_sub_u32 s17, s16, 4")
    e("v_and_b32 v1, 63, v0")
    voff = [[], []]
    nv = 8
    for o, op in enumerate(ops):
        sb = (20, 21)[o]
        n = npw[o]
        if op.kind == 'lin':
            e(f"s_mul_i32 s19, s17, {n*1024}\ns_add_u32 s19, s19, s{sb}")
            e(f"v_lshl_add_u32 v{nv}, v1, 4, s19")
            voff[o].append(nv); nv += 1
            for u in range(1, n):
                e(f"v_add_u32 v{nv}, {u*1024}, v{voff[o][0]}")
                voff[o].append(nv); nv += 1
        elif op.kind == 'tr':
            cpr = op.R // 16; rpp = 1024 // op.R; sh = cpr.bit_length() - 1
            for u in range(n):
                r = nv; nv += 1; voff[o].append(r)
                e(f"s_mul_i32 s19, s17, {n*rpp}\ns_add_u32 s19, s19, {u*rpp}")
                e(f"v_lshrrev_b32 v2, {sh}, v1\nv_add_u32 v2, s19, v2")
                e(f"v_and_b32 v3, {cpr-1}, v1")
                if op.kmap == 'nat':
                    e("v_and_b32 v4, 3, v2\nv_bfe_u32 v5, v2, 3, 1\nv_lshl_add_u32 v4, v5, 2, v4\nv_lshlrev_b32 v4, 1, v4")
                else:
                    e("v_and_b32 v4, 7, v2\nv_lshlrev_b32 v4, 1, v4")
                e("v_xor_b32 v3, v3, v4")
                e(f"v_mul_u32_u24 v2, {op.pitch}, v2")
                e(f"v_lshl_add_u32 v2, v3, 4, v2\nv_add_u32 v{r}, s{sb}, v2")
        else:
            e(f"s_mul_i32 s19, s17, {n//2*16}")
            e(f"v_lshrrev_b32 v2, 2, v1\nv_add_u32 v2, s19, v2\nv_mul_u32_u24 v2, {op.pitch}, v2")
            e(f"v_lshrrev_b32 v3, 4, v1\nv_sub_u32 v3, 0, v3\nv_xor_b32 v3, v3, v1\nv_and_b32 v3, 3, v3")
            e(f"v_lshl_add_u32 v2, v3, 4, v2\nv_add_u32 v2, s{sb}, v2")
            for u in range(n):
                r = nv; nv += 1; voff[o].append(r)
                e(f"v_add_u32 v{r}, {(u>>1)*16*op.pitch + (u&1)*64}, v2")
    sstride = []
    for o, op in enumerate(ops):
        if op.lay == 'perm8':
            e(f"s_lshr_b32 s19, s17, 1\ns_mul_i32 s{32+o}, s19, {op.stage//2*S}\ns_and_b32 s19, s17, 1\ns_mul_i32 s19, s19, {npw[o]*1024}\ns_add_u32 s{32+o}, s{32+o}, s19")
            sstride.append(op.stage // 2)
        else:
            e(f"s_mul_i32 s{32+o}, s17, {npw[o]*1024}")
            sstride.append(op.stage)
        if base[o]: e(f"s_add_u32 s{32+o}, s{32+o}, {base[o]}")
    e("s_mov_b32 s34, 0")
    e(f"s_mov_b32 s35, {first_slot}")
    mksrd(a)
    def issue():
        e("s_and_b32 s36, s34, 3\ns_cmp_eq_u32 s36, s22")
        e(f"s_cselect_b32 s36, {lead}, 0\ns_add_u32 s36, s36, s34\ns_add_u32 s36, s36, s23")
        e(f"s_sub_u32 s37, s36, {nsteps}\ns_cmp_ge_u32 s36, {nsteps}\ns_cselect_b32 s36, s37, s36")
        e(f"s_mul_i32 s38, s36, {P.stepbytes}\ns_mul_i32 s39, s36, {Q.stepbytes}")
        e(f"s_mul_i32 s40, s35, {sstride[0]}\ns_add_u32 s40, s40, s32")
        e(f"s_mul_i32 s41, s35, {sstride[1]}\ns_add_u32 s41, s41, s33")
        seq = []
        if cfg.get('seqorder', 'qp') == 'il':
            for u in range(max(npw)):
                for o in (0, 1):
                    if u < npw[o]: seq.append((o, u))
        else:
            seq = [(1, u) for u in range(npw[1])] + [(0, u) for u in range(npw[0])]
        for (o, u) in seq:
            e(f"s_add_u32 m0, s{40+o}, {u*1024}")
            e("s_nop 0")
            if not cfg.get('noload'):
                e(f"buffer_load_dwordx4 v{voff[o][u]}, s[{4+4*o}:{7+4*o}], s{38+o} offen lds")
        e("s_add_u32 s34, s34, 1")
        e(f"s_add_u32 s35, s35, 1\ns_cmp_eq_u32 s35, {S}\ns_cselect_b32 s35, 0, s35")
    bar = "" if cfg.get('nobar') else "\ns_barrier"
    e(f"{nm}_p1:")
    issue()
    e(f"s_cmp_lt_u32 s34, {D}\ns_cbranch_scc1 {nm}_p1")
    e(f"s_waitcnt vmcnt({nld*(D-1)}){bar}")
    e(f"s_cmp_lt_u32 s34, {nsteps}\ns_cbranch_scc1 {nm}_p1")
    for i in range(D):
        rem = max(D - 2 - i, 0)
        e(f"s_waitcnt vmcnt({nld*rem}){bar}")
    e("s_endpgm")
    e(f"{nm}_cons:")
    nPw, nQw = P.nblk // 2, Q.nblk // 2
    ACC = 0
    nacc = nPw * nQw * 4
    FR = nacc
    setsz = (nPw + nQw) * 4
    AD = FR + 2 * setsz
    def acc(p, q): return ACC + (p * nQw + q) * 4
    def frag(st, o, b): return FR + st * setsz + (b if o == 0 else nPw + b) * 4
    e("s_lshr_b32 s17, s16, 1\ns_and_b32 s18, s16, 1")
    naddr = 0
    for o, op in enumerate(ops):
        nwin = (sstride[o] * S + 65535) // 65536
        naddr += nwin * ((nPw, nQw)[o] if (op.kind == 'tr' or op.lay == 'perm8') else 1)
    vt = AD + naddr
    tt = FR
    e(f"v_and_b32 v{vt}, 63, v0")
    addr = {}
    nxt = AD
    for o, op in enumerate(ops):
        nw = (nPw, nQw)[o]
        sw = (17, 18)[o]
        nwin = (sstride[o] * S + 65535) // 65536
        if op.kind == 'tr':
            e(f"v_lshrrev_b32 v{tt+1}, 4, v{vt}")
            e(f"v_bfe_u32 v{tt+2}, v{vt}, 2, 2")
            e(f"v_and_b32 v{tt+3}, 3, v{vt}")
            e(f"v_lshl_add_u32 v{tt+4}, v{tt+1}, {3 if op.kmap == 'nat' else 2}, v{tt+2}")
            e(f"v_mul_u32_u24 v{tt+4}, {op.R}, v{tt+4}")
            e(f"v_and_b32 v{tt+5}, 1, v{tt+1}")
            e(f"v_lshl_add_u32 v{tt+5}, v{tt+5}, 2, v{tt+2}")
            e(f"v_lshlrev_b32 v{tt+5}, 1, v{tt+5}")
            e(f"v_lshl_add_u32 v{tt+4}, v{tt+3}, 3, v{tt+4}")
            e(f"s_mul_i32 s19, s{sw}, {2*nw}")
            for b in range(nw):
                e(f"s_add_u32 s36, s19, {2*b}")
                e(f"v_xor_b32 v{tt+6}, s36, v{tt+5}")
                e(f"v_lshl_add_u32 v{tt+6}, v{tt+6}, 4, v{tt+4}")
                for w in range(nwin):
                    e(f"v_add_u32 v{nxt}, {base[o] + w*65536}, v{tt+6}")
                    addr[(o, b, w)] = nxt; nxt += 1
        elif op.lay == 'perm8':
            assert nw == 8 and nwin == 1
            e(f"s_mul_i32 s19, s{sw}, {op.stage//2*S}\ns_add_u32 s19, s19, {base[o]}")
            e(f"v_bfe_u32 v{tt+1}, v{vt}, 1, 3")
            e(f"v_lshl_add_u32 v{tt+2}, v{tt+1}, 11, s19")
            e(f"v_lshrrev_b32 v{tt+3}, 4, v{vt}\nv_lshl_add_u32 v{tt+2}, v{tt+3}, 8, v{tt+2}")
            e(f"v_and_b32 v{tt+3}, 1, v{vt}\nv_lshl_add_u32 v{tt+2}, v{tt+3}, 7, v{tt+2}")
            for b in range(nw):
                e(f"v_xor_b32 v{tt+3}, {b}, v{tt+1}\nv_lshl_add_u32 v{nxt}, v{tt+3}, 4, v{tt+2}")
                addr[(o, b, 0)] = nxt; nxt += 1
        else:
            e(f"s_mul_i32 s19, s{sw}, {nw*2048}")
            if op.lay == 'kg':
                e(f"v_lshl_add_u32 v{tt+6}, v{vt}, 4, s19")
            else:
                e(f"v_and_b32 v{tt+1}, 15, v{vt}\nv_lshl_add_u32 v{tt+6}, v{tt+1}, 6, s19")
                e(f"v_lshrrev_b32 v{tt+1}, 2, v{tt+1}\nv_sub_u32 v{tt+1}, 0, v{tt+1}\nv_lshrrev_b32 v{tt+2}, 4, v{vt}\nv_xor_b32 v{tt+1}, v{tt+1}, v{tt+2}\nv_and_b32 v{tt+1}, 3, v{tt+1}")
                e(f"v_lshl_add_u32 v{tt+6}, v{tt+1}, 4, v{tt+6}")
            for w in range(nwin):
                e(f"v_add_u32 v{nxt}, {base[o] + w*65536}, v{tt+6}")
                addr[(o, None, w)] = nxt; nxt += 1
    assert nxt == vt
    for i in range(0, nacc, 2): e(f"v_mov_b64 v[{ACC+i}:{ACC+i+1}], 0")
    mksrd(a)
    def rd1(slot, kb, st, o, b):
        op = ops[o]; f = frag(st, o, b); out = []
        if op.kind == 'tr':
            for t in range(2):
                off = slot * op.stage + (kb * 32 + t * (4 if op.kmap == 'nat' else 16)) * op.R
                w, off = off // 65536, off % 65536
                out.append((f"ds_read_b64_tr_b16 v[{f+2*t}:{f+2*t+1}], v{addr[(o,b,w)]} offset:{off}", (o, b)))
        elif op.lay == 'perm8':
            off = slot * sstride[o] + kb * 1024
            out.append((f"ds_read_b128 v[{f}:{f+3}], v{addr[(o,b,0)]} offset:{off}", (o, b)))
        else:
            off = slot * op.stage + b * 2048 + kb * 1024
            w, off = off // 65536, off % 65536
            out.append((f"ds_read_b128 v[{f}:{f+3}], v{addr[(o,None,w)]} offset:{off}", (o, b)))
        return out
    morder = []
    if nPw >= nQw:
        for p in range(nPw):
            qs = range(nQw) if p % 2 == 0 else range(nQw - 1, -1, -1)
            for q in qs: morder.append((p, q))
    else:
        for q in range(nQw):
            ps = range(nPw) if q % 2 == 0 else range(nPw - 1, -1, -1)
            for p in ps: morder.append((p, q))
    forder = []
    for (p, q) in morder:
        for f in ((0, p), (1, q)):
            if f not in forder: forder.append(f)
    def reads(slot, kb, st):
        out = []
        for (o, b) in forder: out += rd1(slot, kb, st, o, b)
        return out
    R = len(reads(0, 0, 0))
    lastpos = {}
    for i, (_, f) in enumerate(reads(0, 0, 0)): lastpos[f] = i
    per = cfg.get('rdper', 1)
    bpos = cfg.get('bpos', 0)
    def half(st, rd, barrier, tail=""):
        rd = list(rd); k = 0; waited = -1
        for i, (p, q) in enumerate(morder):
            if barrier and i == bpos:
                if lag == 0:
                    e("s_waitcnt lgkmcnt(0)"); waited = R
                if not cfg.get('nobar'): e("s_barrier")
            need = max(lastpos[(0, p)], lastpos[(1, q)])
            if need > waited:
                n = min(R - 1 - need + k, 15)
                if not cfg.get('noread'): e(f"s_waitcnt lgkmcnt({n})")
                waited = need
            c = acc(p, q); fp = frag(st, 0, p); fq = frag(st, 1, q)
            if not cfg.get('nomfma'):
                e(f"v_mfma_f32_16x16x32_bf16 v[{c}:{c+3}], v[{fp}:{fp+3}], v[{fq}:{fq+3}], v[{c}:{c+3}]")
            if (not barrier) or i >= bpos:
                for _ in range(per):
                    if rd:
                        r = rd.pop(0)[0]; k += 1
                        if not cfg.get('noread'): e(r)
            if i == len(morder) - 2 and tail: e(tail)
        assert not rd
    if cfg.get('cprio'): e(f"s_setprio {cfg['cprio']}")
    if cfg.get('stamp'): e("s_memtime s[68:69]")
    if not cfg.get('nobar'): e("s_barrier")
    if cfg.get('stamp'): e("s_memtime s[70:71]\ns_waitcnt lgkmcnt(0)")
    for r, _ in reads(first_slot, 0, 0): e(r)
    e(f"s_mov_b32 s19, {(nsteps + first_slot) // S}")
    if first_slot: e(f"s_branch {nm}_c{first_slot}")
    e(".p2align 6")
    for u in range(S):
        e(f"{nm}_c{u}:")
        half(0, reads(u, 1, 1), False)
        half(1, reads((u + 1) % S, 0, 0), True, "s_sub_u32 s19, s19, 1\ns_cmp_lg_u32 s19, 0" if u == S - 1 else "")
    e(f"s_cbranch_scc1 {nm}_c0")
    e("s_waitcnt lgkmcnt(0)")
    if cfg.get('stamp'): e("s_memtime s[72:73]")
    e("s_nop 7")
    epilogue(a, acc, nPw, nQw, FR, vt)
    e("s_endpgm")
    return total_lds, max(vt + 2, nv)

def pack4(a, dst, c0, c1):
    a.e(f"v_cvt_pk_bf16_f32 v{dst}, v{c0}, v{c0+1}\nv_cvt_pk_bf16_f32 v{dst+1}, v{c0+2}, v{c0+3}")
    a.e(f"v_cvt_pk_bf16_f32 v{dst+2}, v{c1}, v{c1+1}\nv_cvt_pk_bf16_f32 v{dst+3}, v{c1+2}, v{c1+3}")

def stamp_begin(a, cfg):
    if cfg.get('stamp'): a.e("s_memrealtime s[80:81]\ns_memtime s[82:83]\ns_mov_b64 s[68:69], 0\ns_mov_b64 s[70:71], 0\ns_mov_b64 s[72:73], 0")
def stamp_end(a, cfg, kidx, vt):
    if not cfg.get('stamp'): return
    e = a.e
    e("s_memtime s[74:75]")
    e("s_waitcnt vmcnt(0)")
    e("s_memrealtime s[84:85]\ns_memtime s[86:87]\ns_load_dwordx2 s[88:89], s[0:1], 64\ns_getreg_b32 s76, hwreg(HW_REG_XCC_ID)\ns_waitcnt lgkmcnt(0)")
    e(f"s_mov_b32 s90, 0x10000000\ns_mov_b32 s91, 0x20000")
    e(f"v_mov_b32 v{vt}, s80\nv_mov_b32 v{vt+1}, s82\nv_mov_b32 v{vt+2}, s84\nv_mov_b32 v{vt+3}, s86")
    e(f"s_sub_u32 s68, s68, s82\ns_lshl_b32 s68, s68, 4\ns_and_b32 s76, s76, 15\ns_or_b32 s68, s68, s76")
    e(f"v_mov_b32 v{vt+4}, s68\nv_mov_b32 v{vt+5}, s70\nv_mov_b32 v{vt+6}, s72\nv_mov_b32 v{vt+7}, s74")
    e(f"s_lshl_b32 s84, s2, 5\ns_add_u32 s84, s84, {WS_STAMP + kidx*65536}")
    e(f"v_mov_b32 v{vt+8}, 0")
    lbl = f"Lst{kidx}_{len(a.L)}"
    e(f"s_cmp_lg_u32 s16, 0\ns_cbranch_scc1 {lbl}")
    e("s_mov_b64 exec, 1")
    e(f"buffer_store_dwordx4 v[{vt}:{vt+3}], v{vt+8}, s[88:91], s84 offen")
    e(f"buffer_store_dwordx4 v[{vt+4}:{vt+7}], v{vt+8}, s[88:91], s84 offen offset:16")
    e(f"{lbl}:")

def vprefetch(a, cfg, lbl, kidx, nw_total, first_chunk, last_chunk, slabmode):
    b = a.e
    lpr = 14 if slabmode else 56
    b("s_waitcnt lgkmcnt(0)")
    srd(a, 8, 30, 31, 3584*3584*2)
    b(f"s_lshl_b32 s44, s44, 6\ns_add_u32 s44, s44, {first_chunk*64*lpr}")
    b("v_and_b32 v1, 63, v0\nv_add_u32 v1, s44, v1")
    b(f"s_mov_b32 s46, {(1<<32)//lpr+1}\ns_movk_i32 s47, 7168")
    b(f"{lbl}_l:")
    b(f"v_mul_hi_u32 v2, v1, s46\nv_mul_u32_u24 v3, {lpr}, v2\nv_sub_u32 v3, v1, v3\nv_mul_lo_u32 v2, v2, s47\nv_lshl_add_u32 v2, v3, 7, v2")
    b("buffer_load_dword v4, v2, s[8:11], s45 offen")
    b(f"v_add_u32 v1, {nw_total*64}, v1\ns_add_u32 s44, s44, {nw_total*64}")
    b(f"s_cmp_lt_u32 s44, {last_chunk*64*lpr}\ns_cbranch_scc1 {lbl}_l")
    stamp_end(a, cfg, kidx, 8)
    b("s_endpgm")

def build(cfg):
    a = A(); e = a.e
    body = A()
    b = body.e
    stf = cfg.get('stflags', '')
    b(".text\n.globl deq_kernel\n.p2align 8\n.type deq_kernel,@function\ndeq_kernel:")
    b("s_cmp_ge_u32 s2, 256\ns_cbranch_scc1 k0_end")
    stamp_begin(body, cfg)
    b("s_load_dwordx4 s[24:27], s[0:1], 0\ns_load_dwordx4 s[52:55], s[0:1], 16\ns_load_dwordx4 s[28:31], s[0:1], 32\ns_load_dwordx2 s[56:57], s[0:1], 64")
    b("v_lshrrev_b32 v1, 6, v0\ns_and_b32 s42, s2, 7\nv_readfirstlane_b32 s16, v1\ns_lshr_b32 s43, s2, 3")
    b("s_cmp_ge_u32 s2, 128\ns_cbranch_scc1 k0_deq")
    if cfg.get('noxr'): b("s_endpgm")
    b("s_and_b32 s45, s43, 3\ns_lshr_b32 s44, s43, 2")
    b("s_add_u32 s23, s44, s45\ns_and_b32 s23, s23, 3\ns_lshl_b32 s23, s23, 2\ns_mov_b32 s22, 7")
    if cfg.get('xrot') == 0: b("s_mov_b32 s23, 0")
    b("s_lshr_b32 s46, s42, 1\ns_lshl_b32 s46, s46, 2\ns_add_u32 s45, s45, s46")
    b("s_and_b32 s46, s42, 1\ns_lshl_b32 s46, s46, 2\ns_add_u32 s44, s44, s46")
    b(f"s_lshl_b32 s20, s44, 8\ns_lshl_b32 s21, s45, 18")
    def srdx(a):
        a.e("s_waitcnt lgkmcnt(0)")
        srd(a, 4, 28, 29, 1024*1024*2)
        srd(a, 8, 24, 25, 2048*1024*2)
        srd_off(a, 12, 56, 57, WS_XR, 2048*1024*2)
    def epix(a, acc, nPw, nQw, FR, vt):
        e = a.e
        e(f"v_lshlrev_b32 v{vt+1}, 4, v{vt}")
        e("s_lshl_b32 s47, s45, 4\ns_lshl_b32 s48, s44, 1\ns_add_u32 s47, s47, s48\ns_add_u32 s47, s47, s17")
        e("s_lshl_b32 s47, s47, 14\ns_lshl_b32 s48, s18, 13\ns_add_u32 s47, s47, s48\ns_add_u32 s48, s47, 4096")
        k = 0
        for bq in range(nQw):
            for m in range(2):
                d = FR + 4 * k; k += 1
                pack4(a, d, acc(2*m, bq), acc(2*m+1, bq))
                e(f"buffer_store_dwordx4 v[{d}:{d+3}], v{vt+1}, s[12:15], s{47+(bq>>1)} offen offset:{(bq&1)*2048+m*1024} {stf}")
        stamp_end(a, cfg, 0, 0)
    ldsx, vgx = gemm_body(body, "px", Op('tr', 8, 64*2048, 2048), Op('gather', 8, 128, 2048, lay='row'), cfg.get('Sx', 5), cfg.get('lagx', 1), 16, 0, srdx, epix, cfg)
    b("k0_deq:")
    b("s_cmp_ge_u32 s2, 240\ns_cbranch_scc1 k0_pf")
    b("v_and_b32 v2, 63, v0")
    b("s_sub_u32 s17, s2, 128\ns_lshl_b32 s17, s17, 3\ns_add_u32 s17, s17, s16")
    b(f"s_mul_hi_u32 s18, s17, {(1<<32)//56+1}\ns_mul_i32 s19, s18, 56\ns_sub_u32 s19, s17, s19")
    b("v_lshrrev_b32 v3, 2, v2\nv_lshrrev_b32 v4, 4, v2\nv_sub_u32 v4, 0, v4\nv_xor_b32 v4, v4, v2\nv_and_b32 v4, 3, v4")
    b("v_mul_u32_u24 v5, 14336, v3\nv_lshl_add_u32 v5, v4, 4, v5")
    b(f"s_mul_i32 s20, s18, {32*14336}\ns_lshl_b32 s21, s19, 8\ns_add_u32 s20, s20, s21")
    b("v_lshlrev_b32 v6, 3, v4")
    b("s_mul_i32 s22, s18, 7168\ns_lshl_b32 s23, s19, 7\ns_add_u32 s22, s22, s23")
    b(f"s_add_u32 s23, s22, {16*7168}")
    b("s_lshr_b32 s36, s18, 2\ns_mul_i32 s36, s36, 56\ns_add_u32 s36, s36, s19\ns_lshl_b32 s36, s36, 14")
    b("s_and_b32 s37, s18, 3\ns_lshl_b32 s37, s37, 12\ns_add_u32 s36, s36, s37")
    b(f"s_add_u32 s37, s36, {4*56*16384}")
    b("v_lshlrev_b32 v7, 4, v2")
    b("s_waitcnt lgkmcnt(0)")
    srd(body, 4, 26, 27, 1024*3584*4)
    srd(body, 8, 52, 53, 32*3584*2)
    srd(body, 12, 54, 55, 32*3584*2)
    srd_off(body, 32, 56, 57, WS_WQ, 1024*3584*2)
    QV = 16
    SV = 80
    for r in range(2):
        for kb in range(2):
            s_ = SV + (r*2+kb)*8
            for hf in range(2):
                b(f"buffer_load_dwordx2 v[{s_+2*hf}:{s_+2*hf+1}], v6, s[8:11], s{22+r} offen offset:{kb*64+hf*32}")
                b(f"buffer_load_dwordx2 v[{s_+4+2*hf}:{s_+5+2*hf}], v6, s[12:15], s{22+r} offen offset:{kb*64+hf*32}")
        for h in range(2):
            b(f"s_add_u32 s21, s20, {(r*512 + h*16)*14336}")
            for kb in range(2):
                q = QV + ((r*2+h)*2+kb)*8
                b(f"buffer_load_dwordx4 v[{q}:{q+3}], v5, s[4:7], s21 offen offset:{kb*128} {cfg.get('qflags','')}")
                b(f"buffer_load_dwordx4 v[{q+4}:{q+7}], v5, s[4:7], s21 offen offset:{kb*128+64} {cfg.get('qflags','')}")
    UN = 112
    nst = 0
    for r in range(2):
        for h in range(2):
            for kb in range(2):
                idx = r*16 + 8 + (h*2+kb)*2 + 1
                b(f"s_waitcnt vmcnt({31 - idx + nst})")
                if h == 0:
                    s_ = SV + (r*2+kb)*8; u = UN + kb*16
                    for j in range(4):
                        b(f"v_lshlrev_b32 v{u+2*j}, 16, v{s_+j}\nv_and_b32 v{u+2*j+1}, 0xffff0000, v{s_+j}")
                        b(f"v_lshlrev_b32 v{u+8+2*j}, 16, v{s_+4+j}\nv_and_b32 v{u+8+2*j+1}, 0xffff0000, v{s_+4+j}")
                q = QV + ((r*2+h)*2+kb)*8; u = UN + kb*16
                o = 144 + 4*(nst % 4)
                for j in range(8): b(f"v_cvt_f32_i32 v{q+j}, v{q+j}")
                for j in range(4): b(f"v_cvt_pk_bf16_f32 v{8+j}, v{q+2*j}, v{q+2*j+1}")
                for j in range(4): b(f"v_lshlrev_b32 v{q+2*j}, 16, v{8+j}\nv_and_b32 v{q+2*j+1}, 0xffff0000, v{8+j}")
                for j in range(8): b(f"v_sub_f32 v{q+j}, v{q+j}, v{u+8+j}")
                for j in range(4): b(f"v_cvt_pk_bf16_f32 v{8+j}, v{q+2*j}, v{q+2*j+1}")
                for j in range(4): b(f"v_lshlrev_b32 v{q+2*j}, 16, v{8+j}\nv_and_b32 v{q+2*j+1}, 0xffff0000, v{8+j}")
                for j in range(8): b(f"v_mul_f32 v{q+j}, v{q+j}, v{u+j}")
                for j in range(4): b(f"v_cvt_pk_bf16_f32 v{o+j}, v{q+2*j}, v{q+2*j+1}")
                b(f"buffer_store_dwordx4 v[{o}:{o+3}], v7, s[32:35], s{36+r} offen offset:{h*2048+kb*1024} {stf}")
                nst += 1
    stamp_end(body, cfg, 0, 0)
    b("s_endpgm")
    b("k0_pf:")
    if cfg.get('pf0'):
        b("s_sub_u32 s44, s2, 240\ns_lshl_b32 s44, s44, 3\ns_add_u32 s44, s44, s16\ns_mov_b32 s45, 0")
        vprefetch(body, cfg, "k0_pf", 0, 128, 0, cfg['pf0'], False)
    b("k0_end:\ns_endpgm")
    b(".globl g1_kernel\n.p2align 8\n.type g1_kernel,@function\ng1_kernel:")
    b("s_cmp_ge_u32 s2, 256\ns_cbranch_scc1 g1_end")
    stamp_begin(body, cfg)
    b("s_load_dwordx2 s[30:31], s[0:1], 40\ns_load_dwordx2 s[26:27], s[0:1], 64")
    b("v_lshrrev_b32 v1, 6, v0\ns_and_b32 s42, s2, 7\nv_readfirstlane_b32 s16, v1\ns_lshr_b32 s43, s2, 3")
    b(f"s_cmp_lt_u32 s2, 32\ns_cbranch_scc1 g1_pf")
    b("s_sub_u32 s43, s43, 4")
    b("s_and_b32 s44, s43, 3\ns_lshr_b32 s45, s43, 2")
    b("s_add_u32 s22, s44, s45\ns_and_b32 s22, s22, 3\ns_mov_b32 s23, 0")
    b("s_and_b32 s46, s42, 1\ns_lshl_b32 s46, s46, 2\ns_add_u32 s44, s44, s46")
    b("s_lshr_b32 s46, s42, 1\ns_mul_i32 s46, s46, 7\ns_add_u32 s45, s45, s46")
    b(f"s_mul_i32 s20, s44, {56*16384}\ns_lshl_b32 s21, s45, 8")
    def srd1(a):
        a.e("s_waitcnt lgkmcnt(0)")
        srd_off(a, 4, 26, 27, WS_WQ, 1024*3584*2)
        srd(a, 8, 30, 31, 3584*3584*2)
        srd_off(a, 12, 26, 27, WS_WV, 1024*3584*2)
    def epi1(a, acc, nPw, nQw, FR, vt):
        e = a.e
        t = FR + 40
        e("s_lshr_b32 s47, s45, 1\ns_lshl_b32 s47, s47, 4\ns_lshl_b32 s48, s44, 1\ns_add_u32 s47, s47, s48\ns_add_u32 s47, s47, s17\ns_lshl_b32 s47, s47, 15")
        e("s_and_b32 s48, s45, 1\ns_lshl_b32 s48, s48, 14\ns_add_u32 s47, s47, s48\ns_lshl_b32 s48, s18, 13\ns_add_u32 s47, s47, s48\ns_add_u32 s48, s47, 4096")
        e(f"s_lshl_b32 s49, s18, 2\nv_xor_b32 v{vt+1}, s49, v{vt}")
        for bq in range(nQw):
            e(f"v_xor_b32 v{t+bq}, {bq}, v{vt+1}\nv_lshlrev_b32 v{t+bq}, 4, v{t+bq}")
        k = 0
        for bq in range(nQw):
            for m in range(nPw // 2):
                d = FR + 4 * k; k += 1
                pack4(a, d, acc(2*m, bq), acc(2*m+1, bq))
                e(f"buffer_store_dwordx4 v[{d}:{d+3}], v{t+bq}, s[12:15], s{47+(bq>>1)} offen offset:{m*1024+(bq&1)*2048} {stf}")
        stamp_end(a, cfg, 1, 0)
    lds1, vg1 = gemm_body(body, "p1", Op('lin', 8, 16384, lay='row'), Op('tr', 8, 64*7168, 7168, kmap='split'), cfg.get('S1', 5), cfg.get('lag1', 1), 56, cfg.get('lead1', 4), srd1, epi1, cfg)
    b("g1_pf:")
    if cfg.get('vpf', 8) is not None:
        b("s_and_b32 s44, s42, 1\ns_lshl_b32 s44, s44, 2\ns_add_u32 s44, s44, s43\ns_lshl_b32 s44, s44, 3\ns_add_u32 s44, s44, s16")
        b("s_lshr_b32 s45, s42, 1\ns_mul_i32 s45, s45, 1792")
        vprefetch(body, cfg, "g1_pf", 1, 64, cfg.get('vpf', 8), 56, True)
    b("g1_end:\ns_endpgm")
    b(".globl g2_kernel\n.p2align 8\n.type g2_kernel,@function\ng2_kernel:")
    b("s_cmp_ge_u32 s2, 224\ns_cbranch_scc1 g2_end")
    stamp_begin(body, cfg)
    b("s_load_dwordx2 s[24:25], s[0:1], 48\ns_load_dwordx2 s[26:27], s[0:1], 64")
    b("v_lshrrev_b32 v1, 6, v0\ns_and_b32 s42, s2, 7\nv_readfirstlane_b32 s16, v1\ns_lshr_b32 s43, s2, 3")
    b("s_and_b32 s44, s43, 3\ns_lshr_b32 s45, s43, 2")
    b("s_add_u32 s22, s44, s45\ns_and_b32 s22, s22, 3\ns_mov_b32 s23, 0")
    b("s_lshr_b32 s46, s42, 1\ns_lshl_b32 s46, s46, 2\ns_add_u32 s44, s44, s46")
    b("s_and_b32 s46, s42, 1\ns_mul_i32 s46, s46, 7\ns_add_u32 s45, s45, s46")
    b(f"s_lshl_b32 s21, s45, 19\ns_lshl_b32 s20, s44, 18")
    def srd2(a):
        a.e("s_waitcnt lgkmcnt(0)")
        srd_off(a, 8, 26, 27, WS_WV, 1024*3584*2)
        srd_off(a, 4, 26, 27, WS_XR, 2048*1024*2)
        srd(a, 12, 24, 25, 2048*3584*2)
    def epi2(a, acc, nPw, nQw, FR, vt):
        e = a.e
        t = FR + 90
        e(f"v_lshrrev_b32 v{t}, 4, v{vt}\nv_mul_u32_u24 v{t}, {4*7168}, v{t}")
        e(f"v_and_b32 v{vt+1}, 15, v{vt}\nv_lshl_add_u32 v{vt+1}, v{vt+1}, 4, v{t}")
        e(f"s_lshl_b32 s47, s44, 1\ns_add_u32 s47, s47, s17\ns_mul_i32 s47, s47, {64*7168}\ns_lshl_b32 s48, s45, 9\ns_add_u32 s47, s47, s48\ns_lshl_b32 s48, s18, 8\ns_add_u32 s47, s47, s48")
        k = 0
        of = cfg.get('outflags', '')
        for pb in range(nPw):
            for r in range(4):
                d = FR + 4 * k; k += 1
                e(f"s_add_u32 s48, s47, {(pb*16+r)*7168}")
                for j in range(4):
                    e(f"v_cvt_pk_bf16_f32 v{d+j}, v{acc(pb,2*j)+r}, v{acc(pb,2*j+1)+r}")
                e(f"buffer_store_dwordx4 v[{d}:{d+3}], v{vt+1}, s[12:15], s48 offen {of}")
        stamp_end(a, cfg, 2, 0)
    lds2, vg2 = gemm_body(body, "p2", Op('lin', 8, 16384), Op('lin', 16, 32768, lay='perm8'), 3, 0, 16, cfg.get('lead2', 4), srd2, epi2, cfg)
    b("g2_end:\ns_endpgm")
    only = cfg.get('only', (0, 1, 2))
    if 0 in only: e(f"; @launch kernel=deq_kernel grid=(256,1,1) block=(512,1,1) lds={ldsx}")
    if 1 in only: e(f"; @launch kernel=g1_kernel grid=(256,1,1) block=(512,1,1) lds={lds1}")
    if 2 in only: e(f"; @launch kernel=g2_kernel grid=(224,1,1) block=(512,1,1) lds={lds2}")
    e('.amdgcn_target "amdgcn-amd-amdhsa--gfx950"')
    a.L += body.L
    e('.section .rodata,"a"\n.p2align 6')
    descriptor(a, "deq_kernel", max(160, vgx))
    e(".p2align 6")
    descriptor(a, "g1_kernel", vg1)
    e(".p2align 6")
    descriptor(a, "g2_kernel", vg2)
    return a.text()

if __name__ == "__main__":
    out = sys.argv[1] if len(sys.argv) > 1 else "standalone__weight_only_int_quip__prompt.s"
    cfg = {}
    for kv in sys.argv[2:]:
        k, v = kv.split("=", 1)
        cfg[k] = eval(v)
    open(out, "w").write(build(cfg))
```

```python
import sys

WS_WQ = 0
WS_WV = 8 << 20
WS_XR = 16 << 20
WS_STAMP = 0xff00000

class A:
    def __init__(s): s.L = []
    def e(s, t):
        for ln in t.split("\n"): s.L.append(ln)
    def text(s): return "\n".join(s.L) + "\n"

def srd(a, d, lo, hi, nbytes):
    a.e(f"s_mov_b32 s{d}, s{lo}\ns_mov_b32 s{d+1}, s{hi}\ns_mov_b32 s{d+2}, {nbytes}\ns_mov_b32 s{d+3}, 0x20000")

def srd_off(a, d, lo, hi, off, nbytes):
    a.e(f"s_add_u32 s{d}, s{lo}, {off}\ns_addc_u32 s{d+1}, s{hi}, 0\ns_mov_b32 s{d+2}, {nbytes}\ns_mov_b32 s{d+3}, 0x20000")

def descriptor(a, name, vgpr, sgpr=96):
    a.e(f""".amdhsa_kernel {name}
  .amdhsa_next_free_vgpr {vgpr}
  .amdhsa_next_free_sgpr {sgpr}
  .amdhsa_accum_offset {(vgpr+3)//4*4}
  .amdhsa_group_segment_fixed_size 0
  .amdhsa_kernarg_size 72
  .amdhsa_user_sgpr_count 2
  .amdhsa_user_sgpr_kernarg_segment_ptr 1
  .amdhsa_system_sgpr_workgroup_id_x 1
  .amdhsa_float_denorm_mode_32 3
.end_amdhsa_kernel""")

class Op:
    def __init__(s, kind, nblk, stepbytes, pitch=0, lay='kg', kmap='nat'):
        s.lay = lay
        s.kmap = kmap
        s.kind = kind
        s.nblk = nblk
        s.stepbytes = stepbytes
        s.pitch = pitch
        s.stage = nblk * 2048
        s.npieces = nblk * 2
        s.R = nblk * 32

def gemm_body(a, nm, P, Q, S, lag, nsteps, lead, mksrd, epilogue, cfg, rmask=3):
    e = a.e
    ops = [P, Q]
    base = [0, P.stage * S]
    total_lds = (P.stage + Q.stage) * S
    npw = [P.npieces // 4, Q.npieces // 4]
    nld = npw[0] + npw[1]
    if cfg.get('noloadop') is not None: nld -= npw[cfg['noloadop']]
    D = S - 1 - lag
    first_slot = (S - (nsteps % S)) % S
    e(f"s_cmp_lt_u32 s16, 4\ns_cbranch_scc1 {nm}_cons")
    if cfg.get('pprio'): e(f"s_setprio {cfg['pprio']}")
    e("s_sub_u32 s17, s16, 4")
    e("v_and_b32 v1, 63, v0")
    voff = [[], []]
    nv = 8
    for o, op in enumerate(ops):
        sb = (20, 21)[o]
        n = npw[o]
        if op.kind == 'lin':
            e(f"s_mul_i32 s19, s17, {n*1024}\ns_add_u32 s19, s19, s{sb}")
            e(f"v_lshl_add_u32 v{nv}, v1, 4, s19")
            voff[o].append(nv); nv += 1
            for u in range(1, n):
                e(f"v_add_u32 v{nv}, {u*1024}, v{voff[o][0]}")
                voff[o].append(nv); nv += 1
        elif op.kind == 'tr':
            cpr = op.R // 16; rpp = 1024 // op.R; sh = cpr.bit_length() - 1
            for u in range(n):
                r = nv; nv += 1; voff[o].append(r)
                e(f"s_mul_i32 s19, s17, {n*rpp}\ns_add_u32 s19, s19, {u*rpp}")
                e(f"v_lshrrev_b32 v2, {sh}, v1\nv_add_u32 v2, s19, v2")
                e(f"v_and_b32 v3, {cpr-1}, v1")
                if op.kmap == 'nat':
                    e("v_and_b32 v4, 3, v2\nv_bfe_u32 v5, v2, 3, 1\nv_lshl_add_u32 v4, v5, 2, v4\nv_lshlrev_b32 v4, 1, v4")
                else:
                    e("v_and_b32 v4, 7, v2\nv_lshlrev_b32 v4, 1, v4")
                e("v_xor_b32 v3, v3, v4")
                e(f"v_mul_u32_u24 v2, {op.pitch}, v2")
                e(f"v_lshl_add_u32 v2, v3, 4, v2\nv_add_u32 v{r}, s{sb}, v2")
        else:
            e(f"s_mul_i32 s19, s17, {n//2*16}")
            e(f"v_lshrrev_b32 v2, 2, v1\nv_add_u32 v2, s19, v2\nv_mul_u32_u24 v2, {op.pitch}, v2")
            e(f"v_lshrrev_b32 v3, 4, v1\nv_sub_u32 v3, 0, v3\nv_xor_b32 v3, v3, v1\nv_and_b32 v3, 3, v3")
            e(f"v_lshl_add_u32 v2, v3, 4, v2\nv_add_u32 v2, s{sb}, v2")
            for u in range(n):
                r = nv; nv += 1; voff[o].append(r)
                e(f"v_add_u32 v{r}, {(u>>1)*16*op.pitch + (u&1)*64}, v2")
    sstride = []
    for o, op in enumerate(ops):
        if op.lay == 'perm8':
            e(f"s_lshr_b32 s19, s17, 1\ns_mul_i32 s{32+o}, s19, {op.stage//2*S}\ns_and_b32 s19, s17, 1\ns_mul_i32 s19, s19, {npw[o]*1024}\ns_add_u32 s{32+o}, s{32+o}, s19")
            sstride.append(op.stage // 2)
        else:
            e(f"s_mul_i32 s{32+o}, s17, {npw[o]*1024}")
            sstride.append(op.stage)
        if base[o]: e(f"s_add_u32 s{32+o}, s{32+o}, {base[o]}")
    e("s_mov_b32 s34, 0")
    e(f"s_mov_b32 s35, {first_slot}")
    mksrd(a)
    def issue():
        e(f"s_and_b32 s36, s34, {rmask}\ns_cmp_eq_u32 s36, s22")
        e(f"s_cselect_b32 s36, {lead}, 0\ns_add_u32 s36, s36, s34\ns_add_u32 s36, s36, s23")
        e(f"s_sub_u32 s37, s36, {nsteps}\ns_cmp_ge_u32 s36, {nsteps}\ns_cselect_b32 s36, s37, s36")
        if cfg.get('wrapk'): e(f"s_and_b32 s36, s36, {cfg['wrapk']-1}")
        e(f"s_mul_i32 s38, s36, {P.stepbytes}\ns_mul_i32 s39, s36, {Q.stepbytes}")
        e(f"s_mul_i32 s40, s35, {sstride[0]}\ns_add_u32 s40, s40, s32")
        e(f"s_mul_i32 s41, s35, {sstride[1]}\ns_add_u32 s41, s41, s33")
        seq = []
        if cfg.get('seqorder', 'qp') == 'il':
            for u in range(max(npw)):
                for o in (0, 1):
                    if u < npw[o]: seq.append((o, u))
        else:
            seq = [(1, u) for u in range(npw[1])] + [(0, u) for u in range(npw[0])]
        for (o, u) in seq:
            e(f"s_add_u32 m0, s{40+o}, {u*1024}")
            e("s_nop 0")
            if not cfg.get('noload') and not (cfg.get('noloadop') == o):
                e(f"buffer_load_dwordx4 v{voff[o][u]}, s[{4+4*o}:{7+4*o}], s{38+o} offen {cfg.get('ldflags_'+nm, ('',''))[o]} lds")
        e("s_add_u32 s34, s34, 1")
        e(f"s_add_u32 s35, s35, 1\ns_cmp_eq_u32 s35, {S}\ns_cselect_b32 s35, 0, s35")
    bar = "" if cfg.get('nobar') else "\ns_barrier"
    e(f"{nm}_p1:")
    issue()
    e(f"s_cmp_lt_u32 s34, {D}\ns_cbranch_scc1 {nm}_p1")
    e(f"s_waitcnt vmcnt({nld*(D-1)}){bar}")
    e(f"s_cmp_lt_u32 s34, {nsteps}\ns_cbranch_scc1 {nm}_p1")
    for i in range(D):
        rem = max(D - 2 - i, 0)
        e(f"s_waitcnt vmcnt({nld*rem}){bar}")
    e("s_endpgm")
    e(f"{nm}_cons:")
    nPw, nQw = P.nblk // 2, Q.nblk // 2
    ACC = 0
    nacc = nPw * nQw * 4
    FR = nacc
    setsz = (nPw + nQw) * 4
    AD = FR + 2 * setsz
    def acc(p, q): return ACC + (p * nQw + q) * 4
    def frag(st, o, b): return FR + st * setsz + (b if o == 0 else nPw + b) * 4
    e("s_lshr_b32 s17, s16, 1\ns_and_b32 s18, s16, 1")
    naddr = 0
    for o, op in enumerate(ops):
        nwin = (sstride[o] * S + 65535) // 65536
        naddr += nwin * ((nPw, nQw)[o] if (op.kind == 'tr' or op.lay == 'perm8') else 1)
    vt = AD + naddr
    tt = FR
    e(f"v_and_b32 v{vt}, 63, v0")
    addr = {}
    nxt = AD
    for o, op in enumerate(ops):
        nw = (nPw, nQw)[o]
        sw = (17, 18)[o]
        nwin = (sstride[o] * S + 65535) // 65536
        if op.kind == 'tr':
            e(f"v_lshrrev_b32 v{tt+1}, 4, v{vt}")
            e(f"v_bfe_u32 v{tt+2}, v{vt}, 2, 2")
            e(f"v_and_b32 v{tt+3}, 3, v{vt}")
            e(f"v_lshl_add_u32 v{tt+4}, v{tt+1}, {3 if op.kmap == 'nat' else 2}, v{tt+2}")
            e(f"v_mul_u32_u24 v{tt+4}, {op.R}, v{tt+4}")
            e(f"v_and_b32 v{tt+5}, 1, v{tt+1}")
            e(f"v_lshl_add_u32 v{tt+5}, v{tt+5}, 2, v{tt+2}")
            e(f"v_lshlrev_b32 v{tt+5}, 1, v{tt+5}")
            e(f"v_lshl_add_u32 v{tt+4}, v{tt+3}, 3, v{tt+4}")
            e(f"s_mul_i32 s19, s{sw}, {2*nw}")
            for b in range(nw):
                e(f"s_add_u32 s36, s19, {2*b}")
                e(f"v_xor_b32 v{tt+6}, s36, v{tt+5}")
                e(f"v_lshl_add_u32 v{tt+6}, v{tt+6}, 4, v{tt+4}")
                for w in range(nwin):
                    e(f"v_add_u32 v{nxt}, {base[o] + w*65536}, v{tt+6}")
                    addr[(o, b, w)] = nxt; nxt += 1
        elif op.lay == 'perm8':
            assert nw == 8 and nwin == 1
            e(f"s_mul_i32 s19, s{sw}, {op.stage//2*S}\ns_add_u32 s19, s19, {base[o]}")
            e(f"v_bfe_u32 v{tt+1}, v{vt}, 1, 3")
            e(f"v_lshl_add_u32 v{tt+2}, v{tt+1}, 11, s19")
            e(f"v_lshrrev_b32 v{tt+3}, 4, v{vt}\nv_lshl_add_u32 v{tt+2}, v{tt+3}, 8, v{tt+2}")
            e(f"v_and_b32 v{tt+3}, 1, v{vt}\nv_lshl_add_u32 v{tt+2}, v{tt+3}, 7, v{tt+2}")
            for b in range(nw):
                e(f"v_xor_b32 v{tt+3}, {b}, v{tt+1}\nv_lshl_add_u32 v{nxt}, v{tt+3}, 4, v{tt+2}")
                addr[(o, b, 0)] = nxt; nxt += 1
        else:
            e(f"s_mul_i32 s19, s{sw}, {nw*2048}")
            if op.lay == 'kg':
                e(f"v_lshl_add_u32 v{tt+6}, v{vt}, 4, s19")
            else:
                e(f"v_and_b32 v{tt+1}, 15, v{vt}\nv_lshl_add_u32 v{tt+6}, v{tt+1}, 6, s19")
                e(f"v_lshrrev_b32 v{tt+1}, 2, v{tt+1}\nv_sub_u32 v{tt+1}, 0, v{tt+1}\nv_lshrrev_b32 v{tt+2}, 4, v{vt}\nv_xor_b32 v{tt+1}, v{tt+1}, v{tt+2}\nv_and_b32 v{tt+1}, 3, v{tt+1}")
                e(f"v_lshl_add_u32 v{tt+6}, v{tt+1}, 4, v{tt+6}")
            for w in range(nwin):
                e(f"v_add_u32 v{nxt}, {base[o] + w*65536}, v{tt+6}")
                addr[(o, None, w)] = nxt; nxt += 1
    assert nxt == vt
    for i in range(0, nacc, 2): e(f"v_mov_b64 v[{ACC+i}:{ACC+i+1}], 0")
    mksrd(a)
    def rd1(slot, kb, st, o, b):
        op = ops[o]; f = frag(st, o, b); out = []
        if op.kind == 'tr':
            for t in range(2):
                off = slot * op.stage + (kb * 32 + t * (4 if op.kmap == 'nat' else 16)) * op.R
                w, off = off // 65536, off % 65536
                out.append((f"ds_read_b64_tr_b16 v[{f+2*t}:{f+2*t+1}], v{addr[(o,b,w)]} offset:{off}", (o, b)))
        elif op.lay == 'perm8':
            off = slot * sstride[o] + kb * 1024
            out.append((f"ds_read_b128 v[{f}:{f+3}], v{addr[(o,b,0)]} offset:{off}", (o, b)))
        else:
            off = slot * op.stage + b * 2048 + kb * 1024
            w, off = off // 65536, off % 65536
            out.append((f"ds_read_b128 v[{f}:{f+3}], v{addr[(o,None,w)]} offset:{off}", (o, b)))
        return out
    morder = []
    if nPw >= nQw:
        for p in range(nPw):
            qs = range(nQw) if p % 2 == 0 else range(nQw - 1, -1, -1)
            for q in qs: morder.append((p, q))
    else:
        for q in range(nQw):
            ps = range(nPw) if q % 2 == 0 else range(nPw - 1, -1, -1)
            for p in ps: morder.append((p, q))
    forder = []
    for (p, q) in morder:
        for f in ((0, p), (1, q)):
            if f not in forder: forder.append(f)
    def reads(slot, kb, st):
        out = []
        for (o, b) in forder: out += rd1(slot, kb, st, o, b)
        return out
    R = len(reads(0, 0, 0))
    lastpos = {}
    for i, (_, f) in enumerate(reads(0, 0, 0)): lastpos[f] = i
    per = cfg.get('rdper', 1)
    bpos = cfg.get('bpos', 0)
    def half(st, rd, barrier, tail=""):
        rd = list(rd); k = 0; waited = -1
        for i, (p, q) in enumerate(morder):
            if barrier and i == bpos:
                if lag == 0:
                    e("s_waitcnt lgkmcnt(0)"); waited = R
                if not cfg.get('nobar'): e("s_barrier")
            need = max(lastpos[(0, p)], lastpos[(1, q)])
            if need > waited:
                n = min(R - 1 - need + k, 15)
                if not cfg.get('noread'): e(f"s_waitcnt lgkmcnt({n})")
                waited = need
            c = acc(p, q); fp = frag(st, 0, p); fq = frag(st, 1, q)
            if not cfg.get('nomfma'):
                e(f"v_mfma_f32_16x16x32_bf16 v[{c}:{c+3}], v[{fp}:{fp+3}], v[{fq}:{fq+3}], v[{c}:{c+3}]")
            if (not barrier) or i >= bpos:
                for _ in range(per):
                    if rd:
                        r = rd.pop(0)[0]; k += 1
                        if not cfg.get('noread'): e(r)
            if i == len(morder) - 2 and tail: e(tail)
        assert not rd
    if cfg.get('cprio'): e(f"s_setprio {cfg['cprio']}")
    if cfg.get('stamp'): e("s_memtime s[68:69]")
    if not cfg.get('nobar'): e("s_barrier")
    if cfg.get('stamp'): e("s_memtime s[70:71]\ns_waitcnt lgkmcnt(0)")
    for r, _ in reads(first_slot, 0, 0): e(r)
    e(f"s_mov_b32 s19, {(nsteps + first_slot) // S}")
    if first_slot: e(f"s_branch {nm}_c{first_slot}")
    e(".p2align 6")
    for u in range(S):
        e(f"{nm}_c{u}:")
        half(0, reads(u, 1, 1), False)
        half(1, reads((u + 1) % S, 0, 0), True, "s_sub_u32 s19, s19, 1\ns_cmp_lg_u32 s19, 0" if u == S - 1 else "")
    e(f"s_cbranch_scc1 {nm}_c0")
    e("s_waitcnt lgkmcnt(0)")
    if cfg.get('stamp'): e("s_memtime s[72:73]")
    e("s_nop 7")
    epilogue(a, acc, nPw, nQw, FR, vt)
    e("s_endpgm")
    return total_lds, max(vt + 2, nv)

def pack4(a, dst, c0, c1):
    a.e(f"v_cvt_pk_bf16_f32 v{dst}, v{c0}, v{c0+1}\nv_cvt_pk_bf16_f32 v{dst+1}, v{c0+2}, v{c0+3}")
    a.e(f"v_cvt_pk_bf16_f32 v{dst+2}, v{c1}, v{c1+1}\nv_cvt_pk_bf16_f32 v{dst+3}, v{c1+2}, v{c1+3}")

def stamp_begin(a, cfg):
    if cfg.get('stamp'): a.e("s_memrealtime s[80:81]\ns_memtime s[82:83]\ns_mov_b64 s[68:69], 0\ns_mov_b64 s[70:71], 0\ns_mov_b64 s[72:73], 0")
def stamp_end(a, cfg, kidx, vt):
    if not cfg.get('stamp'): return
    e = a.e
    e("s_memtime s[74:75]")
    e("s_waitcnt vmcnt(0)")
    e("s_memrealtime s[84:85]\ns_memtime s[86:87]\ns_load_dwordx2 s[88:89], s[0:1], 64\ns_getreg_b32 s76, hwreg(HW_REG_XCC_ID)\ns_waitcnt lgkmcnt(0)")
    e(f"s_mov_b32 s90, 0x10000000\ns_mov_b32 s91, 0x20000")
    e(f"v_mov_b32 v{vt}, s80\nv_mov_b32 v{vt+1}, s82\nv_mov_b32 v{vt+2}, s84\nv_mov_b32 v{vt+3}, s86")
    e(f"s_sub_u32 s68, s68, s82\ns_lshl_b32 s68, s68, 4\ns_and_b32 s76, s76, 15\ns_or_b32 s68, s68, s76")
    e(f"v_mov_b32 v{vt+4}, s68\nv_mov_b32 v{vt+5}, s70\nv_mov_b32 v{vt+6}, s72\nv_mov_b32 v{vt+7}, s74")
    e(f"s_lshl_b32 s84, s2, 5\ns_add_u32 s84, s84, {WS_STAMP + kidx*65536}")
    e(f"v_mov_b32 v{vt+8}, 0")
    lbl = f"Lst{kidx}_{len(a.L)}"
    e(f"s_cmp_lg_u32 s16, 0\ns_cbranch_scc1 {lbl}")
    e("s_mov_b64 exec, 1")
    e(f"buffer_store_dwordx4 v[{vt}:{vt+3}], v{vt+8}, s[88:91], s84 offen")
    e(f"buffer_store_dwordx4 v[{vt+4}:{vt+7}], v{vt+8}, s[88:91], s84 offen offset:16")
    e(f"{lbl}:")

def vprefetch(a, cfg, lbl, kidx, nw_total, first_chunk, last_chunk, slabmode):
    b = a.e
    lpr = 14 if slabmode else 56
    b("s_waitcnt lgkmcnt(0)")
    srd(a, 8, 30, 31, 3584*3584*2)
    b(f"s_lshl_b32 s44, s44, 6\ns_add_u32 s44, s44, {first_chunk*64*lpr}")
    b("v_and_b32 v1, 63, v0\nv_add_u32 v1, s44, v1")
    b(f"s_mov_b32 s46, {(1<<32)//lpr+1}\ns_movk_i32 s47, 7168")
    b(f"{lbl}_l:")
    b(f"v_mul_hi_u32 v2, v1, s46\nv_mul_u32_u24 v3, {lpr}, v2\nv_sub_u32 v3, v1, v3\nv_mul_lo_u32 v2, v2, s47\nv_lshl_add_u32 v2, v3, 7, v2")
    b("buffer_load_dword v4, v2, s[8:11], s45 offen")
    b(f"v_add_u32 v1, {nw_total*64}, v1\ns_add_u32 s44, s44, {nw_total*64}")
    b(f"s_cmp_lt_u32 s44, {last_chunk*64*lpr}\ns_cbranch_scc1 {lbl}_l")
    stamp_end(a, cfg, kidx, 8)
    b("s_endpgm")

def build(cfg):
    a = A(); e = a.e
    body = A()
    b = body.e
    stf = cfg.get('stflags', 'sc1')
    xk = cfg.get('xrk', 1)
    b(".text\n.globl deq_kernel\n.p2align 8\n.type deq_kernel,@function\ndeq_kernel:")
    b("s_cmp_ge_u32 s2, 256\ns_cbranch_scc1 k0_end")
    stamp_begin(body, cfg)
    b("s_load_dwordx4 s[24:27], s[0:1], 0\ns_load_dwordx4 s[52:55], s[0:1], 16\ns_load_dwordx4 s[28:31], s[0:1], 32\ns_load_dwordx2 s[56:57], s[0:1], 64")
    b("v_lshrrev_b32 v1, 6, v0\ns_and_b32 s42, s2, 7\nv_readfirstlane_b32 s16, v1\ns_lshr_b32 s43, s2, 3")
    lds0 = 0; vg0 = 0
    if xk == 1 and cfg.get('xpf', 3):
        b("s_cmp_lt_u32 s16, 7\ns_cbranch_scc1 k0_deq")
        b("v_and_b32 v2, 63, v0\nv_lshlrev_b32 v2, 7, v2\ns_lshl_b32 s17, s2, 13\ns_add_u32 s18, s17, 0x200000")
        b("s_waitcnt lgkmcnt(0)")
        srd(body, 4, 24, 25, 2048*1024*2)
        srd(body, 8, 28, 29, 1024*1024*2)
        b("buffer_load_dword v3, v2, s[4:7], s17 offen\nbuffer_load_dword v4, v2, s[4:7], s18 offen")
        b("buffer_load_dword v5, v2, s[8:11], s17 offen")
        b("s_endpgm")
    if xk == 0:
        b("s_cmp_ge_u32 s2, 128\ns_cbranch_scc1 k0_deq")
        b("s_and_b32 s45, s43, 3\ns_lshr_b32 s44, s43, 2")
        b("s_add_u32 s23, s44, s45\ns_and_b32 s23, s23, 3")
        if cfg.get('xrot', 1) == 1: b("s_lshl_b32 s23, s23, 2\ns_mov_b32 s22, 7")
        else: b("s_mov_b32 s22, s23\ns_lshr_b32 s23, s42, 1\ns_lshl_b32 s23, s23, 2")
        b("s_lshr_b32 s46, s42, 1\ns_lshl_b32 s46, s46, 2\ns_add_u32 s45, s45, s46")
        b("s_and_b32 s46, s42, 1\ns_lshl_b32 s46, s46, 2\ns_add_u32 s44, s44, s46")
        b(f"s_lshl_b32 s20, s44, 8\ns_lshl_b32 s21, s45, 18")
        def srdx0(a):
            a.e("s_waitcnt lgkmcnt(0)")
            srd(a, 4, 28, 29, 1024*1024*2)
            srd(a, 8, 24, 25, 2048*1024*2)
            srd_off(a, 12, 56, 57, WS_XR, 2048*1024*2)
        def epix0(a, acc, nPw, nQw, FR, vt):
            e = a.e
            e(f"v_lshlrev_b32 v{vt+1}, 4, v{vt}")
            e("s_lshl_b32 s47, s45, 4\ns_lshl_b32 s48, s44, 1\ns_add_u32 s47, s47, s48\ns_add_u32 s47, s47, s17")
            e("s_lshl_b32 s47, s47, 14\ns_lshl_b32 s48, s18, 13\ns_add_u32 s47, s47, s48\ns_add_u32 s48, s47, 4096")
            k = 0
            for bq in range(nQw):
                for m in range(2):
                    d = FR + 4 * k; k += 1
                    pack4(a, d, acc(2*m, bq), acc(2*m+1, bq))
                    e(f"buffer_store_dwordx4 v[{d}:{d+3}], v{vt+1}, s[12:15], s{47+(bq>>1)} offen offset:{(bq&1)*2048+m*1024} {stf}")
            stamp_end(a, cfg, 0, 0)
        lds0, vg0 = gemm_body(body, "px0", Op('tr', 8, 64*2048, 2048), Op('gather', 8, 128, 2048, lay='row'), 4, 1, 16, 4, srdx0, epix0, cfg)
    b("k0_deq:")
    NI = 2 if xk == 0 else 1
    b("s_cmp_ge_u32 s16, 7\ns_cbranch_scc1 k0_end")
    b("v_and_b32 v2, 63, v0")
    if xk == 0: b("s_sub_u32 s17, s2, 128\ns_mul_i32 s17, s17, 7\ns_add_u32 s17, s17, s16")
    else: b("s_mul_i32 s17, s2, 7\ns_add_u32 s17, s17, s16")
    b(f"s_mul_hi_u32 s18, s17, {(1<<32)//56+1}\ns_mul_i32 s19, s18, 56\ns_sub_u32 s19, s17, s19")
    b("v_lshrrev_b32 v3, 2, v2\nv_lshrrev_b32 v4, 4, v2\nv_sub_u32 v4, 0, v4\nv_xor_b32 v4, v4, v2\nv_and_b32 v4, 3, v4")
    b("v_mul_u32_u24 v5, 14336, v3\nv_lshl_add_u32 v5, v4, 4, v5")
    b(f"s_mul_i32 s20, s18, {32*14336}\ns_lshl_b32 s21, s19, 8\ns_add_u32 s20, s20, s21")
    b("v_lshlrev_b32 v6, 3, v4")
    b("s_mul_i32 s22, s18, 7168\ns_lshl_b32 s23, s19, 7\ns_add_u32 s22, s22, s23")
    b(f"s_add_u32 s23, s22, {16*7168}")
    b("s_lshr_b32 s36, s18, 2\ns_mul_i32 s36, s36, 56\ns_add_u32 s36, s36, s19\ns_lshl_b32 s36, s36, 14")
    b("s_and_b32 s37, s18, 3\ns_lshl_b32 s37, s37, 12\ns_add_u32 s36, s36, s37")
    b(f"s_add_u32 s37, s36, {4*56*16384}")
    b("v_lshlrev_b32 v7, 4, v2")
    b("s_waitcnt lgkmcnt(0)")
    srd(body, 4, 26, 27, 1024*3584*4)
    srd(body, 8, 52, 53, 32*3584*2)
    srd(body, 12, 54, 55, 32*3584*2)
    srd_off(body, 32, 56, 57, WS_WQ, 1024*3584*2)
    UN = 16; OV = 48; IB = 64
    for r in range(NI):
        QV = IB + r*48; SV = QV + 32
        for h in range(2):
            b(f"s_add_u32 s21, s20, {(r*512 + h*16)*14336}")
            for kb in range(2):
                q = QV + (h*2+kb)*8
                b(f"buffer_load_dwordx4 v[{q}:{q+3}], v5, s[4:7], s21 offen offset:{kb*128} {cfg.get('qflags','nt')}")
                b(f"buffer_load_dwordx4 v[{q+4}:{q+7}], v5, s[4:7], s21 offen offset:{kb*128+64} {cfg.get('qflags','nt')}")
        for kb in range(2):
            s_ = SV + kb*8
            for hf in range(2):
                b(f"buffer_load_dwordx2 v[{s_+2*hf}:{s_+2*hf+1}], v6, s[8:11], s{22+r} offen offset:{kb*64+hf*32}")
                b(f"buffer_load_dwordx2 v[{s_+4+2*hf}:{s_+5+2*hf}], v6, s[12:15], s{22+r} offen offset:{kb*64+hf*32}")
    for r in range(NI):
        QV = IB + r*48; SV = QV + 32
        later = (NI-1-r)*16 + r*4
        b(f"s_waitcnt vmcnt({8 + later})")
        for j in range(32): b(f"v_cvt_f32_i32 v{QV+j}, v{QV+j}")
        for jj in range(4):
            for j in range(4): b(f"v_cvt_pk_bf16_f32 v{8+j}, v{QV+8*jj+2*j}, v{QV+8*jj+2*j+1}")
            for j in range(4): b(f"v_lshlrev_b32 v{QV+8*jj+2*j}, 16, v{8+j}\nv_and_b32 v{QV+8*jj+2*j+1}, 0xffff0000, v{8+j}")
        b(f"s_waitcnt vmcnt({later})")
        for kb in range(2):
            s_ = SV + kb*8; u = UN + kb*16
            for j in range(4):
                b(f"v_lshlrev_b32 v{u+2*j}, 16, v{s_+j}\nv_and_b32 v{u+2*j+1}, 0xffff0000, v{s_+j}")
                b(f"v_lshlrev_b32 v{u+8+2*j}, 16, v{s_+4+j}\nv_and_b32 v{u+8+2*j+1}, 0xffff0000, v{s_+4+j}")
        for h in range(2):
            for kb in range(2):
                q = QV + (h*2+kb)*8; u = UN + kb*16; o = SV + (h*2+kb)*4
                for j in range(8): b(f"v_sub_f32 v{q+j}, v{q+j}, v{u+8+j}")
                for j in range(4): b(f"v_cvt_pk_bf16_f32 v{8+j}, v{q+2*j}, v{q+2*j+1}")
                for j in range(4): b(f"v_lshlrev_b32 v{q+2*j}, 16, v{8+j}\nv_and_b32 v{q+2*j+1}, 0xffff0000, v{8+j}")
                for j in range(8): b(f"v_mul_f32 v{q+j}, v{q+j}, v{u+j}")
                for j in range(4): b(f"v_cvt_pk_bf16_f32 v{o+j}, v{q+2*j}, v{q+2*j+1}")
                b(f"buffer_store_dwordx4 v[{o}:{o+3}], v7, s[32:35], s{36+r} offen offset:{h*2048+kb*1024} {stf}")
    vg0 = max(vg0, IB + NI*48)
    stamp_end(body, cfg, 0, 0)
    b("k0_end:\ns_endpgm")
    b(".globl g1_kernel\n.p2align 8\n.type g1_kernel,@function\ng1_kernel:")
    ng1 = 288 if xk == 1 else 256
    b(f"s_cmp_ge_u32 s2, {ng1}\ns_cbranch_scc1 g1_end")
    stamp_begin(body, cfg)
    b("s_load_dwordx4 s[28:31], s[0:1], 32\ns_load_dwordx2 s[26:27], s[0:1], 64\ns_load_dwordx2 s[24:25], s[0:1], 0")
    b("v_lshrrev_b32 v1, 6, v0\ns_and_b32 s42, s2, 7\nv_readfirstlane_b32 s16, v1\ns_lshr_b32 s43, s2, 3")
    b(f"s_cmp_lt_u32 s2, 32\ns_cbranch_scc1 g1_xr\ns_cmp_ge_u32 s2, 256\ns_cbranch_scc1 g1_xr")
    b("s_sub_u32 s43, s43, 4")
    b("s_and_b32 s44, s43, 3\ns_lshr_b32 s45, s43, 2")
    b("s_add_u32 s22, s44, s45\ns_and_b32 s22, s22, 3\ns_mov_b32 s23, 0")
    if cfg.get('koff1', 28): b(f"s_and_b32 s23, s42, 1\ns_mul_i32 s23, s23, {cfg.get('koff1', 28)}")
    b("s_and_b32 s46, s42, 1\ns_lshl_b32 s46, s46, 2\ns_add_u32 s44, s44, s46")
    b("s_lshr_b32 s46, s42, 1\ns_mul_i32 s46, s46, 7\ns_add_u32 s45, s45, s46")
    b(f"s_mul_i32 s20, s44, {56*16384}\ns_lshl_b32 s21, s45, 8")
    def srd1(a):
        a.e("s_waitcnt lgkmcnt(0)")
        srd_off(a, 4, 26, 27, WS_WQ, 1024*3584*2)
        srd(a, 8, 30, 31, 3584*3584*2)
        srd_off(a, 12, 26, 27, WS_WV, 1024*3584*2)
    def epi1(a, acc, nPw, nQw, FR, vt):
        e = a.e
        t = FR + 40
        e("s_lshr_b32 s47, s45, 1\ns_lshl_b32 s47, s47, 4\ns_lshl_b32 s48, s44, 1\ns_add_u32 s47, s47, s48\ns_add_u32 s47, s47, s17\ns_lshl_b32 s47, s47, 15")
        e("s_and_b32 s48, s45, 1\ns_lshl_b32 s48, s48, 14\ns_add_u32 s47, s47, s48\ns_lshl_b32 s48, s18, 13\ns_add_u32 s47, s47, s48\ns_add_u32 s48, s47, 4096")
        e(f"s_lshl_b32 s49, s18, 2\nv_xor_b32 v{vt+1}, s49, v{vt}")
        for bq in range(nQw):
            e(f"v_xor_b32 v{t+bq}, {bq}, v{vt+1}\nv_lshlrev_b32 v{t+bq}, 4, v{t+bq}")
        k = 0
        for bq in range(nQw):
            for m in range(nPw // 2):
                d = FR + 4 * k; k += 1
                pack4(a, d, acc(2*m, bq), acc(2*m+1, bq))
                e(f"buffer_store_dwordx4 v[{d}:{d+3}], v{t+bq}, s[12:15], s{47+(bq>>1)} offen offset:{m*1024+(bq&1)*2048} {stf}")
        stamp_end(a, cfg, 1, 0)
    lds1, vg1 = gemm_body(body, "p1", Op('lin', 8, 16384, lay='row'), Op('tr', 8, 64*7168, 7168, kmap='split'), cfg.get('S1', 4), cfg.get('lag1', 1), 56, cfg.get('lead1', 4), srd1, epi1, cfg)
    b("g1_xr:")
    if xk == 0:
        b("s_and_b32 s44, s42, 1\ns_lshl_b32 s44, s44, 2\ns_add_u32 s44, s44, s43\ns_lshl_b32 s44, s44, 3\ns_add_u32 s44, s44, s16")
        b("s_lshr_b32 s45, s42, 1\ns_mul_i32 s45, s45, 1792")
        vprefetch(body, cfg, "g1_pf", 1, 64, cfg.get('vpf', 8), 56, True)
    xm = cfg.get('xmap', '2x2')
    b("s_lshr_b32 s46, s43, 5")
    if xm == '2x2':
        b("s_and_b32 s45, s43, 1\ns_bfe_u32 s44, s43, 0x10001\ns_xor_b32 s22, s44, s45\ns_mov_b32 s23, 0")
        b("s_lshl_b32 s47, s42, 1\ns_add_u32 s45, s45, s47")
        b("s_xor_b32 s46, s46, s42\ns_and_b32 s46, s46, 1\ns_lshl_b32 s46, s46, 1\ns_add_u32 s44, s44, s46")
        rm = 1
    else:
        b("s_and_b32 s44, s43, 3\ns_lshl_b32 s45, s42, 1\ns_add_u32 s45, s45, s46\ns_mov_b32 s22, s44\ns_mov_b32 s23, 0")
        rm = 3
    if cfg.get('xoff', 1): b(f"s_lshr_b32 s23, s42, 1\ns_lshl_b32 s23, s23, 2")
    b(f"s_lshl_b32 s20, s44, 9\ns_lshl_b32 s21, s45, 18")
    def srdx(a):
        a.e("s_waitcnt lgkmcnt(0)")
        srd(a, 4, 28, 29, 1024*1024*2)
        srd(a, 8, 24, 25, 2048*1024*2)
        srd_off(a, 12, 26, 27, WS_XR, 2048*1024*2)
    def epix(a, acc, nPw, nQw, FR, vt):
        e = a.e
        e(f"v_lshlrev_b32 v{vt+1}, 4, v{vt}")
        e("s_lshl_b32 s47, s45, 4\ns_lshl_b32 s48, s44, 2\ns_add_u32 s47, s47, s48\ns_lshl_b32 s48, s17, 1\ns_add_u32 s47, s47, s48")
        e("s_lshl_b32 s47, s47, 14\ns_lshl_b32 s48, s18, 13\ns_add_u32 s47, s47, s48")
        k = 0
        for mh in range(2):
            for bq in range(nQw):
                e(f"s_add_u32 s48, s47, {mh*16384 + bq*2048}")
                for kb in range(2):
                    m = mh*2 + kb
                    d = FR + 4 * k; k += 1
                    pack4(a, d, acc(2*m, bq), acc(2*m+1, bq))
                    e(f"buffer_store_dwordx4 v[{d}:{d+3}], v{vt+1}, s[12:15], s48 offen offset:{kb*1024} {stf}")
        stamp_end(a, cfg, 1, 0)
    ldsx, vgx = gemm_body(body, "px", Op('tr', 16, 64*2048, 2048), Op('gather', 8, 128, 2048, lay='row'), 3, 0, 16, cfg.get('leadx', 2), srdx, epix, cfg, rmask=rm)
    if xk == 1: lds1 = max(lds1, ldsx)
    vg1 = max(vg1, vgx)
    b("g1_end:\ns_endpgm")
    b(".globl g2_kernel\n.p2align 8\n.type g2_kernel,@function\ng2_kernel:")
    b("s_cmp_ge_u32 s2, 224\ns_cbranch_scc1 g2_end")
    stamp_begin(body, cfg)
    b("s_load_dwordx2 s[24:25], s[0:1], 48\ns_load_dwordx2 s[26:27], s[0:1], 64")
    b("v_lshrrev_b32 v1, 6, v0\ns_and_b32 s42, s2, 7\nv_readfirstlane_b32 s16, v1\ns_lshr_b32 s43, s2, 3")
    b("s_and_b32 s44, s43, 3\ns_lshr_b32 s45, s43, 2")
    b("s_add_u32 s22, s44, s45\ns_and_b32 s22, s22, 3\ns_mov_b32 s23, 0")
    b("s_lshr_b32 s46, s42, 1\ns_lshl_b32 s46, s46, 2\ns_add_u32 s44, s44, s46")
    b("s_and_b32 s46, s42, 1\ns_mul_i32 s46, s46, 7\ns_add_u32 s45, s45, s46")
    b(f"s_lshl_b32 s21, s45, 19\ns_lshl_b32 s20, s44, 18")
    def srd2(a):
        a.e("s_waitcnt lgkmcnt(0)")
        srd_off(a, 8, 26, 27, WS_WV, 1024*3584*2)
        srd_off(a, 4, 26, 27, WS_XR, 2048*1024*2)
        srd(a, 12, 24, 25, 2048*3584*2)
    def epi2(a, acc, nPw, nQw, FR, vt):
        e = a.e
        t = FR + 90
        e(f"v_lshrrev_b32 v{t}, 4, v{vt}\nv_mul_u32_u24 v{t}, {4*7168}, v{t}")
        e(f"v_and_b32 v{vt+1}, 15, v{vt}\nv_lshl_add_u32 v{vt+1}, v{vt+1}, 4, v{t}")
        e(f"s_lshl_b32 s47, s44, 1\ns_add_u32 s47, s47, s17\ns_mul_i32 s47, s47, {64*7168}\ns_lshl_b32 s48, s45, 9\ns_add_u32 s47, s47, s48\ns_lshl_b32 s48, s18, 8\ns_add_u32 s47, s47, s48")
        k = 0
        of = cfg.get('outflags', 'sc1')
        for pb in range(nPw):
            for r in range(4):
                d = FR + 4 * k; k += 1
                e(f"s_add_u32 s48, s47, {(pb*16+r)*7168}")
                for j in range(4):
                    e(f"v_cvt_pk_bf16_f32 v{d+j}, v{acc(pb,2*j)+r}, v{acc(pb,2*j+1)+r}")
                e(f"buffer_store_dwordx4 v[{d}:{d+3}], v{vt+1}, s[12:15], s48 offen {of}")
        stamp_end(a, cfg, 2, 0)
    lds2, vg2 = gemm_body(body, "p2", Op('lin', 8, 16384), Op('lin', 16, 32768, lay='perm8'), 3, 0, 16, cfg.get('lead2', 4), srd2, epi2, cfg)
    b("g2_end:\ns_endpgm")
    only = cfg.get('only', (0, 1, 2))
    if 0 in only: e(f"; @launch kernel=deq_kernel grid=(256,1,1) block=(512,1,1) lds={lds0}")
    if 1 in only: e(f"; @launch kernel=g1_kernel grid=({ng1},1,1) block=(512,1,1) lds={lds1}")
    if 2 in only: e(f"; @launch kernel=g2_kernel grid=(224,1,1) block=(512,1,1) lds={lds2}")
    e('.amdgcn_target "amdgcn-amd-amdhsa--gfx950"')
    a.L += body.L
    e('.section .rodata,"a"\n.p2align 6')
    descriptor(a, "deq_kernel", vg0)
    e(".p2align 6")
    descriptor(a, "g1_kernel", vg1)
    e(".p2align 6")
    descriptor(a, "g2_kernel", vg2)
    return a.text()

if __name__ == "__main__":
    out = sys.argv[1] if len(sys.argv) > 1 else "standalone__weight_only_int_quip__prompt.s"
    cfg = {}
    for kv in sys.argv[2:]:
        k, v = kv.split("=", 1)
        cfg[k] = eval(v)
    open(out, "w").write(build(cfg))
```

```python
import sys

WS_WQ = 0
WS_WV = 8 << 20
WS_XR = 16 << 20
WS_FL = 24 << 20
WS_STAMP = 0xff00000
KN = "standalone__weight_only_int_quip__prompt_kernel"
PX, PQW, PSC, PZE, PU, PV, POUT, PDBG, PWS = 48, 50, 52, 54, 56, 58, 60, 62, 64
NONCE = 66

class A:
    def __init__(s): s.L = []; s.n = 0
    def e(s, t):
        for ln in t.split("\n"): s.L.append(ln)
    def lbl(s, p): s.n += 1; return f"{p}_{s.n}"
    def text(s): return "\n".join(s.L) + "\n"

def srd(a, d, p, nbytes, off=0):
    if off: a.e(f"s_add_u32 s{d}, s{p}, {off}\ns_addc_u32 s{d+1}, s{p+1}, 0")
    else: a.e(f"s_mov_b32 s{d}, s{p}\ns_mov_b32 s{d+1}, s{p+1}")
    a.e(f"s_mov_b32 s{d+2}, {nbytes}\ns_mov_b32 s{d+3}, 0x20000")

class Op:
    def __init__(s, kind, nblk, stepbytes, pitch=0, lay='kg', kmap='nat', flags=''):
        s.lay = lay; s.kmap = kmap; s.kind = kind; s.nblk = nblk; s.stepbytes = stepbytes; s.pitch = pitch
        s.stage = nblk * 2048; s.npieces = nblk * 2; s.R = nblk * 32; s.flags = flags

class Gemm:
    def __init__(g, a, nm, P, Q, S, lag, nsteps, lead, cfg, rmask=3):
        g.a = a; g.nm = nm; g.ops = [P, Q]; g.S = S; g.lag = lag; g.nsteps = nsteps; g.lead = lead; g.cfg = cfg; g.rmask = rmask
        g.base = [0, P.stage * S]
        g.lds = (P.stage + Q.stage) * S
        g.npw = [P.npieces // 4, Q.npieces // 4]
        g.nld = sum(g.npw)
        g.D = S - 1 - lag
        g.first = (S - (nsteps % S)) % S
        g.sstride = [op.stage // 2 if op.lay == 'perm8' else op.stage for op in g.ops]
    def p_setup(g, nv=8):
        e = g.a.e
        e("v_and_b32 v1, 63, v0")
        g.voff = [[], []]
        for o, op in enumerate(g.ops):
            sb = (20, 21)[o]; n = g.npw[o]
            if op.kind == 'lin':
                e(f"s_mul_i32 s19, s17, {n*1024}\ns_add_u32 s19, s19, s{sb}")
                e(f"v_lshl_add_u32 v{nv}, v1, 4, s19")
                g.voff[o].append(nv); nv += 1
                for u in range(1, n):
                    e(f"v_add_u32 v{nv}, {u*1024}, v{g.voff[o][0]}")
                    g.voff[o].append(nv); nv += 1
            elif op.kind == 'tr':
                cpr = op.R // 16; rpp = 1024 // op.R; sh = cpr.bit_length() - 1
                for u in range(n):
                    r = nv; nv += 1; g.voff[o].append(r)
                    e(f"s_mul_i32 s19, s17, {n*rpp}\ns_add_u32 s19, s19, {u*rpp}")
                    e(f"v_lshrrev_b32 v2, {sh}, v1\nv_add_u32 v2, s19, v2")
                    e(f"v_and_b32 v3, {cpr-1}, v1")
                    if op.kmap == 'nat':
                        e("v_and_b32 v4, 3, v2\nv_bfe_u32 v5, v2, 3, 1\nv_lshl_add_u32 v4, v5, 2, v4\nv_lshlrev_b32 v4, 1, v4")
                    else:
                        e("v_and_b32 v4, 7, v2\nv_lshlrev_b32 v4, 1, v4")
                    e("v_xor_b32 v3, v3, v4")
                    e(f"v_mul_u32_u24 v2, {op.pitch}, v2")
                    e(f"v_lshl_add_u32 v2, v3, 4, v2\nv_add_u32 v{r}, s{sb}, v2")
            else:
                e(f"s_mul_i32 s19, s17, {n//2*16}")
                e(f"v_lshrrev_b32 v2, 2, v1\nv_add_u32 v2, s19, v2\nv_mul_u32_u24 v2, {op.pitch}, v2")
                e(f"v_lshrrev_b32 v3, 4, v1\nv_sub_u32 v3, 0, v3\nv_xor_b32 v3, v3, v1\nv_and_b32 v3, 3, v3")
                e(f"v_lshl_add_u32 v2, v3, 4, v2\nv_add_u32 v2, s{sb}, v2")
                for u in range(n):
                    r = nv; nv += 1; g.voff[o].append(r)
                    e(f"v_add_u32 v{r}, {(u>>1)*16*op.pitch + (u&1)*64}, v2")
        for o, op in enumerate(g.ops):
            if op.lay == 'perm8':
                e(f"s_lshr_b32 s19, s17, 1\ns_mul_i32 s{32+o}, s19, {op.stage//2*g.S}\ns_and_b32 s19, s17, 1\ns_mul_i32 s19, s19, {g.npw[o]*1024}\ns_add_u32 s{32+o}, s{32+o}, s19")
            else:
                e(f"s_mul_i32 s{32+o}, s17, {g.npw[o]*1024}")
            if g.base[o]: e(f"s_add_u32 s{32+o}, s{32+o}, {g.base[o]}")
        g.p_rewind()
        return nv
    def p_rewind(g):
        g.a.e(f"s_mov_b32 s34, 0\ns_mov_b32 s35, {g.first}")
    def p_issue(g, which=(1, 0)):
        e = g.a.e; P, Q = g.ops
        e(f"s_and_b32 s36, s34, {g.rmask}\ns_cmp_eq_u32 s36, s22")
        e(f"s_cselect_b32 s36, {g.lead}, 0\ns_add_u32 s36, s36, s34\ns_add_u32 s36, s36, s23")
        e(f"s_sub_u32 s37, s36, {g.nsteps}\ns_cmp_ge_u32 s36, {g.nsteps}\ns_cselect_b32 s36, s37, s36")
        for o in which:
            e(f"s_mul_i32 s{38+o}, s36, {g.ops[o].stepbytes}")
            e(f"s_mul_i32 s{40+o}, s35, {g.sstride[o]}\ns_add_u32 s{40+o}, s{40+o}, s{32+o}")
        for o in which:
            for u in range(g.npw[o]):
                e(f"s_add_u32 m0, s{40+o}, {u*1024}")
                e("s_nop 0")
                e(f"buffer_load_dwordx4 v{g.voff[o][u]}, s[{4+4*o}:{7+4*o}], s{38+o} offen {g.ops[o].flags} lds")
        e("s_add_u32 s34, s34, 1")
        e(f"s_add_u32 s35, s35, 1\ns_cmp_eq_u32 s35, {g.S}\ns_cselect_b32 s35, 0, s35")
    def p_pre(g, o):
        l = g.a.lbl(g.nm + "_pre")
        g.p_rewind()
        g.a.e(f"{l}:")
        g.p_issue((o,))
        g.a.e(f"s_cmp_lt_u32 s34, {g.D}\ns_cbranch_scc1 {l}")
    def p_loop(g, last_op=None):
        e = g.a.e; D = g.D; l = g.a.lbl(g.nm + "_pl")
        if last_op is not None:
            assert D <= 2
            e(f"s_waitcnt vmcnt({g.npw[last_op]*(D-1)})\ns_barrier")
        e(f"{l}:")
        g.p_issue()
        if last_op is None: e(f"s_cmp_lt_u32 s34, {D}\ns_cbranch_scc1 {l}")
        e(f"s_waitcnt vmcnt({g.nld*(D-1)})\ns_barrier")
        e(f"s_cmp_lt_u32 s34, {g.nsteps}\ns_cbranch_scc1 {l}")
        for i in range(D):
            e(f"s_waitcnt vmcnt({g.nld*max(D-2-i,0)})\ns_barrier")
        e("s_barrier")
    def c_body(g, VL, st0=None, st1=None):
        e = g.a.e; cfg = g.cfg; ops = g.ops; S = g.S; P, Q = ops
        nPw, nQw = P.nblk // 2, Q.nblk // 2
        nacc = nPw * nQw * 4
        FR = nacc; setsz = (nPw + nQw) * 4; AD = FR + 2 * setsz
        def acc(p, q): return (p * nQw + q) * 4
        def frag(st, o, b): return FR + st * setsz + (b if o == 0 else nPw + b) * 4
        tt = FR; vt = VL
        addr = {}; nxt = AD
        for o, op in enumerate(ops):
            nw = (nPw, nQw)[o]; sw = (17, 18)[o]
            nwin = (g.sstride[o] * S + 65535) // 65536
            if op.kind == 'tr':
                e(f"v_lshrrev_b32 v{tt+1}, 4, v{vt}")
                e(f"v_bfe_u32 v{tt+2}, v{vt}, 2, 2")
                e(f"v_and_b32 v{tt+3}, 3, v{vt}")
                e(f"v_lshl_add_u32 v{tt+4}, v{tt+1}, {3 if op.kmap == 'nat' else 2}, v{tt+2}")
                e(f"v_mul_u32_u24 v{tt+4}, {op.R}, v{tt+4}")
                e(f"v_and_b32 v{tt+5}, 1, v{tt+1}")
                e(f"v_lshl_add_u32 v{tt+5}, v{tt+5}, 2, v{tt+2}")
                e(f"v_lshlrev_b32 v{tt+5}, 1, v{tt+5}")
                e(f"v_lshl_add_u32 v{tt+4}, v{tt+3}, 3, v{tt+4}")
                e(f"s_mul_i32 s19, s{sw}, {2*nw}")
                for b in range(nw):
                    e(f"s_add_u32 s36, s19, {2*b}")
                    e(f"v_xor_b32 v{tt+6}, s36, v{tt+5}")
                    e(f"v_lshl_add_u32 v{tt+6}, v{tt+6}, 4, v{tt+4}")
                    for w in range(nwin):
                        e(f"v_add_u32 v{nxt}, {g.base[o] + w*65536}, v{tt+6}")
                        addr[(o, b, w)] = nxt; nxt += 1
            elif op.lay == 'perm8':
                assert nw == 8 and nwin == 1
                e(f"s_mul_i32 s19, s{sw}, {op.stage//2*S}\ns_add_u32 s19, s19, {g.base[o]}")
                e(f"v_bfe_u32 v{tt+1}, v{vt}, 1, 3")
                e(f"v_lshl_add_u32 v{tt+2}, v{tt+1}, 11, s19")
                e(f"v_lshrrev_b32 v{tt+3}, 4, v{vt}\nv_lshl_add_u32 v{tt+2}, v{tt+3}, 8, v{tt+2}")
                e(f"v_and_b32 v{tt+3}, 1, v{vt}\nv_lshl_add_u32 v{tt+2}, v{tt+3}, 7, v{tt+2}")
                for b in range(nw):
                    e(f"v_xor_b32 v{tt+3}, {b}, v{tt+1}\nv_lshl_add_u32 v{nxt}, v{tt+3}, 4, v{tt+2}")
                    addr[(o, b, 0)] = nxt; nxt += 1
            else:
                e(f"s_mul_i32 s19, s{sw}, {nw*2048}")
                if op.lay == 'kg':
                    e(f"v_lshl_add_u32 v{tt+6}, v{vt}, 4, s19")
                else:
                    e(f"v_and_b32 v{tt+1}, 15, v{vt}\nv_lshl_add_u32 v{tt+6}, v{tt+1}, 6, s19")
                    e(f"v_lshrrev_b32 v{tt+1}, 2, v{tt+1}\nv_sub_u32 v{tt+1}, 0, v{tt+1}\nv_lshrrev_b32 v{tt+2}, 4, v{vt}\nv_xor_b32 v{tt+1}, v{tt+1}, v{tt+2}\nv_and_b32 v{tt+1}, 3, v{tt+1}")
                    e(f"v_lshl_add_u32 v{tt+6}, v{tt+1}, 4, v{tt+6}")
                for w in range(nwin):
                    e(f"v_add_u32 v{nxt}, {g.base[o] + w*65536}, v{tt+6}")
                    addr[(o, None, w)] = nxt; nxt += 1
        assert nxt <= VL, (nxt, VL)
        for i in range(0, nacc, 2): e(f"v_mov_b64 v[{i}:{i+1}], 0")
        def rd1(slot, kb, st, o, b):
            op = ops[o]; f = frag(st, o, b); out = []
            if op.kind == 'tr':
                for t in range(2):
                    off = slot * op.stage + (kb * 32 + t * (4 if op.kmap == 'nat' else 16)) * op.R
                    w, off = off // 65536, off % 65536
                    out.append((f"ds_read_b64_tr_b16 v[{f+2*t}:{f+2*t+1}], v{addr[(o,b,w)]} offset:{off}", (o, b)))
            elif op.lay == 'perm8':
                out.append((f"ds_read_b128 v[{f}:{f+3}], v{addr[(o,b,0)]} offset:{slot*g.sstride[o] + kb*1024}", (o, b)))
            else:
                off = slot * op.stage + b * 2048 + kb * 1024
                w, off = off // 65536, off % 65536
                out.append((f"ds_read_b128 v[{f}:{f+3}], v{addr[(o,None,w)]} offset:{off}", (o, b)))
            return out
        morder = []
        if nPw >= nQw:
            for p in range(nPw):
                for q in (range(nQw) if p % 2 == 0 else range(nQw - 1, -1, -1)): morder.append((p, q))
        else:
            for q in range(nQw):
                for p in (range(nPw) if q % 2 == 0 else range(nPw - 1, -1, -1)): morder.append((p, q))
        forder = []
        for (p, q) in morder:
            for f in ((0, p), (1, q)):
                if f not in forder: forder.append(f)
        def reads(slot, kb, st):
            out = []
            for (o, b) in forder: out += rd1(slot, kb, st, o, b)
            return out
        R = len(reads(0, 0, 0))
        lastpos = {}
        for i, (_, f) in enumerate(reads(0, 0, 0)): lastpos[f] = i
        def half(st, rd, barrier, tail=""):
            rd = list(rd); k = 0; waited = -1
            for i, (p, q) in enumerate(morder):
                if barrier and i == 0:
                    if g.lag == 0:
                        e("s_waitcnt lgkmcnt(0)"); waited = R
                    e("s_barrier")
                need = max(lastpos[(0, p)], lastpos[(1, q)])
                if need > waited:
                    e(f"s_waitcnt lgkmcnt({min(R - 1 - need + k, 15)})")
                    waited = need
                c = acc(p, q); fp = frag(st, 0, p); fq = frag(st, 1, q)
                e(f"v_mfma_f32_16x16x32_bf16 v[{c}:{c+3}], v[{fp}:{fp+3}], v[{fq}:{fq+3}], v[{c}:{c+3}]")
                if rd:
                    e(rd.pop(0)[0]); k += 1
                if i == len(morder) - 2 and tail: e(tail)
            assert not rd
        e("s_barrier")
        if st0: st0()
        for r, _ in reads(g.first, 0, 0): e(r)
        e(f"s_mov_b32 s19, {(g.nsteps + g.first) // S}")
        if g.first: e(f"s_branch {g.nm}_c{g.first}")
        e(".p2align 6")
        for u in range(S):
            e(f"{g.nm}_c{u}:")
            half(0, reads(u, 1, 1), False)
            half(1, reads((u + 1) % S, 0, 0), True, "s_sub_u32 s19, s19, 1\ns_cmp_lg_u32 s19, 0" if u == S - 1 else "")
        e(f"s_cbranch_scc1 {g.nm}_c0")
        e("s_waitcnt lgkmcnt(0)\ns_barrier")
        if st1: st1()
        e("s_nop 7")
        return acc, nPw, nQw, FR

def pack4(a, dst, c0, c1):
    a.e(f"v_cvt_pk_bf16_f32 v{dst}, v{c0}, v{c0+1}\nv_cvt_pk_bf16_f32 v{dst+1}, v{c0+2}, v{c0+3}")
    a.e(f"v_cvt_pk_bf16_f32 v{dst+2}, v{c1}, v{c1+1}\nv_cvt_pk_bf16_f32 v{dst+3}, v{c1+2}, v{c1+3}")

SPIN = 1 << 15
def build(cfg):
    a = A(); e = a.e
    stf = cfg.get('stflags', 'sc1'); ldf = cfg.get('hflags', 'sc1')
    VL = 250
    def stamp(i):
        if cfg.get('stamp'): e(f"s_memrealtime s[{68+2*i}:{69+2*i}]\ns_waitcnt lgkmcnt(0)")
    def stamp_out(t):
        if not cfg.get('stamp'): return
        e("s_waitcnt vmcnt(0)")
        stamp(7)
        e("s_memtime s[86:87]\ns_getreg_b32 s88, hwreg(HW_REG_XCC_ID)\ns_waitcnt lgkmcnt(0)")
        srd(a, 24, PWS, 0x10000000)
        for i in range(8): e(f"v_mov_b32 v{t+i}, s{68+2*i}")
        e(f"s_sub_u32 s86, s86, s84\nv_mov_b32 v{t+8}, s86\nv_mov_b32 v{t+9}, s88\nv_mov_b32 v{t+10}, s67\nv_mov_b32 v{t+11}, 0")
        e(f"s_lshl_b32 s86, s2, 7\ns_and_b32 s87, s16, 4\ns_lshl_b32 s87, s87, 4\ns_add_u32 s86, s86, s87\ns_add_u32 s86, s86, {WS_STAMP}")
        l = a.lbl("st")
        e(f"s_and_b32 s87, s16, 3\ns_cmp_lg_u32 s87, 0\ns_cbranch_scc1 {l}")
        e("s_mov_b64 exec, 1")
        for i in range(3): e(f"buffer_store_dwordx4 v[{t+4*i}:{t+4*i+3}], v{t+11}, s[24:27], s86 offen offset:{16*i}")
        e(f"{l}:")
    def get_nonce(t, first_loaded=False):
        l = a.lbl("nn"); d = a.lbl("nd")
        e(f"s_mov_b32 s19, {SPIN}")
        if first_loaded:
            e(f"v_readfirstlane_b32 s{NONCE}, v{t+1}\ns_nop 3\ns_cmp_lg_u32 s{NONCE}, 0\ns_cbranch_scc1 {d}")
        e(f"{l}:")
        e(f"buffer_load_dword v{t+1}, v{t}, s[28:31], 0 offen sc1\ns_waitcnt vmcnt(0)")
        e(f"v_readfirstlane_b32 s{NONCE}, v{t+1}\ns_nop 3\ns_cmp_lg_u32 s{NONCE}, 0\ns_cbranch_scc1 {d}")
        e(f"s_sleep 4\ns_sub_u32 s19, s19, 1\ns_cmp_lg_u32 s19, 0\ns_cbranch_scc1 {l}")
        e(f"{d}:")
    def publish(t, soff):
        e("s_waitcnt vmcnt(0)")
        e(f"v_mov_b32 v{t}, 0\nv_mov_b32 v{t+1}, s{NONCE}\ns_mov_b64 exec, 1")
        e(f"buffer_store_dword v{t+1}, v{t}, s[24:27], s{soff} offen sc1")
        e("s_mov_b64 exec, -1")
    def poll(t, soff, nlanes, width):
        l = a.lbl("pl"); d = a.lbl("pd")
        e(f"v_min_u32 v{t}, {nlanes-1}, v1\nv_lshlrev_b32 v{t}, {2 if width == 1 else 4}, v{t}")
        e(f"s_mov_b32 s19, {SPIN}")
        e(f"{l}:")
        if width == 1:
            e(f"buffer_load_dword v{t+2}, v{t}, s[24:27], s{soff} offen sc1\ns_waitcnt vmcnt(0)")
            e(f"v_cmp_ne_u32 vcc, s{NONCE}, v{t+2}")
        else:
            e(f"buffer_load_dwordx4 v[{t+2}:{t+5}], v{t}, s[24:27], s{soff} offen sc1\ns_waitcnt vmcnt(0)")
            e(f"v_xor_b32 v{t+2}, s{NONCE}, v{t+2}\nv_xor_b32 v{t+3}, s{NONCE}, v{t+3}\nv_xor_b32 v{t+4}, s{NONCE}, v{t+4}\nv_xor_b32 v{t+5}, s{NONCE}, v{t+5}")
            e(f"v_or3_b32 v{t+2}, v{t+2}, v{t+3}, v{t+4}\nv_or_b32 v{t+2}, v{t+2}, v{t+5}")
            e(f"v_cmp_ne_u32 vcc, 0, v{t+2}")
        e(f"s_nop 4\ns_cmp_eq_u64 vcc, 0\ns_cbranch_scc1 {d}")
        e(f"s_add_u32 s67, s67, 1\ns_sleep {cfg.get('psleep', 2)}\ns_sub_u32 s19, s19, 1\ns_cmp_lg_u32 s19, 0\ns_cbranch_scc1 {l}")
        e(f"{d}:")
    def dequant(B):
        L, R_, KG, VQ, VS, VO, T = B, B+1, B+2, B+3, B+4, B+5, B+8
        UN = B + 12; QV = B + 44; SV = B + 76; NV = B + 92
        e(f"v_and_b32 v{L}, 63, v0")
        e("s_and_b32 s36, s16, 3\ns_lshl_b32 s37, s44, 2\ns_add_u32 s36, s36, s37")
        e("s_lshr_b32 s37, s16, 2\ns_lshl_b32 s38, s45, 1\ns_add_u32 s37, s37, s38")
        e(f"v_lshrrev_b32 v{R_}, 2, v{L}\nv_lshrrev_b32 v{KG}, 4, v{L}\nv_sub_u32 v{KG}, 0, v{KG}\nv_xor_b32 v{KG}, v{KG}, v{L}\nv_and_b32 v{KG}, 3, v{KG}")
        e(f"v_mul_u32_u24 v{VQ}, 14336, v{R_}\nv_lshl_add_u32 v{VQ}, v{KG}, 4, v{VQ}")
        e(f"s_mul_i32 s38, s36, {32*14336}\ns_lshl_b32 s39, s37, 8\ns_add_u32 s38, s38, s39\ns_add_u32 s39, s38, {16*14336}")
        srd(a, 24, PQW, 1024*3584*4)
        for h in range(2):
            for kb in range(2):
                q = QV + (h*2+kb)*8
                e(f"buffer_load_dwordx4 v[{q}:{q+3}], v{VQ}, s[24:27], s{38+h} offen offset:{kb*128} nt")
                e(f"buffer_load_dwordx4 v[{q+4}:{q+7}], v{VQ}, s[24:27], s{38+h} offen offset:{kb*128+64} nt")
        e(f"v_lshlrev_b32 v{VS}, 3, v{KG}")
        e("s_mul_i32 s40, s36, 7168\ns_lshl_b32 s41, s37, 7\ns_add_u32 s40, s40, s41")
        srd(a, 24, PSC, 32*3584*2)
        srd(a, 28, PZE, 32*3584*2)
        for kb in range(2):
            s_ = SV + kb*8
            for hf in range(2):
                e(f"buffer_load_dwordx2 v[{s_+2*hf}:{s_+2*hf+1}], v{VS}, s[24:27], s40 offen offset:{kb*64+hf*32}")
                e(f"buffer_load_dwordx2 v[{s_+4+2*hf}:{s_+5+2*hf}], v{VS}, s[28:31], s40 offen offset:{kb*64+hf*32}")
        srd(a, 28, PDBG, 256)
        e(f"v_mov_b32 v{NV}, 0")
        e(f"buffer_load_dword v{NV+1}, v{NV}, s[28:31], 0 offen sc1")
        e("s_mul_i32 s40, s44, 56\ns_add_u32 s40, s40, s37\ns_lshl_b32 s40, s40, 14\ns_and_b32 s41, s36, 3\ns_lshl_b32 s41, s41, 12\ns_add_u32 s40, s40, s41")
        e(f"v_lshlrev_b32 v{VO}, 4, v{L}")
        srd(a, 24, PWS, 1024*3584*2, WS_WQ)
        e("s_waitcnt vmcnt(9)")
        for j in range(32): e(f"v_cvt_f32_i32 v{QV+j}, v{QV+j}")
        for jj in range(4):
            for j in range(4): e(f"v_cvt_pk_bf16_f32 v{T+j}, v{QV+8*jj+2*j}, v{QV+8*jj+2*j+1}")
            for j in range(4): e(f"v_lshlrev_b32 v{QV+8*jj+2*j}, 16, v{T+j}\nv_and_b32 v{QV+8*jj+2*j+1}, 0xffff0000, v{T+j}")
        e("s_waitcnt vmcnt(0)")
        for kb in range(2):
            s_ = SV + kb*8; u = UN + kb*16
            for j in range(4):
                e(f"v_lshlrev_b32 v{u+2*j}, 16, v{s_+j}\nv_and_b32 v{u+2*j+1}, 0xffff0000, v{s_+j}")
                e(f"v_lshlrev_b32 v{u+8+2*j}, 16, v{s_+4+j}\nv_and_b32 v{u+8+2*j+1}, 0xffff0000, v{s_+4+j}")
        for h in range(2):
            for kb in range(2):
                q = QV + (h*2+kb)*8; u = UN + kb*16; o = SV + (h*2+kb)*4
                for j in range(8): e(f"v_sub_f32 v{q+j}, v{q+j}, v{u+8+j}")
                for j in range(4): e(f"v_cvt_pk_bf16_f32 v{T+j}, v{q+2*j}, v{q+2*j+1}")
                for j in range(4): e(f"v_lshlrev_b32 v{q+2*j}, 16, v{T+j}\nv_and_b32 v{q+2*j+1}, 0xffff0000, v{T+j}")
                for j in range(8): e(f"v_mul_f32 v{q+j}, v{q+j}, v{u+j}")
                for j in range(4): e(f"v_cvt_pk_bf16_f32 v{o+j}, v{q+2*j}, v{q+2*j+1}")
                e(f"buffer_store_dwordx4 v[{o}:{o+3}], v{VO}, s[24:27], s40 offen offset:{h*2048+kb*1024} sc1")
        get_nonce(NV, True)
        srd(a, 24, PWS, 32768, WS_FL)
        e("s_lshl_b32 s40, s44, 10\ns_lshl_b32 s41, s45, 5\ns_add_u32 s40, s40, s41\ns_lshl_b32 s41, s16, 2\ns_add_u32 s40, s40, s41")
        publish(T, 40)

    G1 = Gemm(a, "p1", Op('lin', 8, 16384, lay='row', flags=ldf), Op('tr', 8, 64*7168, 7168, kmap='split'), 4, 1, 56, cfg.get('lead1', 4), cfg)
    G2 = Gemm(a, "p2", Op('lin', 8, 16384, flags=ldf), Op('lin', 16, 32768, lay='perm8', flags=ldf), 3, 0, 16, cfg.get('lead2', 4), cfg)
    GX = Gemm(a, "px", Op('tr', 16, 64*2048, 2048), Op('gather', 8, 128, 2048, lay='row'), 3, 0, 16, cfg.get('leadx', 2), cfg, rmask=1)
    lds = max(G1.lds, G2.lds, GX.lds)
    e(f"; @launch grid=(256,1,1) block=(512,1,1) lds={lds}")
    e('.amdgcn_target "amdgcn-amd-amdhsa--gfx950"')
    e(f".text\n.globl {KN}\n.p2align 8\n.type {KN},@function\n{KN}:")
    e("s_cmp_ge_u32 s2, 256\ns_cbranch_scc1 L_end")
    e("s_load_dwordx16 s[48:63], s[0:1], 0\ns_load_dwordx2 s[64:65], s[0:1], 64")
    if cfg.get('stamp'):
        e("s_memtime s[84:85]")
        for i in range(1, 8): e(f"s_mov_b64 s[{68+2*i}:{69+2*i}], 0")
    e("s_memrealtime s[68:69]")
    e("v_lshrrev_b32 v1, 6, v0\ns_and_b32 s42, s2, 7\nv_readfirstlane_b32 s16, v1\ns_lshr_b32 s43, s2, 3\ns_mov_b32 s67, 0")
    e("s_waitcnt lgkmcnt(0)")
    e("s_or_b32 s19, s2, s16\ns_cmp_lg_u32 s19, 0\ns_cbranch_scc1 L_non")
    srd(a, 28, PDBG, 256)
    e("s_or_b32 s19, s68, 1\nv_mov_b32 v2, 0\nv_mov_b32 v3, s19\ns_mov_b64 exec, 1")
    e("buffer_store_dword v3, v2, s[28:31], 0 offen sc1\ns_mov_b64 exec, -1")
    e("L_non:")
    e("s_cmp_lt_u32 s2, 32\ns_cbranch_scc1 L_xr")
    e("s_sub_u32 s43, s43, 4")
    e("s_and_b32 s44, s43, 3\ns_lshr_b32 s45, s43, 2")
    e("s_add_u32 s22, s44, s45\ns_and_b32 s22, s22, 3")
    e(f"s_and_b32 s23, s42, 1\ns_mul_i32 s23, s23, {cfg.get('koff1', 28)}")
    e("s_and_b32 s46, s42, 1\ns_lshl_b32 s46, s46, 2\ns_add_u32 s44, s44, s46")
    e("s_lshr_b32 s46, s42, 1\ns_mul_i32 s46, s46, 7\ns_add_u32 s45, s45, s46")
    e(f"s_mul_i32 s20, s44, {56*16384}\ns_lshl_b32 s21, s45, 8")
    srd(a, 4, PWS, 1024*3584*2, WS_WQ)
    srd(a, 8, PV, 3584*3584*2)
    srd(a, 12, PWS, 1024*3584*2, WS_WV)
    def g2_scalars():
        e("s_and_b32 s46, s43, 3\ns_lshr_b32 s47, s43, 2\ns_mov_b32 s23, 0")
        e("s_lshr_b32 s19, s42, 1\ns_lshl_b32 s19, s19, 2\ns_add_u32 s46, s46, s19")
        e("s_and_b32 s19, s42, 1\ns_mul_i32 s19, s19, 7\ns_add_u32 s47, s47, s19")
        e("s_lshl_b32 s21, s47, 19\ns_lshl_b32 s20, s46, 18")
        srd(a, 4, PWS, 2048*1024*2, WS_XR)
        srd(a, 8, PWS, 1024*3584*2, WS_WV)
        srd(a, 12, POUT, 2048*3584*2)
    e("s_cmp_lt_u32 s16, 4\ns_cbranch_scc1 L_gc")
    e("s_sub_u32 s17, s16, 4")
    nv = G1.p_setup()
    G1.p_pre(1)
    dequant(32)
    stamp(1)
    e("s_lshl_b32 s40, s44, 10")
    poll(24, 40, 56, 4)
    stamp(2)
    G1.p_pre(0)
    G1.p_loop(last_op=0)
    stamp(3)
    g2_scalars()
    G2.p_setup()
    e("s_lshl_b32 s40, s46, 7\ns_add_u32 s40, s40, 16384")
    poll(24, 40, 16, 1)
    stamp(4)
    G2.p_pre(0)
    e("s_lshl_b32 s40, s47, 8\ns_add_u32 s40, s40, 8192")
    poll(24, 40, 64, 1)
    stamp(5)
    G2.p_pre(1)
    G2.p_loop(last_op=1)
    stamp_out(32)
    e("s_endpgm")
    e("L_gc:")
    e(f"v_and_b32 v{VL}, 63, v0")
    e("s_lshr_b32 s17, s16, 1\ns_and_b32 s18, s16, 1")
    dequant(32)
    stamp(1)
    acc, nPw, nQw, FR = G1.c_body(VL, lambda: stamp(2), lambda: stamp(3))
    t = FR + 40
    e("s_lshr_b32 s36, s45, 1\ns_lshl_b32 s36, s36, 4\ns_lshl_b32 s37, s44, 1\ns_add_u32 s36, s36, s37\ns_add_u32 s36, s36, s17\ns_lshl_b32 s36, s36, 15")
    e("s_and_b32 s37, s45, 1\ns_lshl_b32 s37, s37, 14\ns_add_u32 s36, s36, s37\ns_lshl_b32 s37, s18, 13\ns_add_u32 s36, s36, s37\ns_add_u32 s37, s36, 4096")
    e(f"s_lshl_b32 s38, s18, 2\nv_xor_b32 v{t+4}, s38, v{VL}")
    for bq in range(nQw): e(f"v_xor_b32 v{t+bq}, {bq}, v{t+4}\nv_lshlrev_b32 v{t+bq}, 4, v{t+bq}")
    k = 0
    for bq in range(nQw):
        for m in range(nPw // 2):
            d = FR + 4 * k; k += 1
            pack4(a, d, acc(2*m, bq), acc(2*m+1, bq))
            e(f"buffer_store_dwordx4 v[{d}:{d+3}], v{t+bq}, s[12:15], s{36+(bq>>1)} offen offset:{m*1024+(bq&1)*2048} sc1")
    e("s_lshr_b32 s40, s45, 1\ns_lshl_b32 s40, s40, 8\ns_and_b32 s41, s45, 1\ns_lshl_b32 s41, s41, 7\ns_add_u32 s40, s40, s41")
    e("s_lshl_b32 s41, s44, 4\ns_add_u32 s40, s40, s41\ns_lshl_b32 s41, s16, 2\ns_add_u32 s40, s40, s41\ns_add_u32 s40, s40, 8192")
    publish(t + 8, 40)
    stamp(4)
    g2_scalars()
    acc, nPw, nQw, FR = G2.c_body(VL, lambda: stamp(5), lambda: stamp(6))
    t = FR + 90
    e(f"v_lshrrev_b32 v{t}, 4, v{VL}\nv_mul_u32_u24 v{t}, {4*7168}, v{t}")
    e(f"v_and_b32 v{t+1}, 15, v{VL}\nv_lshl_add_u32 v{t+1}, v{t+1}, 4, v{t}")
    e(f"s_lshl_b32 s36, s46, 1\ns_add_u32 s36, s36, s17\ns_mul_i32 s36, s36, {64*7168}\ns_lshl_b32 s37, s47, 9\ns_add_u32 s36, s36, s37\ns_lshl_b32 s37, s18, 8\ns_add_u32 s36, s36, s37")
    k = 0
    of = cfg.get('outflags', 'nt')
    for pb in range(nPw):
        for r in range(4):
            d = FR + 4 * k; k += 1
            e(f"s_add_u32 s37, s36, {(pb*16+r)*7168}")
            for j in range(4): e(f"v_cvt_pk_bf16_f32 v{d+j}, v{acc(pb,2*j)+r}, v{acc(pb,2*j+1)+r}")
            e(f"buffer_store_dwordx4 v[{d}:{d+3}], v{t+1}, s[12:15], s37 offen {of}")
    stamp_out(0)
    e("s_endpgm")
    e("L_xr:")
    srd(a, 4, PU, 1024*1024*2)
    srd(a, 8, PX, 2048*1024*2)
    srd(a, 12, PWS, 2048*1024*2, WS_XR)
    e("s_mov_b32 s46, 0")
    def xr_scalars():
        e("s_and_b32 s45, s43, 1\ns_bfe_u32 s44, s43, 0x10001\ns_xor_b32 s22, s44, s45")
        e("s_lshl_b32 s47, s42, 1\ns_add_u32 s45, s45, s47")
        e("s_xor_b32 s47, s46, s42\ns_and_b32 s47, s47, 1\ns_lshl_b32 s47, s47, 1\ns_add_u32 s44, s44, s47")
        e("s_lshr_b32 s23, s42, 1\ns_lshl_b32 s23, s23, 2")
        e("s_lshl_b32 s20, s44, 9\ns_lshl_b32 s21, s45, 18")
    e("s_cmp_lt_u32 s16, 4\ns_cbranch_scc1 L_xc")
    e("s_sub_u32 s17, s16, 4")
    e("L_xp:")
    xr_scalars()
    GX.p_setup()
    GX.p_loop()
    e("s_add_u32 s46, s46, 1\ns_cmp_lt_u32 s46, 2\ns_cbranch_scc1 L_xp")
    stamp_out(32)
    e("s_endpgm")
    e("L_xc:")
    e(f"v_and_b32 v{VL}, 63, v0")
    e("s_lshr_b32 s17, s16, 1\ns_and_b32 s18, s16, 1")
    srd(a, 28, PDBG, 256)
    srd(a, 24, PWS, 32768, WS_FL)
    e("L_xc2:")
    xr_scalars()
    acc, nPw, nQw, FR = GX.c_body(VL, lambda: stamp(2), lambda: stamp(3))
    t = FR + 80
    e(f"v_lshlrev_b32 v{t}, 4, v{VL}")
    e("s_lshl_b32 s36, s45, 4\ns_lshl_b32 s37, s44, 2\ns_add_u32 s36, s36, s37\ns_lshl_b32 s37, s17, 1\ns_add_u32 s36, s36, s37")
    e("s_lshl_b32 s36, s36, 14\ns_lshl_b32 s37, s18, 13\ns_add_u32 s36, s36, s37")
    k = 0
    for mh in range(2):
        for bq in range(nQw):
            e(f"s_add_u32 s37, s36, {mh*16384 + bq*2048}")
            for kb in range(2):
                m = mh*2 + kb
                d = FR + 4 * k; k += 1
                pack4(a, d, acc(2*m, bq), acc(2*m+1, bq))
                e(f"buffer_store_dwordx4 v[{d}:{d+3}], v{t}, s[12:15], s37 offen offset:{kb*1024} sc1")
    e(f"v_mov_b32 v{t+2}, 0")
    get_nonce(t + 2)
    e("s_lshl_b32 s40, s45, 7\ns_lshl_b32 s41, s44, 4\ns_add_u32 s40, s40, s41\ns_lshl_b32 s41, s16, 2\ns_add_u32 s40, s40, s41\ns_add_u32 s40, s40, 16384")
    publish(t + 4, 40)
    if cfg.get('stamp'):
        l = a.lbl("sx")
        e(f"s_cmp_lg_u32 s46, 0\ns_cbranch_scc1 {l}")
        stamp(1)
        e(f"{l}:")
    e("s_add_u32 s46, s46, 1\ns_cmp_lt_u32 s46, 2\ns_cbranch_scc1 L_xc2")
    stamp_out(0)
    e("L_end:\ns_endpgm")
    e('.section .rodata,"a"\n.p2align 6')
    e(f""".amdhsa_kernel {KN}
  .amdhsa_next_free_vgpr 252
  .amdhsa_next_free_sgpr 96
  .amdhsa_accum_offset 252
  .amdhsa_group_segment_fixed_size 0
  .amdhsa_kernarg_size 72
  .amdhsa_user_sgpr_count 2
  .amdhsa_user_sgpr_kernarg_segment_ptr 1
  .amdhsa_system_sgpr_workgroup_id_x 1
  .amdhsa_float_denorm_mode_32 3
.end_amdhsa_kernel""")
    return a.text()

if __name__ == "__main__":
    out = sys.argv[1]
    cfg = {}
    for kv in sys.argv[2:]:
        k, v = kv.split("=", 1)
        cfg[k] = eval(v)
    open(out, "w").write(build(cfg))
```

```python
import sys

WS_WQ = 0
WS_WV = 8 << 20
WS_XR = 16 << 20
WS_FL = 24 << 20
WS_STAMP = 0xff00000
KN = "standalone__weight_only_int_quip__prompt_kernel"
PX, PQW, PSC, PZE, PU, PV, POUT, PDBG, PWS = 48, 50, 52, 54, 56, 58, 60, 62, 64
NONCE = 66

class A:
    def __init__(s): s.L = []; s.n = 0
    def e(s, t):
        for ln in t.split("\n"): s.L.append(ln)
    def lbl(s, p): s.n += 1; return f"{p}_{s.n}"
    def text(s): return "\n".join(s.L) + "\n"

def srd(a, d, p, nbytes, off=0):
    if off: a.e(f"s_add_u32 s{d}, s{p}, {off}\ns_addc_u32 s{d+1}, s{p+1}, 0")
    else: a.e(f"s_mov_b32 s{d}, s{p}\ns_mov_b32 s{d+1}, s{p+1}")
    a.e(f"s_mov_b32 s{d+2}, {nbytes}\ns_mov_b32 s{d+3}, 0x20000")

class Op:
    def __init__(s, kind, nblk, stepbytes, pitch=0, lay='kg', kmap='nat', flags=''):
        s.lay = lay; s.kmap = kmap; s.kind = kind; s.nblk = nblk; s.stepbytes = stepbytes; s.pitch = pitch
        s.stage = nblk * 2048; s.npieces = nblk * 2; s.R = nblk * 32; s.flags = flags

class Gemm:
    def __init__(g, a, nm, P, Q, S, lag, nsteps, lead, cfg, rmask=3):
        g.a = a; g.nm = nm; g.ops = [P, Q]; g.S = S; g.lag = lag; g.nsteps = nsteps; g.lead = lead; g.cfg = cfg; g.rmask = rmask
        g.base = [0, P.stage * S]
        g.lds = (P.stage + Q.stage) * S
        g.npw = [P.npieces // 4, Q.npieces // 4]
        g.nld = sum(g.npw)
        g.D = S - 1 - lag
        g.first = (S - (nsteps % S)) % S
        g.sstride = [op.stage // 2 if op.lay == 'perm8' else op.stage for op in g.ops]
    def p_setup(g, nv=8):
        e = g.a.e
        e("v_and_b32 v1, 63, v0")
        g.voff = [[], []]
        for o, op in enumerate(g.ops):
            sb = (20, 21)[o]; n = g.npw[o]
            if op.kind == 'lin':
                e(f"s_mul_i32 s19, s17, {n*1024}\ns_add_u32 s19, s19, s{sb}")
                e(f"v_lshl_add_u32 v{nv}, v1, 4, s19")
                g.voff[o].append(nv); nv += 1
                for u in range(1, n):
                    e(f"v_add_u32 v{nv}, {u*1024}, v{g.voff[o][0]}")
                    g.voff[o].append(nv); nv += 1
            elif op.kind == 'tr':
                cpr = op.R // 16; rpp = 1024 // op.R; sh = cpr.bit_length() - 1
                for u in range(n):
                    r = nv; nv += 1; g.voff[o].append(r)
                    e(f"s_mul_i32 s19, s17, {n*rpp}\ns_add_u32 s19, s19, {u*rpp}")
                    e(f"v_lshrrev_b32 v2, {sh}, v1\nv_add_u32 v2, s19, v2")
                    e(f"v_and_b32 v3, {cpr-1}, v1")
                    if op.kmap == 'nat':
                        e("v_and_b32 v4, 3, v2\nv_bfe_u32 v5, v2, 3, 1\nv_lshl_add_u32 v4, v5, 2, v4\nv_lshlrev_b32 v4, 1, v4")
                    else:
                        e("v_and_b32 v4, 7, v2\nv_lshlrev_b32 v4, 1, v4")
                    e("v_xor_b32 v3, v3, v4")
                    e(f"v_mul_u32_u24 v2, {op.pitch}, v2")
                    e(f"v_lshl_add_u32 v2, v3, 4, v2\nv_add_u32 v{r}, s{sb}, v2")
            else:
                e(f"s_mul_i32 s19, s17, {n//2*16}")
                e(f"v_lshrrev_b32 v2, 2, v1\nv_add_u32 v2, s19, v2\nv_mul_u32_u24 v2, {op.pitch}, v2")
                e(f"v_lshrrev_b32 v3, 4, v1\nv_sub_u32 v3, 0, v3\nv_xor_b32 v3, v3, v1\nv_and_b32 v3, 3, v3")
                e(f"v_lshl_add_u32 v2, v3, 4, v2\nv_add_u32 v2, s{sb}, v2")
                for u in range(n):
                    r = nv; nv += 1; g.voff[o].append(r)
                    e(f"v_add_u32 v{r}, {(u>>1)*16*op.pitch + (u&1)*64}, v2")
        for o, op in enumerate(g.ops):
            if op.lay == 'perm8':
                e(f"s_lshr_b32 s19, s17, 1\ns_mul_i32 s{32+o}, s19, {op.stage//2*g.S}\ns_and_b32 s19, s17, 1\ns_mul_i32 s19, s19, {g.npw[o]*1024}\ns_add_u32 s{32+o}, s{32+o}, s19")
            else:
                e(f"s_mul_i32 s{32+o}, s17, {g.npw[o]*1024}")
            if g.base[o]: e(f"s_add_u32 s{32+o}, s{32+o}, {g.base[o]}")
        g.p_rewind()
        return nv
    def p_rewind(g):
        g.a.e(f"s_mov_b32 s34, 0\ns_mov_b32 s35, {g.first}")
    def p_issue(g, which=(1, 0)):
        e = g.a.e; P, Q = g.ops
        if getattr(g, 'seq2', False):
            e(f"s_add_u32 s37, s22, {g.nsteps - g.lead}\ns_cmp_gt_u32 s34, s37\ns_cselect_b32 s37, 0, 1\ns_sub_u32 s37, s34, s37")
            e(f"s_and_b32 s36, s37, {g.rmask}\ns_cmp_eq_u32 s36, s22\ns_cselect_b32 s36, {g.lead}, 0\ns_add_u32 s36, s36, s37")
            e(f"s_cmp_eq_u32 s34, 0\ns_cselect_b32 s36, s22, s36\ns_add_u32 s36, s36, s23")
            e(f"s_sub_u32 s37, s36, {g.nsteps}\ns_cmp_ge_u32 s36, {g.nsteps}\ns_cselect_b32 s36, s37, s36")
        else:
            e(f"s_and_b32 s36, s34, {g.rmask}\ns_cmp_eq_u32 s36, s22")
            e(f"s_cselect_b32 s36, {g.lead}, 0\ns_add_u32 s36, s36, s34\ns_add_u32 s36, s36, s23")
            e(f"s_sub_u32 s37, s36, {g.nsteps}\ns_cmp_ge_u32 s36, {g.nsteps}\ns_cselect_b32 s36, s37, s36")
        if getattr(g, 'usexor', False): e("s_xor_b32 s36, s36, s94")
        for o in which:
            e(f"s_mul_i32 s{38+o}, s36, {g.ops[o].stepbytes}")
            e(f"s_mul_i32 s{40+o}, s35, {g.sstride[o]}\ns_add_u32 s{40+o}, s{40+o}, s{32+o}")
        for o in which:
            for u in range(g.npw[o]):
                e(f"s_add_u32 m0, s{40+o}, {u*1024}")
                e("s_nop 0")
                e(f"buffer_load_dwordx4 v{g.voff[o][u]}, s[{4+4*o}:{7+4*o}], s{38+o} offen {g.ops[o].flags} lds")
        e("s_add_u32 s34, s34, 1")
        e(f"s_add_u32 s35, s35, 1\ns_cmp_eq_u32 s35, {g.S}\ns_cselect_b32 s35, 0, s35")
    def p_pre(g, o):
        l = g.a.lbl(g.nm + "_pre")
        g.p_rewind()
        g.a.e(f"{l}:")
        g.p_issue((o,))
        g.a.e(f"s_cmp_lt_u32 s34, {g.D}\ns_cbranch_scc1 {l}")
    def p_loop(g, last_op=None, mid=None):
        e = g.a.e; D = g.D; l = g.a.lbl(g.nm + "_pl")
        if last_op is not None:
            assert D <= 2
            e(f"s_waitcnt vmcnt({g.npw[last_op]*(D-1)})\ns_barrier")
        cur = D
        for (T0, pre, after, extra, post) in (mid or []):
            assert last_op is not None
            if T0 is not None and T0 != cur:
                l0 = g.a.lbl(g.nm + "_pm"); l1 = g.a.lbl(g.nm + "_pn")
                if isinstance(T0, str) or cur is None: e(f"s_cmp_ge_u32 s34, {T0}\ns_cbranch_scc1 {l1}")
                else: assert T0 > cur
                e(f"{l0}:")
                g.p_issue()
                e(f"s_waitcnt vmcnt({g.nld*(D-1)})\ns_barrier")
                e(f"s_cmp_lt_u32 s34, {T0}\ns_cbranch_scc1 {l0}")
                e(f"{l1}:")
            if pre: pre()
            g.p_issue()
            if after: after()
            e(f"s_waitcnt vmcnt({g.nld*(D-1) + extra})")
            if post: post()
            e("s_barrier")
            cur = T0 + 1 if isinstance(T0, int) else (cur + 1 if (T0 is None and cur is not None) else None)
        e(f"{l}:")
        g.p_issue()
        if last_op is None: e(f"s_cmp_lt_u32 s34, {D}\ns_cbranch_scc1 {l}")
        e(f"s_waitcnt vmcnt({g.nld*(D-1)})\ns_barrier")
        e(f"s_cmp_lt_u32 s34, {g.nsteps}\ns_cbranch_scc1 {l}")
        for i in range(D):
            e(f"s_waitcnt vmcnt({g.nld*max(D-2-i,0)})\ns_barrier")
        e("s_barrier")
    def c_body(g, VL, st0=None, st1=None, prebar=0):
        e = g.a.e; cfg = g.cfg; ops = g.ops; S = g.S; P, Q = ops
        nPw, nQw = P.nblk // 2, Q.nblk // 2
        nacc = nPw * nQw * 4
        FR = nacc; setsz = (nPw + nQw) * 4; AD = FR + 2 * setsz
        def acc(p, q): return (p * nQw + q) * 4
        def frag(st, o, b): return FR + st * setsz + (b if o == 0 else nPw + b) * 4
        tt = FR; vt = VL
        addr = {}; nxt = AD
        for o, op in enumerate(ops):
            nw = (nPw, nQw)[o]; sw = (17, 18)[o]
            nwin = (g.sstride[o] * S + 65535) // 65536
            if op.kind == 'tr':
                e(f"v_lshrrev_b32 v{tt+1}, 4, v{vt}")
                e(f"v_bfe_u32 v{tt+2}, v{vt}, 2, 2")
                e(f"v_and_b32 v{tt+3}, 3, v{vt}")
                e(f"v_lshl_add_u32 v{tt+4}, v{tt+1}, {3 if op.kmap == 'nat' else 2}, v{tt+2}")
                e(f"v_mul_u32_u24 v{tt+4}, {op.R}, v{tt+4}")
                e(f"v_and_b32 v{tt+5}, 1, v{tt+1}")
                e(f"v_lshl_add_u32 v{tt+5}, v{tt+5}, 2, v{tt+2}")
                e(f"v_lshlrev_b32 v{tt+5}, 1, v{tt+5}")
                e(f"v_lshl_add_u32 v{tt+4}, v{tt+3}, 3, v{tt+4}")
                e(f"s_mul_i32 s19, s{sw}, {2*nw}")
                for b in range(nw):
                    e(f"s_add_u32 s36, s19, {2*b}")
                    e(f"v_xor_b32 v{tt+6}, s36, v{tt+5}")
                    e(f"v_lshl_add_u32 v{tt+6}, v{tt+6}, 4, v{tt+4}")
                    for w in range(nwin):
                        e(f"v_add_u32 v{nxt}, {g.base[o] + w*65536}, v{tt+6}")
                        addr[(o, b, w)] = nxt; nxt += 1
            elif op.lay == 'perm8':
                assert nw == 8 and nwin == 1
                e(f"s_mul_i32 s19, s{sw}, {op.stage//2*S}\ns_add_u32 s19, s19, {g.base[o]}")
                e(f"v_bfe_u32 v{tt+1}, v{vt}, 1, 3")
                e(f"v_lshl_add_u32 v{tt+2}, v{tt+1}, 11, s19")
                e(f"v_lshrrev_b32 v{tt+3}, 4, v{vt}\nv_lshl_add_u32 v{tt+2}, v{tt+3}, 8, v{tt+2}")
                e(f"v_and_b32 v{tt+3}, 1, v{vt}\nv_lshl_add_u32 v{tt+2}, v{tt+3}, 7, v{tt+2}")
                for b in range(nw):
                    e(f"v_xor_b32 v{tt+3}, {b}, v{tt+1}\nv_lshl_add_u32 v{nxt}, v{tt+3}, 4, v{tt+2}")
                    addr[(o, b, 0)] = nxt; nxt += 1
            else:
                e(f"s_mul_i32 s19, s{sw}, {nw*2048}")
                if op.lay == 'kg':
                    e(f"v_lshl_add_u32 v{tt+6}, v{vt}, 4, s19")
                else:
                    e(f"v_and_b32 v{tt+1}, 15, v{vt}\nv_lshl_add_u32 v{tt+6}, v{tt+1}, 6, s19")
                    e(f"v_lshrrev_b32 v{tt+1}, 2, v{tt+1}\nv_sub_u32 v{tt+1}, 0, v{tt+1}\nv_lshrrev_b32 v{tt+2}, 4, v{vt}\nv_xor_b32 v{tt+1}, v{tt+1}, v{tt+2}\nv_and_b32 v{tt+1}, 3, v{tt+1}")
                    e(f"v_lshl_add_u32 v{tt+6}, v{tt+1}, 4, v{tt+6}")
                for w in range(nwin):
                    e(f"v_add_u32 v{nxt}, {g.base[o] + w*65536}, v{tt+6}")
                    addr[(o, None, w)] = nxt; nxt += 1
        assert nxt <= VL, (nxt, VL)
        for i in range(0, nacc, 2): e(f"v_mov_b64 v[{i}:{i+1}], 0")
        def rd1(slot, kb, st, o, b):
            op = ops[o]; f = frag(st, o, b); out = []
            if op.kind == 'tr':
                for t in range(2):
                    off = slot * op.stage + (kb * 32 + t * (4 if op.kmap == 'nat' else 16)) * op.R
                    w, off = off // 65536, off % 65536
                    out.append((f"ds_read_b64_tr_b16 v[{f+2*t}:{f+2*t+1}], v{addr[(o,b,w)]} offset:{off}", (o, b)))
            elif op.lay == 'perm8':
                out.append((f"ds_read_b128 v[{f}:{f+3}], v{addr[(o,b,0)]} offset:{slot*g.sstride[o] + kb*1024}", (o, b)))
            else:
                off = slot * op.stage + b * 2048 + kb * 1024
                w, off = off // 65536, off % 65536
                out.append((f"ds_read_b128 v[{f}:{f+3}], v{addr[(o,None,w)]} offset:{off}", (o, b)))
            return out
        morder = []
        if nPw >= nQw:
            for p in range(nPw):
                for q in (range(nQw) if p % 2 == 0 else range(nQw - 1, -1, -1)): morder.append((p, q))
        else:
            for q in range(nQw):
                for p in (range(nPw) if q % 2 == 0 else range(nPw - 1, -1, -1)): morder.append((p, q))
        forder = []
        for (p, q) in morder:
            for f in ((0, p), (1, q)):
                if f not in forder: forder.append(f)
        def reads(slot, kb, st):
            out = []
            for (o, b) in forder: out += rd1(slot, kb, st, o, b)
            return out
        R = len(reads(0, 0, 0))
        lastpos = {}
        for i, (_, f) in enumerate(reads(0, 0, 0)): lastpos[f] = i
        def half(st, rd, barrier, tail=""):
            rd = list(rd); k = 0; waited = -1
            for i, (p, q) in enumerate(morder):
                if barrier and i == 0:
                    if g.lag == 0:
                        e("s_waitcnt lgkmcnt(0)"); waited = R
                    e("s_barrier")
                need = max(lastpos[(0, p)], lastpos[(1, q)])
                if need > waited:
                    e(f"s_waitcnt lgkmcnt({min(R - 1 - need + k, 15)})")
                    waited = need
                c = acc(p, q); fp = frag(st, 0, p); fq = frag(st, 1, q)
                e(f"v_mfma_f32_16x16x32_bf16 v[{c}:{c+3}], v[{fp}:{fp+3}], v[{fq}:{fq+3}], v[{c}:{c+3}]")
                if rd:
                    e(rd.pop(0)[0]); k += 1
                if i == len(morder) - 2 and tail: e(tail)
            assert not rd
        for _ in range(prebar): e("s_barrier")
        e("s_barrier")
        if st0: st0()
        for r, _ in reads(g.first, 0, 0): e(r)
        e(f"s_mov_b32 s19, {(g.nsteps + g.first) // S}")
        if g.first: e(f"s_branch {g.nm}_c{g.first}")
        e(".p2align 6")
        for u in range(S):
            e(f"{g.nm}_c{u}:")
            half(0, reads(u, 1, 1), False)
            half(1, reads((u + 1) % S, 0, 0), True, "s_sub_u32 s19, s19, 1\ns_cmp_lg_u32 s19, 0" if u == S - 1 else "")
        e(f"s_cbranch_scc1 {g.nm}_c0")
        e("s_waitcnt lgkmcnt(0)\ns_barrier")
        if st1: st1()
        e("s_nop 7")
        return acc, nPw, nQw, FR

def pack4(a, dst, c0, c1):
    a.e(f"v_cvt_pk_bf16_f32 v{dst}, v{c0}, v{c0+1}\nv_cvt_pk_bf16_f32 v{dst+1}, v{c0+2}, v{c0+3}")
    a.e(f"v_cvt_pk_bf16_f32 v{dst+2}, v{c1}, v{c1+1}\nv_cvt_pk_bf16_f32 v{dst+3}, v{c1+2}, v{c1+3}")

SPIN = 1 << 15
def build(cfg):
    a = A(); e = a.e
    stf = cfg.get('stflags', 'sc1'); ldf = cfg.get('hflags', 'sc1')
    VL = 250
    def stamp(i, dbg=False):
        if (cfg.get('dbgD') or cfg.get('dbgP')) and i in (3, 4, 5, 6) and not dbg: return
        if dbg is True and not cfg.get('dbgD'): return
        if dbg == 'P' and not cfg.get('dbgP'): return
        if cfg.get('stamp'): e(f"s_memrealtime s[{68+2*i}:{69+2*i}]\ns_waitcnt lgkmcnt(0)")
    def stamp_out(t):
        if not cfg.get('stamp'): return
        e("s_waitcnt vmcnt(0)")
        stamp(7)
        e("s_memtime s[86:87]\ns_getreg_b32 s88, hwreg(HW_REG_XCC_ID)\ns_waitcnt lgkmcnt(0)")
        srd(a, 24, PWS, 0x10000000)
        for i in range(8): e(f"v_mov_b32 v{t+i}, s{68+2*i}")
        e(f"s_sub_u32 s86, s86, s84\nv_mov_b32 v{t+8}, s86\nv_mov_b32 v{t+9}, s88\nv_mov_b32 v{t+10}, s67\nv_mov_b32 v{t+11}, 0")
        e(f"s_lshl_b32 s86, s2, 7\ns_and_b32 s87, s16, 4\ns_xor_b32 s87, s87, 4\ns_lshl_b32 s87, s87, 4\ns_add_u32 s86, s86, s87\ns_add_u32 s86, s86, {WS_STAMP}")
        l = a.lbl("st")
        e(f"s_and_b32 s87, s16, 3\ns_cmp_lg_u32 s87, 0\ns_cbranch_scc1 {l}")
        e("s_mov_b64 exec, 1")
        for i in range(3): e(f"buffer_store_dwordx4 v[{t+4*i}:{t+4*i+3}], v{t+11}, s[24:27], s86 offen offset:{16*i}")
        e(f"{l}:")
    def get_nonce(t, first_loaded=False):
        l = a.lbl("nn"); d = a.lbl("nd")
        e(f"s_mov_b32 s19, {SPIN}")
        if first_loaded:
            e(f"v_readfirstlane_b32 s{NONCE}, v{t+1}\ns_nop 3\ns_cmp_lg_u32 s{NONCE}, 0\ns_cbranch_scc1 {d}")
        e(f"{l}:")
        e(f"buffer_load_dword v{t+1}, v{t}, s[28:31], 0 offen sc1\ns_waitcnt vmcnt(0)")
        e(f"v_readfirstlane_b32 s{NONCE}, v{t+1}\ns_nop 3\ns_cmp_lg_u32 s{NONCE}, 0\ns_cbranch_scc1 {d}")
        e(f"s_sleep 4\ns_sub_u32 s19, s19, 1\ns_cmp_lg_u32 s19, 0\ns_cbranch_scc1 {l}")
        e(f"{d}:")
    def publish(t, soff):
        e("s_waitcnt vmcnt(0)")
        e(f"v_mov_b32 v{t}, 0\nv_mov_b32 v{t+1}, s{NONCE}\ns_mov_b64 exec, 1")
        e(f"buffer_store_dword v{t+1}, v{t}, s[24:27], s{soff} offen sc1")
        e("s_mov_b64 exec, -1")
    def poll_addr(t, nlanes, width):
        e(f"v_min_u32 v{t}, {nlanes-1}, v1\nv_lshlrev_b32 v{t}, {2 if width == 1 else 4}, v{t}")
    def poll_load(t, soff, width):
        if width == 1: e(f"buffer_load_dword v{t+2}, v{t}, s[24:27], s{soff} offen sc1")
        else: e(f"buffer_load_dwordx4 v[{t+2}:{t+5}], v{t}, s[24:27], s{soff} offen sc1")
    def poll_check(t, width, done):
        if width == 1:
            e(f"v_cmp_ne_u32 vcc, s{NONCE}, v{t+2}")
        else:
            e(f"v_xor_b32 v{t+2}, s{NONCE}, v{t+2}\nv_xor_b32 v{t+3}, s{NONCE}, v{t+3}\nv_xor_b32 v{t+4}, s{NONCE}, v{t+4}\nv_xor_b32 v{t+5}, s{NONCE}, v{t+5}")
            e(f"v_or3_b32 v{t+2}, v{t+2}, v{t+3}, v{t+4}\nv_or_b32 v{t+2}, v{t+2}, v{t+5}")
            e(f"v_cmp_ne_u32 vcc, 0, v{t+2}")
        e(f"s_nop 4\ns_cmp_eq_u64 vcc, 0\ns_cbranch_scc1 {done}")
    def poll(t, soff, nlanes, width, loaded=False):
        l = a.lbl("pl"); d = a.lbl("pd")
        if loaded: poll_check(t, width, d)
        else: poll_addr(t, nlanes, width)
        e(f"s_mov_b32 s19, {SPIN}")
        e(f"{l}:")
        poll_load(t, soff, width)
        e("s_waitcnt vmcnt(0)")
        poll_check(t, width, d)
        e(f"s_add_u32 s67, s67, 1\ns_sleep {cfg.get('psleep', 2)}\ns_sub_u32 s19, s19, 1\ns_cmp_lg_u32 s19, 0\ns_cbranch_scc1 {l}")
        e(f"{d}:")
    B = 40
    DL, DR, DKG, DVQ, DVS, DVO, DT = B, B+1, B+2, B+3, B+4, B+5, B+8
    DUN = B + 12; DQV = B + 44; DSV = B + 76; DNV = B + 92
    def dq_lanes():
        e(f"v_and_b32 v{DL}, 63, v0")
        e(f"v_lshrrev_b32 v{DR}, 2, v{DL}\nv_lshrrev_b32 v{DKG}, 4, v{DL}\nv_sub_u32 v{DKG}, 0, v{DKG}\nv_xor_b32 v{DKG}, v{DKG}, v{DL}\nv_and_b32 v{DKG}, 3, v{DKG}")
        e(f"v_mul_u32_u24 v{DVQ}, 14336, v{DR}\nv_lshl_add_u32 v{DVQ}, v{DKG}, 4, v{DVQ}")
        e(f"v_lshlrev_b32 v{DVS}, 3, v{DKG}\nv_lshlrev_b32 v{DVO}, 4, v{DL}")
    def dq_scalars(sg, sk32, sq, ss, so):
        e(f"s_mul_i32 s{sq}, s{sg}, {32*14336}\ns_lshl_b32 s19, s{sk32}, 7\ns_add_u32 s{sq}, s{sq}, s19\ns_add_u32 s{sq+1}, s{sq}, {16*14336}")
        e(f"s_mul_i32 s{ss}, s{sg}, 7168\ns_lshl_b32 s19, s{sk32}, 6\ns_add_u32 s{ss}, s{ss}, s19")
        e(f"s_mul_i32 s{so}, s44, 56\ns_lshr_b32 s19, s{sk32}, 1\ns_add_u32 s{so}, s{so}, s19\ns_lshl_b32 s{so}, s{so}, 14")
        e(f"s_and_b32 s19, s{sg}, 3\ns_lshl_b32 s19, s19, 12\ns_add_u32 s{so}, s{so}, s19\ns_and_b32 s19, s{sk32}, 1\ns_lshl_b32 s19, s19, 10\ns_add_u32 s{so}, s{so}, s19")
    def dq_qload(h, kb, rq, sq):
        q = DQV + (h*2+kb)*8
        e(f"buffer_load_dwordx4 v[{q}:{q+3}], v{DVQ}, s[{rq}:{rq+3}], s{sq+h} offen offset:{kb*128} nt")
        e(f"buffer_load_dwordx4 v[{q+4}:{q+7}], v{DVQ}, s[{rq}:{rq+3}], s{sq+h} offen offset:{kb*128+64} nt")
    def dq_sload(kb, rs, rz, ss):
        s_ = DSV + kb*8
        for hf in range(2):
            e(f"buffer_load_dwordx2 v[{s_+2*hf}:{s_+2*hf+1}], v{DVS}, s[{rs}:{rs+3}], s{ss} offen offset:{kb*64+hf*32}")
            e(f"buffer_load_dwordx2 v[{s_+4+2*hf}:{s_+5+2*hf}], v{DVS}, s[{rz}:{rz+3}], s{ss} offen offset:{kb*64+hf*32}")
    def dq_unpack(kb):
        u = DUN + kb*16; s_ = DSV + kb*8
        for j in range(4):
            e(f"v_lshlrev_b32 v{u+2*j}, 16, v{s_+j}\nv_and_b32 v{u+2*j+1}, 0xffff0000, v{s_+j}")
            e(f"v_lshlrev_b32 v{u+8+2*j}, 16, v{s_+4+j}\nv_and_b32 v{u+8+2*j+1}, 0xffff0000, v{s_+4+j}")
    def dq_conv(h, kb, ro, so, pk=True):
        q = DQV + (h*2+kb)*8; u = DUN + kb*16; o = DSV + kb*8 + 4*h; T = DT
        for j in range(8): e(f"v_cvt_f32_i32 v{q+j}, v{q+j}")
        for j in range(4): e(f"v_cvt_pk_bf16_f32 v{T+j}, v{q+2*j}, v{q+2*j+1}")
        for j in range(4): e(f"v_lshlrev_b32 v{q+2*j}, 16, v{T+j}\nv_and_b32 v{q+2*j+1}, 0xffff0000, v{T+j}")
        for j in range(4): e(f"v_pk_add_f32 v[{q+2*j}:{q+2*j+1}], v[{q+2*j}:{q+2*j+1}], v[{u+8+2*j}:{u+9+2*j}] neg_lo:[0,1] neg_hi:[0,1]")
        for j in range(4): e(f"v_cvt_pk_bf16_f32 v{T+j}, v{q+2*j}, v{q+2*j+1}")
        for j in range(4): e(f"v_lshlrev_b32 v{q+2*j}, 16, v{T+j}\nv_and_b32 v{q+2*j+1}, 0xffff0000, v{T+j}")
        for j in range(4): e(f"v_pk_mul_f32 v[{q+2*j}:{q+2*j+1}], v[{q+2*j}:{q+2*j+1}], v[{u+2*j}:{u+2*j+1}]")
        for j in range(4): e(f"v_cvt_pk_bf16_f32 v{o+j}, v{q+2*j}, v{q+2*j+1}")
        e(f"buffer_store_dwordx4 v[{o}:{o+3}], v{DVO}, s[{ro}:{ro+3}], s{so} offen offset:{h*2048+kb*1024} sc1")
    def dequant1():
        dq_lanes()
        e("s_and_b32 s36, s16, 3\ns_lshl_b32 s37, s44, 2\ns_add_u32 s36, s36, s37")
        e("s_add_u32 s37, s23, s45\ns_lshl_b32 s37, s37, 1\ns_lshr_b32 s38, s16, 2\ns_add_u32 s37, s37, s38")
        dq_scalars(36, 37, 38, 40, 41)
        e("s_waitcnt lgkmcnt(0)")
        srd(a, 12, PQW, 1024*3584*4)
        dq_qload(0, 0, 12, 38); dq_qload(1, 0, 12, 38)
        srd(a, 24, PSC, 32*3584*2)
        srd(a, 28, PZE, 32*3584*2)
        dq_sload(0, 24, 28, 40)
        srd(a, 28, PDBG, 256)
        e(f"v_mov_b32 v{DNV}, 0")
        e(f"buffer_load_dword v{DNV+1}, v{DNV}, s[28:31], 0 offen sc1")
        srd(a, 4, PWS, 1024*3584*2, WS_WQ)
        stamp(3, True)
        e("s_waitcnt vmcnt(1)")
        stamp(4, True)
        dq_unpack(0)
        dq_conv(0, 0, 4, 41); dq_conv(1, 0, 4, 41)
        stamp(6, True)
        e("s_waitcnt vmcnt(2)")
        get_nonce(DNV, True)
        srd(a, 24, PWS, 32768, WS_FL)
        e("s_lshl_b32 s40, s44, 10\ns_lshl_b32 s41, s45, 5\ns_add_u32 s40, s40, s41\ns_lshl_b32 s41, s16, 2\ns_add_u32 s40, s40, s41")
        publish(DT, 40)

    G1 = Gemm(a, "p1", Op('lin', 8, 16384, lay='row', flags=ldf), Op('tr', 8, 64*7168, 7168, kmap='split'), 4, 1, 56, cfg.get('lead1', 4), cfg)
    G2 = Gemm(a, "p2", Op('lin', 8, 16384, flags=ldf), Op('lin', 16, 32768, lay='perm8', flags=ldf), 3, 0, 16, cfg.get('lead2', 4), cfg)
    GX = Gemm(a, "px", Op('tr', 16, 64*2048, 2048), Op('gather', 8, 128, 2048, lay='row'), 3, 0, 16, cfg.get('leadx', 2), cfg, rmask=1)
    G1.seq2 = bool(cfg.get('seq2', 7) & 1); G2.seq2 = bool(cfg.get('seq2', 7) & 2); GX.seq2 = bool(cfg.get('seq2', 7) & 4)
    lds = max(G1.lds, G2.lds, GX.lds)
    e(f"; @launch grid=(256,1,1) block=(512,1,1) lds={lds}")
    e('.amdgcn_target "amdgcn-amd-amdhsa--gfx950"')
    e(f".text\n.globl {KN}\n.p2align 8\n.type {KN},@function\n{KN}:")
    e("s_cmp_ge_u32 s2, 256\ns_cbranch_scc1 L_end")
    e("s_load_dwordx16 s[48:63], s[0:1], 0\ns_load_dwordx2 s[64:65], s[0:1], 64")
    if cfg.get('stamp'):
        e("s_memtime s[84:85]")
        for i in range(1, 8): e(f"s_mov_b64 s[{68+2*i}:{69+2*i}], 0")
    e("s_memrealtime s[68:69]")
    e("v_lshrrev_b32 v1, 6, v0\ns_and_b32 s42, s2, 7\nv_readfirstlane_b32 s16, v1\ns_lshr_b32 s43, s2, 3\ns_mov_b32 s67, 0")
    e("s_or_b32 s19, s2, s16\ns_cmp_lg_u32 s19, 0\ns_cbranch_scc1 L_non")
    e("s_waitcnt lgkmcnt(0)")
    srd(a, 28, PDBG, 256)
    e("s_or_b32 s19, s68, 1\nv_mov_b32 v2, 0\nv_mov_b32 v3, s19\ns_mov_b64 exec, 1")
    e("buffer_store_dword v3, v2, s[28:31], 0 offen sc1\ns_mov_b64 exec, -1")
    e("L_non:")
    e("s_cmp_lt_u32 s2, 32\ns_cbranch_scc1 L_xr")
    e("s_sub_u32 s43, s43, 4")
    e("s_and_b32 s44, s43, 3\ns_lshr_b32 s45, s43, 2")
    e("s_add_u32 s22, s44, s45\ns_and_b32 s22, s22, 3")
    e("s_and_b32 s46, s42, 1\ns_lshl_b32 s46, s46, 2\ns_add_u32 s44, s44, s46")
    e("s_lshr_b32 s46, s42, 1\ns_mul_i32 s46, s46, 7\ns_add_u32 s45, s45, s46")
    if cfg.get('kxor', 4):
        G1.usexor = True
        e(f"s_mov_b32 s23, 0\ns_and_b32 s94, s42, 1\ns_mul_i32 s94, s94, {cfg.get('kxor', 4)}")
    else:
        e(f"s_and_b32 s23, s42, 1\ns_mul_i32 s23, s23, {cfg.get('koff1', 28)}")
    dequant1()
    stamp(1)
    e(f"s_mul_i32 s20, s44, {56*16384}\ns_lshl_b32 s21, s45, 8")
    srd(a, 8, PV, 3584*3584*2)
    srd(a, 12, PWS, 1024*3584*2, WS_WV)
    def g2_scalars():
        e("s_and_b32 s46, s43, 3\ns_lshr_b32 s47, s43, 2")
        e("s_lshr_b32 s19, s42, 1\ns_lshl_b32 s19, s19, 2\ns_add_u32 s46, s46, s19")
        e("s_and_b32 s19, s42, 1\ns_mul_i32 s19, s19, 7\ns_add_u32 s47, s47, s19")
        e("s_bfe_u32 s23, s42, 0x10001\ns_lshl_b32 s23, s23, 3")
        e("s_lshl_b32 s21, s47, 19\ns_lshl_b32 s20, s46, 18")
        srd(a, 4, PWS, 2048*1024*2, WS_XR)
        srd(a, 8, PWS, 1024*3584*2, WS_WV)
        srd(a, 12, POUT, 2048*3584*2)
    e("s_cmp_ge_u32 s16, 4\ns_cbranch_scc1 L_gc")
    def poll1(t, soff, nl, w):
        l = a.lbl("p1w")
        e(f"s_cmp_lg_u32 s16, 0\ns_cbranch_scc1 {l}")
        poll(t, soff, nl, w)
        e(f"{l}:\ns_barrier")
    e("s_mov_b32 s17, s16")
    G1.p_setup()
    G1.p_pre(1)
    e("s_lshl_b32 s28, s44, 10\ns_lshl_b32 s29, s44, 9\ns_add_u32 s29, s29, 20480")
    e("s_lshl_b32 s36, s44, 2\ns_add_u32 s36, s36, s16\ns_sub_u32 s37, 28, s23\ns_add_u32 s37, s37, s45\ns_lshl_b32 s37, s37, 1")
    dq_scalars(36, 37, 90, 92, 93)
    e("s_lshl_b32 s30, s45, 4\ns_add_u32 s30, s30, s29\ns_lshl_b32 s19, s16, 2\ns_add_u32 s30, s30, s19")
    poll1(24, 28, 56, 4)
    stamp(2)
    e("s_waitcnt vmcnt(0)")
    G1.p_pre(0)
    Ta = cfg.get('Ta', 3)
    def d2_load():
        srd(a, 12, PSC, 32*3584*2)
        srd(a, 96, PZE, 32*3584*2)
        dq_sload(0, 12, 96, 92); dq_sload(1, 12, 96, 92)
        srd(a, 12, PQW, 1024*3584*4)
        for kb in range(2):
            for h in range(2): dq_qload(h, kb, 12, 90)
    def d2_conv(h, kb):
        def f():
            if h == 0: dq_unpack(kb)
            dq_conv(h, kb, 4, 93)
        return f
    def d2_pub():
        e(f"v_mov_b32 v{DT}, 0\nv_mov_b32 v{DT+1}, s{NONCE}\ns_mov_b64 exec, 1")
        e(f"buffer_store_dword v{DT+1}, v{DT}, s[24:27], s30 offen sc1")
        e("s_mov_b64 exec, -1")
    def pre1():
        poll_addr(24, 28, 4); poll_load(24, 29, 4)
    def post1():
        poll(24, 29, 28, 4, loaded=True)
    if cfg.get('dynTa', 0):
        e(f"s_lshr_b32 s95, s2, {cfg.get('dynsh', 0)}\ns_and_b32 s95, s95, {cfg.get('dynTa', 0) - 1}\ns_add_u32 s95, s95, {Ta}")
        if cfg.get('dynal'):
            e(f"s_add_u32 s19, s22, {(1 - Ta) % 4}\ns_and_b32 s19, s19, 3\ns_and_b32 s95, s2, 1\ns_lshl_b32 s95, s95, 2\ns_add_u32 s95, s95, s19\ns_add_u32 s95, s95, {Ta}")
        mids = [("s95", d2_load, None, 0, None)]
        for n, (h, kb) in enumerate([(0, 0), (1, 0), (0, 1), (1, 1)]):
            mids.append((None, None, d2_conv(h, kb), 1, None))
        mids.append((None, None, None, 0, d2_pub))
    else:
        mids = [(Ta, d2_load, None, 0, None)]
        for n, (h, kb) in enumerate([(0, 0), (1, 0), (0, 1), (1, 1)]):
            mids.append((Ta + 1 + n, None, d2_conv(h, kb), 1, None))
        mids.append((Ta + 5, None, None, 0, d2_pub))
    mids.append((cfg.get('T1', 18), pre1, None, 0, post1))
    if cfg.get('dbgP'):
        for i, T in enumerate(cfg.get('dbgT', (14, 28, 42, 54))):
            hit = [k for k, m in enumerate(mids) if m[0] == T]
            if hit:
                m = mids[hit[0]]
                mids[hit[0]] = (m[0], m[1], m[2], m[3], (lambda i=i, p=m[4]: ((p() if p else None), stamp(3 + i, 'P'))))
            else:
                mids.append((T, None, None, 0, (lambda i=i: stamp(3 + i, 'P'))))
        mids.sort(key=lambda m: m[0])
    G1.p_loop(last_op=0, mid=mids)
    stamp(3)
    g2_scalars()
    G2.p_setup()
    e("s_lshl_b32 s28, s46, 7\ns_add_u32 s28, s28, 16384\ns_lshl_b32 s19, s23, 2\ns_add_u32 s28, s28, s19\ns_xor_b32 s29, s28, 32")
    e("s_lshl_b32 s30, s47, 8\ns_add_u32 s30, s30, 8192\ns_lshl_b32 s19, s23, 4\ns_add_u32 s30, s30, s19\ns_xor_b32 s31, s30, 128")
    e("s_barrier")
    poll1(24, 28, 8, 1)
    stamp(4)
    G2.p_pre(0)
    poll1(24, 30, 32, 1)
    stamp(5)
    e("s_waitcnt vmcnt(0)")
    G2.p_pre(1)
    def pre2():
        poll_addr(24, 8, 1); poll_load(24, 29, 1)
        poll_addr(32, 32, 1); poll_load(32, 31, 1)
    def post2():
        poll(24, 29, 8, 1, loaded=True)
        poll(32, 31, 32, 1, loaded=True)
    G2.p_loop(last_op=1, mid=[(cfg.get('T2', 3), pre2, None, 0, post2)])
    stamp_out(32)
    e("s_endpgm")
    e("L_gc:")
    e(f"v_and_b32 v{VL}, 63, v0")
    e("s_bfe_u32 s17, s16, 0x10001\ns_and_b32 s18, s16, 1")
    if cfg.get('cprio', 2): e(f"s_setprio {cfg.get('cprio', 2)}")
    if cfg.get('vpf', 0):
        e(f"s_lshl_b32 s36, s43, 2\ns_add_u32 s36, s36, s16\ns_sub_u32 s36, s36, 4\ns_lshl_b32 s36, s36, 6\nv_add_u32 v2, s36, v{VL}")
        e(f"s_mov_b32 s37, {(1<<32)//14+1}\ns_movk_i32 s38, 7168")
        e(f"s_add_u32 s39, s23, {cfg.get('vp0', 2)}\ns_mul_i32 s39, s39, {64*7168}\ns_lshr_b32 s40, s42, 1\ns_mul_i32 s40, s40, 1792\ns_add_u32 s39, s39, s40")
        for r in range(cfg.get('vpf', 0)):
            e("v_mul_hi_u32 v3, v2, s37\nv_mul_u32_u24 v4, 14, v3\nv_sub_u32 v4, v2, v4\nv_mul_lo_u32 v3, v3, s38\nv_lshl_add_u32 v3, v4, 7, v3")
            e(f"buffer_load_dword v{VL+1}, v3, s[8:11], s39 offen")
            e("v_add_u32 v2, 7168, v2")
    acc, nPw, nQw, FR = G1.c_body(VL, lambda: stamp(2), lambda: stamp(3), prebar=1)
    t = FR + 40
    e("s_lshr_b32 s36, s45, 1\ns_lshl_b32 s36, s36, 4\ns_lshl_b32 s37, s44, 1\ns_add_u32 s36, s36, s37\ns_add_u32 s36, s36, s17\ns_lshl_b32 s36, s36, 15")
    e("s_and_b32 s37, s45, 1\ns_lshl_b32 s37, s37, 14\ns_add_u32 s36, s36, s37\ns_lshl_b32 s37, s18, 13\ns_add_u32 s36, s36, s37\ns_add_u32 s37, s36, 4096")
    e(f"s_lshl_b32 s38, s18, 2\nv_xor_b32 v{t+4}, s38, v{VL}")
    for bq in range(nQw): e(f"v_xor_b32 v{t+bq}, {bq}, v{t+4}\nv_lshlrev_b32 v{t+bq}, 4, v{t+bq}")
    k = 0
    for bq in range(nQw):
        for m in range(nPw // 2):
            d = FR + 4 * k; k += 1
            pack4(a, d, acc(2*m, bq), acc(2*m+1, bq))
            e(f"buffer_store_dwordx4 v[{d}:{d+3}], v{t+bq}, s[12:15], s{36+(bq>>1)} offen offset:{m*1024+(bq&1)*2048} sc1")
    e("s_barrier")
    e("s_lshr_b32 s40, s45, 1\ns_lshl_b32 s40, s40, 8\ns_and_b32 s41, s45, 1\ns_lshl_b32 s41, s41, 6\ns_add_u32 s40, s40, s41")
    e("s_lshr_b32 s41, s44, 2\ns_lshl_b32 s41, s41, 7\ns_add_u32 s40, s40, s41\ns_and_b32 s41, s44, 3\ns_lshl_b32 s41, s41, 4\ns_add_u32 s40, s40, s41")
    e("s_and_b32 s41, s16, 3\ns_lshl_b32 s41, s41, 2\ns_add_u32 s40, s40, s41\ns_add_u32 s40, s40, 8192")
    publish(t + 8, 40)
    stamp(4)
    g2_scalars()
    acc, nPw, nQw, FR = G2.c_body(VL, lambda: stamp(5), lambda: stamp(6), prebar=2)
    t = FR + 90
    e(f"v_lshrrev_b32 v{t}, 4, v{VL}\nv_mul_u32_u24 v{t}, {4*7168}, v{t}")
    e(f"v_and_b32 v{t+1}, 15, v{VL}\nv_lshl_add_u32 v{t+1}, v{t+1}, 4, v{t}")
    e(f"s_lshl_b32 s36, s46, 1\ns_add_u32 s36, s36, s17\ns_mul_i32 s36, s36, {64*7168}\ns_lshl_b32 s37, s47, 9\ns_add_u32 s36, s36, s37\ns_lshl_b32 s37, s18, 8\ns_add_u32 s36, s36, s37")
    k = 0
    of = cfg.get('outflags', 'nt')
    for pb in range(nPw):
        for r in range(4):
            d = FR + 4 * k; k += 1
            e(f"s_add_u32 s37, s36, {(pb*16+r)*7168}")
            for j in range(4): e(f"v_cvt_pk_bf16_f32 v{d+j}, v{acc(pb,2*j)+r}, v{acc(pb,2*j+1)+r}")
            e(f"buffer_store_dwordx4 v[{d}:{d+3}], v{t+1}, s[12:15], s37 offen {of}")
    stamp_out(0)
    e("s_endpgm")
    e("L_xr:")
    e("s_waitcnt lgkmcnt(0)")
    if cfg.get('spf', 0):
        srd(a, 8, PV, 3584*3584*2)
        e("s_and_b32 s44, s42, 1\ns_lshl_b32 s44, s44, 2\ns_add_u32 s44, s44, s43\ns_lshl_b32 s44, s44, 3\ns_add_u32 s44, s44, s16\ns_lshl_b32 s44, s44, 6")
        e(f"s_lshr_b32 s45, s42, 1\ns_mul_i32 s45, s45, 1792\ns_add_u32 s45, s45, {cfg.get('sp0', 2)*64*7168}")
        e(f"v_and_b32 v1, 63, v0\nv_add_u32 v1, s44, v1\ns_mov_b32 s46, {(1<<32)//14+1}\ns_movk_i32 s47, 7168")
        for r in range(cfg['spf']):
            e("v_mul_hi_u32 v2, v1, s46\nv_mul_u32_u24 v3, 14, v2\nv_sub_u32 v3, v1, v3\nv_mul_lo_u32 v2, v2, s47\nv_lshl_add_u32 v2, v3, 7, v2")
            e(f"buffer_load_dword v{VL+1}, v2, s[8:11], s45 offen\nv_add_u32 v1, 4096, v1")
    srd(a, 4, PU, 1024*1024*2)
    srd(a, 8, PX, 2048*1024*2)
    srd(a, 12, PWS, 2048*1024*2, WS_XR)
    e("s_mov_b32 s46, 0")
    def xr_scalars():
        e("s_and_b32 s45, s43, 1\ns_bfe_u32 s44, s43, 0x10001\ns_xor_b32 s22, s44, s45")
        e("s_lshl_b32 s47, s42, 1\ns_add_u32 s45, s45, s47")
        e("s_lshr_b32 s47, s42, 1\ns_xor_b32 s47, s46, s47\ns_and_b32 s47, s47, 1\ns_lshl_b32 s47, s47, 1\ns_add_u32 s44, s44, s47")
        e("s_and_b32 s23, s42, 1\ns_lshr_b32 s47, s42, 2\ns_lshl_b32 s47, s47, 1\ns_add_u32 s23, s23, s47\ns_lshl_b32 s23, s23, 2")
        e("s_lshl_b32 s20, s44, 9\ns_lshl_b32 s21, s45, 18")
    e("s_cmp_ge_u32 s16, 4\ns_cbranch_scc1 L_xc")
    e("s_mov_b32 s17, s16")
    e("L_xp:")
    xr_scalars()
    GX.p_setup()
    GX.p_loop()
    e("s_add_u32 s46, s46, 1\ns_cmp_lt_u32 s46, 2\ns_cbranch_scc1 L_xp")
    stamp_out(32)
    e("s_endpgm")
    e("L_xc:")
    e(f"v_and_b32 v{VL}, 63, v0")
    e("s_bfe_u32 s17, s16, 0x10001\ns_and_b32 s18, s16, 1")
    srd(a, 28, PDBG, 256)
    srd(a, 24, PWS, 32768, WS_FL)
    e("L_xc2:")
    xr_scalars()
    acc, nPw, nQw, FR = GX.c_body(VL, lambda: stamp(2), lambda: stamp(3))
    t = FR + 80
    e(f"v_lshlrev_b32 v{t}, 4, v{VL}")
    e("s_lshl_b32 s36, s45, 4\ns_lshl_b32 s37, s44, 2\ns_add_u32 s36, s36, s37\ns_lshl_b32 s37, s17, 1\ns_add_u32 s36, s36, s37")
    e("s_lshl_b32 s36, s36, 14\ns_lshl_b32 s37, s18, 13\ns_add_u32 s36, s36, s37")
    k = 0
    for mh in range(2):
        for bq in range(nQw):
            e(f"s_add_u32 s37, s36, {mh*16384 + bq*2048}")
            for kb in range(2):
                m = mh*2 + kb
                d = FR + 4 * k; k += 1
                pack4(a, d, acc(2*m, bq), acc(2*m+1, bq))
                e(f"buffer_store_dwordx4 v[{d}:{d+3}], v{t}, s[12:15], s37 offen offset:{kb*1024} sc1")
    e(f"v_mov_b32 v{t+2}, 0")
    get_nonce(t + 2)
    e("s_lshl_b32 s40, s45, 7\ns_lshl_b32 s41, s44, 4\ns_add_u32 s40, s40, s41\ns_and_b32 s41, s16, 3\ns_lshl_b32 s41, s41, 2\ns_add_u32 s40, s40, s41\ns_add_u32 s40, s40, 16384")
    publish(t + 4, 40)
    if cfg.get('stamp'):
        l = a.lbl("sx")
        e(f"s_cmp_lg_u32 s46, 0\ns_cbranch_scc1 {l}")
        stamp(1)
        e(f"{l}:")
    e("s_add_u32 s46, s46, 1\ns_cmp_lt_u32 s46, 2\ns_cbranch_scc1 L_xc2")
    stamp_out(0)
    e("L_end:\ns_endpgm")
    e('.section .rodata,"a"\n.p2align 6')
    e(f""".amdhsa_kernel {KN}
  .amdhsa_next_free_vgpr 252
  .amdhsa_next_free_sgpr 102
  .amdhsa_accum_offset 252
  .amdhsa_group_segment_fixed_size 0
  .amdhsa_kernarg_size 72
  .amdhsa_user_sgpr_count 2
  .amdhsa_user_sgpr_kernarg_segment_ptr 1
  .amdhsa_system_sgpr_workgroup_id_x 1
  .amdhsa_float_denorm_mode_32 3
.end_amdhsa_kernel""")
    return a.text()

if __name__ == "__main__":
    out = sys.argv[1]
    cfg = {}
    for kv in sys.argv[2:]:
        k, v = kv.split("=", 1)
        cfg[k] = eval(v)
    open(out, "w").write(build(cfg))
```

```python
import sys

WS_WQ = 0
WS_WV = 8 << 20
WS_XR = 16 << 20
WS_FL = 24 << 20
WS_STAMP = 0xff00000
KN = "standalone__weight_only_int_quip__prompt_kernel"
PX, PQW, PSC, PZE, PU, PV, POUT, PDBG, PWS = 48, 50, 52, 54, 56, 58, 60, 62, 64
NONCE = 66

class A:
    def __init__(s): s.L = []; s.n = 0
    def e(s, t):
        for ln in t.split("\n"): s.L.append(ln)
    def lbl(s, p): s.n += 1; return f"{p}_{s.n}"
    def text(s): return "\n".join(s.L) + "\n"

def srd(a, d, p, nbytes, off=0):
    if off: a.e(f"s_add_u32 s{d}, s{p}, {off}\ns_addc_u32 s{d+1}, s{p+1}, 0")
    else: a.e(f"s_mov_b32 s{d}, s{p}\ns_mov_b32 s{d+1}, s{p+1}")
    a.e(f"s_mov_b32 s{d+2}, {nbytes}\ns_mov_b32 s{d+3}, 0x20000")

class Op:
    def __init__(s, kind, nblk, stepbytes, pitch=0, lay='kg', kmap='nat', flags=''):
        s.lay = lay; s.kmap = kmap; s.kind = kind; s.nblk = nblk; s.stepbytes = stepbytes; s.pitch = pitch
        s.stage = nblk * 2048; s.npieces = nblk * 2; s.R = nblk * 32; s.flags = flags

class Gemm:
    def __init__(g, a, nm, P, Q, S, lag, nsteps, lead, cfg, rmask=3):
        g.a = a; g.nm = nm; g.ops = [P, Q]; g.S = S; g.lag = lag; g.nsteps = nsteps; g.lead = lead; g.cfg = cfg; g.rmask = rmask
        g.base = [0, P.stage * S]
        g.lds = (P.stage + Q.stage) * S
        g.npw = [P.npieces // 4, Q.npieces // 4]
        g.nld = sum(g.npw)
        g.D = S - 1 - lag
        g.first = (S - (nsteps % S)) % S
        g.sstride = [op.stage // 2 if op.lay == 'perm8' else op.stage for op in g.ops]
    def p_setup(g, nv=8):
        e = g.a.e
        e("v_and_b32 v1, 63, v0")
        g.voff = [[], []]
        for o, op in enumerate(g.ops):
            sb = (20, 21)[o]; n = g.npw[o]
            if op.kind == 'lin':
                e(f"s_mul_i32 s19, s17, {n*1024}\ns_add_u32 s19, s19, s{sb}")
                e(f"v_lshl_add_u32 v{nv}, v1, 4, s19")
                g.voff[o].append(nv); nv += 1
                for u in range(1, n):
                    e(f"v_add_u32 v{nv}, {u*1024}, v{g.voff[o][0]}")
                    g.voff[o].append(nv); nv += 1
            elif op.kind == 'tr':
                cpr = op.R // 16; rpp = 1024 // op.R; sh = cpr.bit_length() - 1
                for u in range(n):
                    r = nv; nv += 1; g.voff[o].append(r)
                    e(f"s_mul_i32 s19, s17, {n*rpp}\ns_add_u32 s19, s19, {u*rpp}")
                    e(f"v_lshrrev_b32 v2, {sh}, v1\nv_add_u32 v2, s19, v2")
                    e(f"v_and_b32 v3, {cpr-1}, v1")
                    if op.kmap == 'nat':
                        e("v_and_b32 v4, 3, v2\nv_bfe_u32 v5, v2, 3, 1\nv_lshl_add_u32 v4, v5, 2, v4\nv_lshlrev_b32 v4, 1, v4")
                    else:
                        e("v_and_b32 v4, 7, v2\nv_lshlrev_b32 v4, 1, v4")
                    e("v_xor_b32 v3, v3, v4")
                    e(f"v_mul_u32_u24 v2, {op.pitch}, v2")
                    e(f"v_lshl_add_u32 v2, v3, 4, v2\nv_add_u32 v{r}, s{sb}, v2")
            else:
                e(f"s_mul_i32 s19, s17, {n//2*16}")
                e(f"v_lshrrev_b32 v2, 2, v1\nv_add_u32 v2, s19, v2\nv_mul_u32_u24 v2, {op.pitch}, v2")
                e(f"v_lshrrev_b32 v3, 4, v1\nv_sub_u32 v3, 0, v3\nv_xor_b32 v3, v3, v1\nv_and_b32 v3, 3, v3")
                e(f"v_lshl_add_u32 v2, v3, 4, v2\nv_add_u32 v2, s{sb}, v2")
                for u in range(n):
                    r = nv; nv += 1; g.voff[o].append(r)
                    e(f"v_add_u32 v{r}, {(u>>1)*16*op.pitch + (u&1)*64}, v2")
        for o, op in enumerate(g.ops):
            if op.lay == 'perm8':
                e(f"s_lshr_b32 s19, s17, 1\ns_mul_i32 s{32+o}, s19, {op.stage//2*g.S}\ns_and_b32 s19, s17, 1\ns_mul_i32 s19, s19, {g.npw[o]*1024}\ns_add_u32 s{32+o}, s{32+o}, s19")
            else:
                e(f"s_mul_i32 s{32+o}, s17, {g.npw[o]*1024}")
            if g.base[o]: e(f"s_add_u32 s{32+o}, s{32+o}, {g.base[o]}")
        g.p_rewind()
        return nv
    def p_rewind(g):
        g.a.e(f"s_mov_b32 s34, 0\ns_mov_b32 s35, {g.first}")
    def p_issue(g, which=(1, 0)):
        e = g.a.e; P, Q = g.ops
        if getattr(g, 'seq2', False):
            e(f"s_add_u32 s37, s22, {g.nsteps - g.lead}\ns_cmp_gt_u32 s34, s37\ns_cselect_b32 s37, 0, 1\ns_sub_u32 s37, s34, s37")
            e(f"s_and_b32 s36, s37, {g.rmask}\ns_cmp_eq_u32 s36, s22\ns_cselect_b32 s36, {g.lead}, 0\ns_add_u32 s36, s36, s37")
            e(f"s_cmp_eq_u32 s34, 0\ns_cselect_b32 s36, s22, s36\ns_add_u32 s36, s36, s23")
            e(f"s_sub_u32 s37, s36, {g.nsteps}\ns_cmp_ge_u32 s36, {g.nsteps}\ns_cselect_b32 s36, s37, s36")
        else:
            e(f"s_and_b32 s36, s34, {g.rmask}\ns_cmp_eq_u32 s36, s22")
            e(f"s_cselect_b32 s36, {g.lead}, 0\ns_add_u32 s36, s36, s34\ns_add_u32 s36, s36, s23")
            e(f"s_sub_u32 s37, s36, {g.nsteps}\ns_cmp_ge_u32 s36, {g.nsteps}\ns_cselect_b32 s36, s37, s36")
        if getattr(g, 'usexor', False): e("s_xor_b32 s36, s36, s94")
        for o in which:
            e(f"s_mul_i32 s{38+o}, s36, {g.ops[o].stepbytes}")
            e(f"s_mul_i32 s{40+o}, s35, {g.sstride[o]}\ns_add_u32 s{40+o}, s{40+o}, s{32+o}")
        for o in which:
            for u in range(g.npw[o]):
                e(f"s_add_u32 m0, s{40+o}, {u*1024}")
                e("s_nop 0")
                e(f"buffer_load_dwordx4 v{g.voff[o][u]}, s[{4+4*o}:{7+4*o}], s{38+o} offen {g.ops[o].flags} lds")
        e("s_add_u32 s34, s34, 1")
        e(f"s_add_u32 s35, s35, 1\ns_cmp_eq_u32 s35, {g.S}\ns_cselect_b32 s35, 0, s35")
    def p_pre(g, o):
        l = g.a.lbl(g.nm + "_pre")
        g.p_rewind()
        g.a.e(f"{l}:")
        g.p_issue((o,))
        g.a.e(f"s_cmp_lt_u32 s34, {g.D}\ns_cbranch_scc1 {l}")
    def p_loop(g, last_op=None, mid=None):
        e = g.a.e; D = g.D; l = g.a.lbl(g.nm + "_pl")
        if last_op is not None:
            assert D <= 2
            e(f"s_waitcnt vmcnt({g.npw[last_op]*(D-1)})\ns_barrier")
        cur = D
        for (T0, pre, after, extra, post) in (mid or []):
            assert last_op is not None
            if T0 is not None and T0 != cur:
                l0 = g.a.lbl(g.nm + "_pm"); l1 = g.a.lbl(g.nm + "_pn")
                if isinstance(T0, str) or cur is None: e(f"s_cmp_ge_u32 s34, {T0}\ns_cbranch_scc1 {l1}")
                else: assert T0 > cur
                e(f"{l0}:")
                g.p_issue()
                e(f"s_waitcnt vmcnt({g.nld*(D-1)})\ns_barrier")
                e(f"s_cmp_lt_u32 s34, {T0}\ns_cbranch_scc1 {l0}")
                e(f"{l1}:")
            if pre: pre()
            g.p_issue()
            if after: after()
            e(f"s_waitcnt vmcnt({g.nld*(D-1) + extra})")
            if post: post()
            e("s_barrier")
            cur = T0 + 1 if isinstance(T0, int) else (cur + 1 if (T0 is None and cur is not None) else None)
        e(f"{l}:")
        g.p_issue()
        if last_op is None: e(f"s_cmp_lt_u32 s34, {D}\ns_cbranch_scc1 {l}")
        e(f"s_waitcnt vmcnt({g.nld*(D-1)})\ns_barrier")
        e(f"s_cmp_lt_u32 s34, {g.nsteps}\ns_cbranch_scc1 {l}")
        for i in range(D):
            e(f"s_waitcnt vmcnt({g.nld*max(D-2-i,0)})\ns_barrier")
        e("s_barrier")
    def c_body(g, VL, st0=None, st1=None, prebar=0):
        e = g.a.e; cfg = g.cfg; ops = g.ops; S = g.S; P, Q = ops
        nPw, nQw = P.nblk // 2, Q.nblk // 2
        nacc = nPw * nQw * 4
        FR = nacc; setsz = (nPw + nQw) * 4; AD = FR + 2 * setsz
        def acc(p, q): return (p * nQw + q) * 4
        def frag(st, o, b): return FR + st * setsz + (b if o == 0 else nPw + b) * 4
        tt = FR; vt = VL
        addr = {}; nxt = AD
        for o, op in enumerate(ops):
            nw = (nPw, nQw)[o]; sw = (17, 18)[o]
            nwin = (g.sstride[o] * S + 65535) // 65536
            if op.kind == 'tr':
                e(f"v_lshrrev_b32 v{tt+1}, 4, v{vt}")
                e(f"v_bfe_u32 v{tt+2}, v{vt}, 2, 2")
                e(f"v_and_b32 v{tt+3}, 3, v{vt}")
                e(f"v_lshl_add_u32 v{tt+4}, v{tt+1}, {3 if op.kmap == 'nat' else 2}, v{tt+2}")
                e(f"v_mul_u32_u24 v{tt+4}, {op.R}, v{tt+4}")
                e(f"v_and_b32 v{tt+5}, 1, v{tt+1}")
                e(f"v_lshl_add_u32 v{tt+5}, v{tt+5}, 2, v{tt+2}")
                e(f"v_lshlrev_b32 v{tt+5}, 1, v{tt+5}")
                e(f"v_lshl_add_u32 v{tt+4}, v{tt+3}, 3, v{tt+4}")
                e(f"s_mul_i32 s19, s{sw}, {2*nw}")
                for b in range(nw):
                    e(f"s_add_u32 s36, s19, {2*b}")
                    e(f"v_xor_b32 v{tt+6}, s36, v{tt+5}")
                    e(f"v_lshl_add_u32 v{tt+6}, v{tt+6}, 4, v{tt+4}")
                    for w in range(nwin):
                        e(f"v_add_u32 v{nxt}, {g.base[o] + w*65536}, v{tt+6}")
                        addr[(o, b, w)] = nxt; nxt += 1
            elif op.lay == 'perm8':
                assert nw == 8 and nwin == 1
                e(f"s_mul_i32 s19, s{sw}, {op.stage//2*S}\ns_add_u32 s19, s19, {g.base[o]}")
                e(f"v_bfe_u32 v{tt+1}, v{vt}, 1, 3")
                e(f"v_lshl_add_u32 v{tt+2}, v{tt+1}, 11, s19")
                e(f"v_lshrrev_b32 v{tt+3}, 4, v{vt}\nv_lshl_add_u32 v{tt+2}, v{tt+3}, 8, v{tt+2}")
                e(f"v_and_b32 v{tt+3}, 1, v{vt}\nv_lshl_add_u32 v{tt+2}, v{tt+3}, 7, v{tt+2}")
                for b in range(nw):
                    e(f"v_xor_b32 v{tt+3}, {b}, v{tt+1}\nv_lshl_add_u32 v{nxt}, v{tt+3}, 4, v{tt+2}")
                    addr[(o, b, 0)] = nxt; nxt += 1
            else:
                e(f"s_mul_i32 s19, s{sw}, {nw*2048}")
                if op.lay == 'kg':
                    e(f"v_lshl_add_u32 v{tt+6}, v{vt}, 4, s19")
                else:
                    e(f"v_and_b32 v{tt+1}, 15, v{vt}\nv_lshl_add_u32 v{tt+6}, v{tt+1}, 6, s19")
                    e(f"v_lshrrev_b32 v{tt+1}, 2, v{tt+1}\nv_sub_u32 v{tt+1}, 0, v{tt+1}\nv_lshrrev_b32 v{tt+2}, 4, v{vt}\nv_xor_b32 v{tt+1}, v{tt+1}, v{tt+2}\nv_and_b32 v{tt+1}, 3, v{tt+1}")
                    e(f"v_lshl_add_u32 v{tt+6}, v{tt+1}, 4, v{tt+6}")
                for w in range(nwin):
                    e(f"v_add_u32 v{nxt}, {g.base[o] + w*65536}, v{tt+6}")
                    addr[(o, None, w)] = nxt; nxt += 1
        assert nxt <= VL, (nxt, VL)
        for i in range(0, nacc, 2): e(f"v_mov_b64 v[{i}:{i+1}], 0")
        def rd1(slot, kb, st, o, b):
            op = ops[o]; f = frag(st, o, b); out = []
            if op.kind == 'tr':
                for t in range(2):
                    off = slot * op.stage + {'nat': kb*32 + t*4, 'split': kb*32 + t*16, 'split64': kb*16 + t*32}[op.kmap] * op.R
                    w, off = off // 65536, off % 65536
                    out.append((f"ds_read_b64_tr_b16 v[{f+2*t}:{f+2*t+1}], v{addr[(o,b,w)]} offset:{off}", (o, b)))
            elif op.lay == 'perm8':
                out.append((f"ds_read_b128 v[{f}:{f+3}], v{addr[(o,b,0)]} offset:{slot*g.sstride[o] + kb*1024}", (o, b)))
            else:
                off = slot * op.stage + b * 2048 + kb * 1024
                w, off = off // 65536, off % 65536
                out.append((f"ds_read_b128 v[{f}:{f+3}], v{addr[(o,None,w)]} offset:{off}", (o, b)))
            return out
        morder = []
        if nPw >= nQw:
            for p in range(nPw):
                for q in (range(nQw) if p % 2 == 0 else range(nQw - 1, -1, -1)): morder.append((p, q))
        else:
            for q in range(nQw):
                for p in (range(nPw) if q % 2 == 0 else range(nPw - 1, -1, -1)): morder.append((p, q))
        forder = []
        for (p, q) in morder:
            for f in ((0, p), (1, q)):
                if f not in forder: forder.append(f)
        def reads(slot, kb, st):
            out = []
            for (o, b) in forder: out += rd1(slot, kb, st, o, b)
            return out
        R = len(reads(0, 0, 0))
        lastpos = {}
        for i, (_, f) in enumerate(reads(0, 0, 0)): lastpos[f] = i
        def half(st, rd, barrier, tail=""):
            rd = list(rd); k = 0; waited = -1
            for i, (p, q) in enumerate(morder):
                if barrier and i == 0:
                    if g.lag == 0:
                        e("s_waitcnt lgkmcnt(0)"); waited = R
                    e("s_barrier")
                need = max(lastpos[(0, p)], lastpos[(1, q)])
                if need > waited:
                    e(f"s_waitcnt lgkmcnt({min(R - 1 - need + k, 15)})")
                    waited = need
                c = acc(p, q); fp = frag(st, 0, p); fq = frag(st, 1, q)
                e(f"v_mfma_f32_16x16x32_bf16 v[{c}:{c+3}], v[{fp}:{fp+3}], v[{fq}:{fq+3}], v[{c}:{c+3}]")
                if rd:
                    e(rd.pop(0)[0]); k += 1
                if i == len(morder) - 2 and tail: e(tail)
            assert not rd
        for _ in range(prebar): e("s_barrier")
        e("s_barrier")
        if st0: st0()
        for r, _ in reads(g.first, 0, 0): e(r)
        e(f"s_mov_b32 s19, {(g.nsteps + g.first) // S}")
        if g.first: e(f"s_branch {g.nm}_c{g.first}")
        e(".p2align 6")
        for u in range(S):
            e(f"{g.nm}_c{u}:")
            half(0, reads(u, 1, 1), False)
            half(1, reads((u + 1) % S, 0, 0), True, "s_sub_u32 s19, s19, 1\ns_cmp_lg_u32 s19, 0" if u == S - 1 else "")
        e(f"s_cbranch_scc1 {g.nm}_c0")
        e("s_waitcnt lgkmcnt(0)\ns_barrier")
        if st1: st1()
        e("s_nop 7")
        return acc, nPw, nQw, FR

def pack4(a, dst, c0, c1):
    a.e(f"v_cvt_pk_bf16_f32 v{dst}, v{c0}, v{c0+1}\nv_cvt_pk_bf16_f32 v{dst+1}, v{c0+2}, v{c0+3}")
    a.e(f"v_cvt_pk_bf16_f32 v{dst+2}, v{c1}, v{c1+1}\nv_cvt_pk_bf16_f32 v{dst+3}, v{c1+2}, v{c1+3}")

SPIN = 1 << 15
def build(cfg):
    a = A(); e = a.e
    stf = cfg.get('stflags', 'sc1'); ldf = cfg.get('hflags', 'sc1')
    VL = 250
    def stamp(i, dbg=False):
        if (cfg.get('dbgD') or cfg.get('dbgP')) and i in (3, 4, 5, 6) and not dbg: return
        if dbg is True and not cfg.get('dbgD'): return
        if dbg == 'P' and not cfg.get('dbgP'): return
        if cfg.get('stamp'): e(f"s_memrealtime s[{68+2*i}:{69+2*i}]\ns_waitcnt lgkmcnt(0)")
    def stamp_out(t):
        if not cfg.get('stamp'): return
        e("s_waitcnt vmcnt(0)")
        stamp(7)
        e("s_memtime s[86:87]\ns_getreg_b32 s88, hwreg(HW_REG_XCC_ID)\ns_waitcnt lgkmcnt(0)")
        srd(a, 24, PWS, 0x10000000)
        for i in range(8): e(f"v_mov_b32 v{t+i}, s{68+2*i}")
        e(f"s_sub_u32 s86, s86, s84\nv_mov_b32 v{t+8}, s86\nv_mov_b32 v{t+9}, s88\nv_mov_b32 v{t+10}, s67\nv_mov_b32 v{t+11}, 0")
        e(f"s_lshl_b32 s86, s2, 7\ns_and_b32 s87, s16, 4\ns_xor_b32 s87, s87, 4\ns_lshl_b32 s87, s87, 4\ns_add_u32 s86, s86, s87\ns_add_u32 s86, s86, {WS_STAMP}")
        l = a.lbl("st")
        e(f"s_and_b32 s87, s16, 3\ns_cmp_lg_u32 s87, 0\ns_cbranch_scc1 {l}")
        e("s_mov_b64 exec, 1")
        for i in range(3): e(f"buffer_store_dwordx4 v[{t+4*i}:{t+4*i+3}], v{t+11}, s[24:27], s86 offen offset:{16*i}")
        e(f"{l}:")
    def get_nonce(t, first_loaded=False):
        l = a.lbl("nn"); d = a.lbl("nd")
        e(f"s_mov_b32 s19, {SPIN}")
        if first_loaded:
            e(f"v_readfirstlane_b32 s{NONCE}, v{t+1}\ns_nop 3\ns_cmp_lg_u32 s{NONCE}, 0\ns_cbranch_scc1 {d}")
        e(f"{l}:")
        e(f"buffer_load_dword v{t+1}, v{t}, s[28:31], 0 offen sc1\ns_waitcnt vmcnt(0)")
        e(f"v_readfirstlane_b32 s{NONCE}, v{t+1}\ns_nop 3\ns_cmp_lg_u32 s{NONCE}, 0\ns_cbranch_scc1 {d}")
        e(f"s_sleep 4\ns_sub_u32 s19, s19, 1\ns_cmp_lg_u32 s19, 0\ns_cbranch_scc1 {l}")
        e(f"{d}:")
    def publish(t, soff, wait=True):
        if wait: e("s_waitcnt vmcnt(0)")
        e(f"v_mov_b32 v{t}, 0\nv_mov_b32 v{t+1}, s{NONCE}\ns_mov_b64 exec, 1")
        e(f"buffer_store_dword v{t+1}, v{t}, s[24:27], s{soff} offen sc1")
        e("s_mov_b64 exec, -1")
    def poll_addr(t, nlanes, width):
        e(f"v_min_u32 v{t}, {nlanes-1}, v1\nv_lshlrev_b32 v{t}, {2 if width == 1 else 4}, v{t}")
    def poll_load(t, soff, width):
        if width == 1: e(f"buffer_load_dword v{t+2}, v{t}, s[24:27], s{soff} offen sc1")
        else: e(f"buffer_load_dwordx4 v[{t+2}:{t+5}], v{t}, s[24:27], s{soff} offen sc1")
    def poll_check(t, width, done):
        if width == 1:
            e(f"v_cmp_ne_u32 vcc, s{NONCE}, v{t+2}")
        else:
            e(f"v_xor_b32 v{t+2}, s{NONCE}, v{t+2}\nv_xor_b32 v{t+3}, s{NONCE}, v{t+3}\nv_xor_b32 v{t+4}, s{NONCE}, v{t+4}\nv_xor_b32 v{t+5}, s{NONCE}, v{t+5}")
            e(f"v_or3_b32 v{t+2}, v{t+2}, v{t+3}, v{t+4}\nv_or_b32 v{t+2}, v{t+2}, v{t+5}")
            e(f"v_cmp_ne_u32 vcc, 0, v{t+2}")
        e(f"s_nop 4\ns_cmp_eq_u64 vcc, 0\ns_cbranch_scc1 {done}")
    def poll(t, soff, nlanes, width, loaded=False):
        l = a.lbl("pl"); d = a.lbl("pd")
        if loaded: poll_check(t, width, d)
        else: poll_addr(t, nlanes, width)
        e(f"s_mov_b32 s19, {SPIN}")
        e(f"{l}:")
        poll_load(t, soff, width)
        e("s_waitcnt vmcnt(0)")
        poll_check(t, width, d)
        e(f"s_add_u32 s67, s67, 1\ns_sleep {cfg.get('psleep', 2)}\ns_sub_u32 s19, s19, 1\ns_cmp_lg_u32 s19, 0\ns_cbranch_scc1 {l}")
        e(f"{d}:")
    B = 40
    DL, DR, DKG, DVQ, DVS, DVO, DVQ2, DT = B, B+1, B+2, B+3, B+4, B+5, B+6, B+8
    DUN = B + 12; DQV = B + 44; DSV = B + 76; DNV = B + 92
    def dq_lanes():
        e(f"v_and_b32 v{DL}, 63, v0")
        e(f"v_lshrrev_b32 v{DKG}, 4, v{DL}\nv_bfe_u32 v{DR}, v{DL}, 3, 1\nv_lshl_add_u32 v{DR}, v{DKG}, 2, v{DR}")
        e(f"v_sub_u32 v{DKG}, 0, v{DKG}\nv_and_b32 v{DKG}, 3, v{DKG}\nv_xor_b32 v{DKG}, v{DKG}, v{DL}\nv_and_b32 v{DKG}, 7, v{DKG}")
        e(f"v_mul_u32_u24 v{DVQ}, 14336, v{DR}\nv_lshl_add_u32 v{DVQ}, v{DKG}, 4, v{DVQ}\nv_add_u32 v{DVQ2}, {2*14336}, v{DVQ}")
        e(f"v_lshlrev_b32 v{DVS}, 3, v{DKG}")
        e(f"v_bfe_u32 v{DVO}, v{DL}, 2, 1\nv_lshlrev_b32 v{DVO}, 10, v{DVO}\nv_lshl_add_u32 v{DVO}, v{DR}, 6, v{DVO}\nv_and_b32 v{DT}, 3, v{DL}\nv_lshl_add_u32 v{DVO}, v{DT}, 4, v{DVO}")
    def dq_scalars(sg, sks, sq, ss, so, sh=None):
        e(f"s_mul_i32 s{sq}, s{sg}, {32*14336}\ns_lshl_b32 s19, s{sks}, 8\ns_add_u32 s{sq}, s{sq}, s19")
        if sh is None: e(f"s_add_u32 s{sq+1}, s{sq}, {16*14336}")
        else: e(f"s_mul_i32 s19, s{sh}, {16*14336}\ns_add_u32 s{sq}, s{sq}, s19")
        e(f"s_mul_i32 s{ss}, s{sg}, 7168\ns_lshl_b32 s19, s{sks}, 7\ns_add_u32 s{ss}, s{ss}, s19")
        e(f"s_mul_i32 s{so}, s44, 56\ns_add_u32 s{so}, s{so}, s{sks}\ns_lshl_b32 s{so}, s{so}, 14")
        e(f"s_and_b32 s19, s{sg}, 3\ns_lshl_b32 s19, s19, 12\ns_add_u32 s{so}, s{so}, s19")
        if sh is not None: e(f"s_lshl_b32 s19, s{sh}, 11\ns_add_u32 s{so}, s{so}, s19")
    def dq_qload(h, ap, rq, sq):
        q = DQV + (h*2+ap)*8; v = DVQ2 if ap else DVQ
        e(f"buffer_load_dwordx4 v[{q}:{q+3}], v{v}, s[{rq}:{rq+3}], s{sq+h} offen nt")
        e(f"buffer_load_dwordx4 v[{q+4}:{q+7}], v{v}, s[{rq}:{rq+3}], s{sq+h} offen offset:128 nt")
    def dq_sload(rs, rz, ss):
        s_ = DSV
        for hf in range(2):
            e(f"buffer_load_dwordx2 v[{s_+2*hf}:{s_+2*hf+1}], v{DVS}, s[{rs}:{rs+3}], s{ss} offen offset:{hf*64}")
            e(f"buffer_load_dwordx2 v[{s_+4+2*hf}:{s_+5+2*hf}], v{DVS}, s[{rz}:{rz+3}], s{ss} offen offset:{hf*64}")
    def dq_unpack():
        u = DUN; s_ = DSV
        for j in range(4):
            e(f"v_lshlrev_b32 v{u+2*j}, 16, v{s_+j}\nv_and_b32 v{u+2*j+1}, 0xffff0000, v{s_+j}")
            e(f"v_lshlrev_b32 v{u+8+2*j}, 16, v{s_+4+j}\nv_and_b32 v{u+8+2*j+1}, 0xffff0000, v{s_+4+j}")
    def dq_conv1(h, ap):
        q = DQV + (h*2+ap)*8; T = DT
        for j in range(8): e(f"v_cvt_f32_i32 v{q+j}, v{q+j}")
        for j in range(4): e(f"v_cvt_pk_bf16_f32 v{T+j}, v{q+2*j}, v{q+2*j+1}")
        for j in range(4): e(f"v_lshlrev_b32 v{q+2*j}, 16, v{T+j}\nv_and_b32 v{q+2*j+1}, 0xffff0000, v{T+j}")
    def dq_conv2(h, ap, ro, so):
        q = DQV + (h*2+ap)*8; u = DUN; o = DUN + 16 + (h*2+ap)*4; T = DT
        for j in range(4): e(f"v_pk_add_f32 v[{q+2*j}:{q+2*j+1}], v[{q+2*j}:{q+2*j+1}], v[{u+8+2*j}:{u+9+2*j}] neg_lo:[0,1] neg_hi:[0,1]")
        for j in range(4): e(f"v_cvt_pk_bf16_f32 v{T+j}, v{q+2*j}, v{q+2*j+1}")
        for j in range(4): e(f"v_lshlrev_b32 v{q+2*j}, 16, v{T+j}\nv_and_b32 v{q+2*j+1}, 0xffff0000, v{T+j}")
        for j in range(4): e(f"v_pk_mul_f32 v[{q+2*j}:{q+2*j+1}], v[{q+2*j}:{q+2*j+1}], v[{u+2*j}:{u+2*j+1}]")
        for j in range(4): e(f"v_cvt_pk_bf16_f32 v{o+j}, v{q+2*j}, v{q+2*j+1}")
        e(f"buffer_store_dwordx4 v[{o}:{o+3}], v{DVO}, s[{ro}:{ro+3}], s{so} offen offset:{h*2048+ap*128} sc1")
    def dq_conv(h, ap, ro, so):
        dq_conv1(h, ap); dq_conv2(h, ap, ro, so)
    def dequant1():
        dq_lanes()
        e("s_and_b32 s36, s16, 3\ns_lshl_b32 s37, s44, 2\ns_add_u32 s36, s36, s37")
        e("s_add_u32 s37, s23, s45\ns_lshr_b32 s39, s16, 2")
        dq_scalars(36, 37, 38, 40, 41, sh=39)
        e("s_waitcnt lgkmcnt(0)")
        srd(a, 12, PQW, 1024*3584*4)
        dq_qload(0, 0, 12, 38); dq_qload(0, 1, 12, 38)
        srd(a, 24, PSC, 32*3584*2)
        srd(a, 28, PZE, 32*3584*2)
        dq_sload(24, 28, 40)
        srd(a, 28, PDBG, 256)
        e(f"v_mov_b32 v{DNV}, 0")
        e(f"buffer_load_dword v{DNV+1}, v{DNV}, s[28:31], 0 offen sc1")
        srd(a, 4, PWS, 1024*3584*2, WS_WQ)
        stamp(3, True)
        if cfg.get('vearly', 2):
            e(f"s_mul_i32 s20, s44, {56*16384}\ns_lshl_b32 s21, s45, 8\ns_mov_b32 s47, s41")
            srd(a, 8, PV, 3584*3584*2)
            e("s_and_b32 s17, s16, 3")
            G1.p_setup()
        e("s_waitcnt vmcnt(7)")
        dq_conv1(0, 0)
        e("s_waitcnt vmcnt(5)")
        dq_conv1(0, 1)
        e("s_waitcnt vmcnt(1)")
        stamp(4, True)
        dq_unpack()
        dq_conv2(0, 0, 4, 41); dq_conv2(0, 1, 4, 41)
        stamp(6, True)
        e("s_waitcnt vmcnt(2)")
        get_nonce(DNV, True)
        srd(a, 24, PWS, 32768, WS_FL)
        e("s_lshl_b32 s46, s44, 10\ns_lshl_b32 s41, s45, 5\ns_add_u32 s46, s46, s41\ns_lshl_b32 s41, s16, 2\ns_add_u32 s46, s46, s41")
        if cfg.get('vearly', 2) >= 2:
            publish(DT, 46)
            if cfg.get('vearly', 2) == 2: e("s_barrier")
        elif cfg.get('vearly', 2):
            e("s_cmp_ge_u32 s16, 4\ns_cbranch_scc1 L_ve2")
            G1.p_pre(1)
            e(f"s_waitcnt vmcnt({G1.D * G1.npw[1]})")
            e("s_branch L_ve3\nL_ve2:\ns_waitcnt vmcnt(0)\nL_ve3:")
            publish(DT, 46, wait=False)
        else:
            publish(DT, 46)

    def code_pf(vt, wave_sgpr):
        l = a.lbl("cp")
        e(f"s_getpc_b64 s[38:39]\n{l}:\ns_sub_u32 s38, s38, {l}-{KN}\ns_subb_u32 s39, s39, 0")
        e(f"s_lshl_b32 s19, s{wave_sgpr}, 13\nv_mbcnt_lo_u32_b32 v{vt}, -1, 0\nv_mbcnt_hi_u32_b32 v{vt}, -1, v{vt}\nv_lshl_add_u32 v{vt}, v{vt}, 7, s19")
        e(f"v_min_u32 v{vt}, L_end-{KN}, v{vt}")
        e(f"global_load_dword v{VL+1}, v{vt}, s[38:39]")
    G1 = Gemm(a, "p1", Op('lin', 8, 16384, lay='row', flags=ldf), Op('tr', 8, 64*7168, 7168, kmap='split64'), 4, 1, 56, cfg.get('lead1', 4), cfg)
    G2 = Gemm(a, "p2", Op('lin', 8, 16384, flags=ldf), Op('lin', 16, 32768, lay='perm8', flags=ldf), 3, 0, 16, cfg.get('lead2', 4), cfg)
    GX = Gemm(a, "px", Op('tr', 16, 64*2048, 2048), Op('gather', 8, 128, 2048, lay='row'), 3, 0, 16, cfg.get('leadx', 2), cfg, rmask=1)
    G1.seq2 = bool(cfg.get('seq2', 7) & 1); G2.seq2 = bool(cfg.get('seq2', 7) & 2); GX.seq2 = bool(cfg.get('seq2', 7) & 4)
    lds = max(G1.lds, G2.lds, GX.lds)
    e(f"; @launch grid=(256,1,1) block=(512,1,1) lds={lds}")
    e('.amdgcn_target "amdgcn-amd-amdhsa--gfx950"')
    e(f".text\n.globl {KN}\n.p2align 8\n.type {KN},@function\n{KN}:")
    e("s_cmp_ge_u32 s2, 256\ns_cbranch_scc1 L_end")
    e("s_load_dwordx16 s[48:63], s[0:1], 0\ns_load_dwordx2 s[64:65], s[0:1], 64")
    if cfg.get('stamp'):
        e("s_memtime s[84:85]")
        for i in range(1, 8): e(f"s_mov_b64 s[{68+2*i}:{69+2*i}], 0")
    e("s_memrealtime s[68:69]")
    e("v_lshrrev_b32 v1, 6, v0\ns_and_b32 s42, s2, 7\nv_readfirstlane_b32 s16, v1\ns_lshr_b32 s43, s2, 3\ns_mov_b32 s67, 0")
    e("s_or_b32 s19, s2, s16\ns_cmp_lg_u32 s19, 0\ns_cbranch_scc1 L_non")
    e("s_waitcnt lgkmcnt(0)")
    srd(a, 28, PDBG, 256)
    e("s_or_b32 s19, s68, 1\nv_mov_b32 v2, 0\nv_mov_b32 v3, s19\ns_mov_b64 exec, 1")
    e("buffer_store_dword v3, v2, s[28:31], 0 offen sc1\ns_mov_b64 exec, -1")
    e("L_non:")
    e("s_cmp_ge_u32 s2, 32\ns_cbranch_scc1 L_g")
    if cfg.get('cpf', 3) & 1:
        e("s_and_b32 s36, s16, 3")
        code_pf(VL, 36)
    e("s_branch L_xr\nL_g:")
    e("s_sub_u32 s43, s43, 4")
    e("s_and_b32 s44, s43, 3\ns_lshr_b32 s45, s43, 2")
    e("s_add_u32 s22, s44, s45\ns_and_b32 s22, s22, 3")
    e("s_and_b32 s46, s42, 1\ns_lshl_b32 s46, s46, 2\ns_add_u32 s44, s44, s46")
    e("s_lshr_b32 s46, s42, 1\ns_mul_i32 s46, s46, 7\ns_add_u32 s45, s45, s46")
    if cfg.get('kxor', 4):
        G1.usexor = True
        e(f"s_mov_b32 s23, 0\ns_and_b32 s94, s42, 1\ns_mul_i32 s94, s94, {cfg.get('kxor', 4)}")
    else:
        e(f"s_and_b32 s23, s42, 1\ns_mul_i32 s23, s23, {cfg.get('koff1', 28)}")
    dequant1()
    stamp(1)
    e(f"s_mul_i32 s20, s44, {56*16384}\ns_lshl_b32 s21, s45, 8")
    srd(a, 8, PV, 3584*3584*2)
    srd(a, 12, PWS, 1024*3584*2, WS_WV)
    def g2_scalars():
        e("s_and_b32 s46, s43, 3\ns_lshr_b32 s47, s43, 2")
        e("s_lshr_b32 s19, s42, 1\ns_lshl_b32 s19, s19, 2\ns_add_u32 s46, s46, s19")
        e("s_and_b32 s19, s42, 1\ns_mul_i32 s19, s19, 7\ns_add_u32 s47, s47, s19")
        e("s_bfe_u32 s23, s42, 0x10001\ns_lshl_b32 s23, s23, 3")
        e("s_lshl_b32 s21, s47, 19\ns_lshl_b32 s20, s46, 18")
        srd(a, 4, PWS, 2048*1024*2, WS_XR)
        srd(a, 8, PWS, 1024*3584*2, WS_WV)
        srd(a, 12, POUT, 2048*3584*2)
    e("s_cmp_ge_u32 s16, 4\ns_cbranch_scc1 L_gc")
    def poll1(t, soff, nl, w):
        l = a.lbl("p1w")
        e(f"s_cmp_lg_u32 s16, 0\ns_cbranch_scc1 {l}")
        poll(t, soff, nl, w)
        e(f"{l}:\ns_barrier")
    if not cfg.get('vearly', 2):
        e("s_mov_b32 s17, s16")
        G1.p_setup()
    if cfg.get('vearly', 2) != 1: G1.p_pre(1)
    e("s_lshl_b32 s28, s44, 10\ns_lshl_b32 s29, s44, 9\ns_add_u32 s29, s29, 20480")
    e("s_lshl_b32 s36, s44, 2\ns_add_u32 s36, s36, s16\ns_sub_u32 s37, 28, s23\ns_add_u32 s37, s37, s45")
    dq_scalars(36, 37, 90, 92, 93)
    e("s_lshl_b32 s30, s45, 4\ns_add_u32 s30, s30, s29\ns_lshl_b32 s19, s16, 2\ns_add_u32 s30, s30, s19")
    poll1(24, 28, 56, 4)
    stamp(2)
    e("s_waitcnt vmcnt(0)")
    G1.p_pre(0)
    Ta = cfg.get('Ta', 3)
    def d2_load():
        srd(a, 12, PSC, 32*3584*2)
        srd(a, 96, PZE, 32*3584*2)
        dq_sload(12, 96, 92)
        srd(a, 12, PQW, 1024*3584*4)
        for h in range(2):
            for ap in range(2): dq_qload(h, ap, 12, 90)
    def d2_conv(h, ap):
        def f():
            if h == 0 and ap == 0: dq_unpack()
            dq_conv(h, ap, 4, 93)
        return f
    def d2_pub():
        e(f"v_mov_b32 v{DT}, 0\nv_mov_b32 v{DT+1}, s{NONCE}\ns_mov_b64 exec, 1")
        e(f"buffer_store_dword v{DT+1}, v{DT}, s[24:27], s30 offen sc1")
        e("s_mov_b64 exec, -1")
    def pre1():
        poll_addr(24, 28, 4); poll_load(24, 29, 4)
    def post1():
        poll(24, 29, 28, 4, loaded=True)
    if cfg.get('sd2', 0):
        mids = []
    else:
        mids = [(Ta, d2_load, None, 0, None)]
        for n, (h, kb) in enumerate([(0, 0), (1, 0), (0, 1), (1, 1)]):
            mids.append((Ta + 1 + n, None, d2_conv(h, kb), 1, None))
        mids.append((Ta + 5, None, None, 0, d2_pub))
    mids.append((cfg.get('T1', 18), pre1, None, 0, post1))
    if cfg.get('dbgP'):
        for i, T in enumerate(cfg.get('dbgT', (14, 28, 42, 54))):
            hit = [k for k, m in enumerate(mids) if m[0] == T]
            if hit:
                m = mids[hit[0]]
                mids[hit[0]] = (m[0], m[1], m[2], m[3], (lambda i=i, p=m[4]: ((p() if p else None), stamp(3 + i, 'P'))))
            else:
                mids.append((T, None, None, 0, (lambda i=i: stamp(3 + i, 'P'))))
        mids.sort(key=lambda m: m[0])
    G1.p_loop(last_op=0, mid=mids)
    stamp(3)
    g2_scalars()
    G2.p_setup()
    e("s_lshl_b32 s28, s46, 7\ns_add_u32 s28, s28, 16384\ns_lshl_b32 s19, s23, 2\ns_add_u32 s28, s28, s19\ns_xor_b32 s29, s28, 32")
    e("s_lshl_b32 s30, s47, 8\ns_add_u32 s30, s30, 8192\ns_lshl_b32 s19, s23, 4\ns_add_u32 s30, s30, s19\ns_xor_b32 s31, s30, 128")
    e("s_barrier")
    poll1(24, 28, 8, 1)
    stamp(4)
    G2.p_pre(0)
    poll1(24, 30, 32, 1)
    stamp(5)
    e("s_waitcnt vmcnt(0)")
    G2.p_pre(1)
    def pre2():
        poll_addr(24, 8, 1); poll_load(24, 29, 1)
        poll_addr(32, 32, 1); poll_load(32, 31, 1)
    def post2():
        poll(24, 29, 8, 1, loaded=True)
        poll(32, 31, 32, 1, loaded=True)
    G2.p_loop(last_op=1, mid=[(cfg.get('T2', 3), pre2, None, 0, post2)])
    stamp_out(32)
    e("s_endpgm")
    e("L_gc:")
    e(f"v_and_b32 v{VL}, 63, v0")
    e("s_bfe_u32 s17, s16, 0x10001\ns_and_b32 s18, s16, 1")
    if cfg.get('cprio', 2): e(f"s_setprio {cfg.get('cprio', 2)}")
    if cfg.get('xpf', 0):
        srd(a, 28, PX, 2048*1024*2)
        e(f"s_sub_u32 s36, s2, 32\ns_lshl_b32 s36, s36, 2\ns_and_b32 s37, s16, 3\ns_add_u32 s36, s36, s37\ns_lshl_b32 s36, s36, 13\nv_lshl_add_u32 v2, v{VL}, 7, s36")
        e(f"v_subrev_u32 v4, 0x400000, v2")
        e(f"buffer_load_dword v{VL+1}, v2, s[28:31], 0 offen")
        srd(a, 28, PU, 1024*1024*2)
        e(f"buffer_load_dword v{VL+1}, v4, s[28:31], 0 offen")
    acc, nPw, nQw, FR = G1.c_body(VL, lambda: stamp(2), lambda: stamp(3), prebar=1)
    t = FR + 40
    e("s_lshr_b32 s36, s45, 1\ns_lshl_b32 s36, s36, 4\ns_lshl_b32 s37, s44, 1\ns_add_u32 s36, s36, s37\ns_add_u32 s36, s36, s17\ns_lshl_b32 s36, s36, 15")
    e("s_and_b32 s37, s45, 1\ns_lshl_b32 s37, s37, 14\ns_add_u32 s36, s36, s37\ns_lshl_b32 s37, s18, 13\ns_add_u32 s36, s36, s37\ns_add_u32 s37, s36, 4096")
    e(f"s_lshl_b32 s38, s18, 2\nv_xor_b32 v{t+4}, s38, v{VL}")
    for bq in range(nQw): e(f"v_xor_b32 v{t+bq}, {bq}, v{t+4}\nv_lshlrev_b32 v{t+bq}, 4, v{t+bq}")
    k = 0
    for bq in range(nQw):
        for m in range(nPw // 2):
            d = FR + 4 * k; k += 1
            pack4(a, d, acc(2*m, bq), acc(2*m+1, bq))
            e(f"buffer_store_dwordx4 v[{d}:{d+3}], v{t+bq}, s[12:15], s{36+(bq>>1)} offen offset:{m*1024+(bq&1)*2048} sc1")
    e("s_barrier")
    e("s_lshr_b32 s40, s45, 1\ns_lshl_b32 s40, s40, 8\ns_and_b32 s41, s45, 1\ns_lshl_b32 s41, s41, 6\ns_add_u32 s40, s40, s41")
    e("s_lshr_b32 s41, s44, 2\ns_lshl_b32 s41, s41, 7\ns_add_u32 s40, s40, s41\ns_and_b32 s41, s44, 3\ns_lshl_b32 s41, s41, 4\ns_add_u32 s40, s40, s41")
    e("s_and_b32 s41, s16, 3\ns_lshl_b32 s41, s41, 2\ns_add_u32 s40, s40, s41\ns_add_u32 s40, s40, 8192")
    publish(t + 8, 40)
    stamp(4)
    g2_scalars()
    acc, nPw, nQw, FR = G2.c_body(VL, lambda: stamp(5), lambda: stamp(6), prebar=2)
    t = FR + 90
    e(f"v_lshrrev_b32 v{t}, 4, v{VL}\nv_mul_u32_u24 v{t}, {4*7168}, v{t}")
    e(f"v_and_b32 v{t+1}, 15, v{VL}\nv_lshl_add_u32 v{t+1}, v{t+1}, 4, v{t}")
    e(f"s_lshl_b32 s36, s46, 1\ns_add_u32 s36, s36, s17\ns_mul_i32 s36, s36, {64*7168}\ns_lshl_b32 s37, s47, 9\ns_add_u32 s36, s36, s37\ns_lshl_b32 s37, s18, 8\ns_add_u32 s36, s36, s37")
    k = 0
    of = cfg.get('outflags', 'nt')
    for pb in range(nPw):
        for r in range(4):
            d = FR + 4 * k; k += 1
            e(f"s_add_u32 s37, s36, {(pb*16+r)*7168}")
            for j in range(4): e(f"v_cvt_pk_bf16_f32 v{d+j}, v{acc(pb,2*j)+r}, v{acc(pb,2*j+1)+r}")
            e(f"buffer_store_dwordx4 v[{d}:{d+3}], v{t+1}, s[12:15], s37 offen {of}")
    stamp_out(0)
    e("s_endpgm")
    e("L_xr:")
    e("s_waitcnt lgkmcnt(0)")
    if cfg.get('spf', 0):
        srd(a, 8, PV, 3584*3584*2)
        e("s_and_b32 s44, s42, 1\ns_lshl_b32 s44, s44, 2\ns_add_u32 s44, s44, s43\ns_lshl_b32 s44, s44, 3\ns_add_u32 s44, s44, s16\ns_lshl_b32 s44, s44, 6")
        e(f"s_lshr_b32 s45, s42, 1\ns_mul_i32 s45, s45, 1792\ns_add_u32 s45, s45, {cfg.get('sp0', 2)*64*7168}")
        e(f"v_and_b32 v1, 63, v0\nv_add_u32 v1, s44, v1\ns_mov_b32 s46, {(1<<32)//14+1}\ns_movk_i32 s47, 7168")
        for r in range(cfg['spf']):
            e("v_mul_hi_u32 v2, v1, s46\nv_mul_u32_u24 v3, 14, v2\nv_sub_u32 v3, v1, v3\nv_mul_lo_u32 v2, v2, s47\nv_lshl_add_u32 v2, v3, 7, v2")
            e(f"buffer_load_dword v{VL+1}, v2, s[8:11], s45 offen\nv_add_u32 v1, 4096, v1")
    srd(a, 4, PU, 1024*1024*2)
    srd(a, 8, PX, 2048*1024*2)
    srd(a, 12, PWS, 2048*1024*2, WS_XR)
    e("s_mov_b32 s46, 0")
    def xr_scalars():
        e("s_and_b32 s45, s43, 1\ns_bfe_u32 s44, s43, 0x10001\ns_xor_b32 s22, s44, s45")
        e("s_lshl_b32 s47, s42, 1\ns_add_u32 s45, s45, s47")
        e("s_lshr_b32 s47, s42, 1\ns_xor_b32 s47, s46, s47\ns_and_b32 s47, s47, 1\ns_lshl_b32 s47, s47, 1\ns_add_u32 s44, s44, s47")
        e("s_and_b32 s23, s42, 1\ns_lshr_b32 s47, s42, 2\ns_lshl_b32 s47, s47, 1\ns_add_u32 s23, s23, s47\ns_lshl_b32 s23, s23, 2")
        e("s_lshl_b32 s20, s44, 9\ns_lshl_b32 s21, s45, 18")
    e("s_cmp_ge_u32 s16, 4\ns_cbranch_scc1 L_xc")
    e("s_mov_b32 s17, s16")
    e("L_xp:")
    xr_scalars()
    GX.p_setup()
    GX.p_loop()
    e("s_add_u32 s46, s46, 1\ns_cmp_lt_u32 s46, 2\ns_cbranch_scc1 L_xp")
    stamp_out(32)
    e("s_endpgm")
    e("L_xc:")
    e(f"v_and_b32 v{VL}, 63, v0")
    e("s_bfe_u32 s17, s16, 0x10001\ns_and_b32 s18, s16, 1")
    srd(a, 28, PDBG, 256)
    srd(a, 24, PWS, 32768, WS_FL)
    e("L_xc2:")
    xr_scalars()
    acc, nPw, nQw, FR = GX.c_body(VL, lambda: stamp(2), lambda: stamp(3))
    t = FR + 80
    e(f"v_lshlrev_b32 v{t}, 4, v{VL}")
    e("s_lshl_b32 s36, s45, 4\ns_lshl_b32 s37, s44, 2\ns_add_u32 s36, s36, s37\ns_lshl_b32 s37, s17, 1\ns_add_u32 s36, s36, s37")
    e("s_lshl_b32 s36, s36, 14\ns_lshl_b32 s37, s18, 13\ns_add_u32 s36, s36, s37")
    k = 0
    for mh in range(2):
        for bq in range(nQw):
            e(f"s_add_u32 s37, s36, {mh*16384 + bq*2048}")
            for kb in range(2):
                m = mh*2 + kb
                d = FR + 4 * k; k += 1
                pack4(a, d, acc(2*m, bq), acc(2*m+1, bq))
                e(f"buffer_store_dwordx4 v[{d}:{d+3}], v{t}, s[12:15], s37 offen offset:{kb*1024} sc1")
    e(f"v_mov_b32 v{t+2}, 0")
    get_nonce(t + 2)
    e("s_lshl_b32 s40, s45, 7\ns_lshl_b32 s41, s44, 4\ns_add_u32 s40, s40, s41\ns_and_b32 s41, s16, 3\ns_lshl_b32 s41, s41, 2\ns_add_u32 s40, s40, s41\ns_add_u32 s40, s40, 16384")
    publish(t + 4, 40)
    if cfg.get('cpf', 3) & 2:
        e("s_and_b32 s36, s16, 3")
        code_pf(t + 6, 36)
    if cfg.get('stamp'):
        l = a.lbl("sx")
        e(f"s_cmp_lg_u32 s46, 0\ns_cbranch_scc1 {l}")
        stamp(1)
        e(f"{l}:")
    e("s_add_u32 s46, s46, 1\ns_cmp_lt_u32 s46, 2\ns_cbranch_scc1 L_xc2")
    stamp_out(0)
    e("L_end:\ns_endpgm")
    e('.section .rodata,"a"\n.p2align 6')
    e(f""".amdhsa_kernel {KN}
  .amdhsa_next_free_vgpr 252
  .amdhsa_next_free_sgpr 102
  .amdhsa_accum_offset 252
  .amdhsa_group_segment_fixed_size 0
  .amdhsa_kernarg_size 72
  .amdhsa_user_sgpr_count 2
  .amdhsa_user_sgpr_kernarg_segment_ptr 1
  .amdhsa_system_sgpr_workgroup_id_x 1
  .amdhsa_float_denorm_mode_32 3
.end_amdhsa_kernel""")
    return a.text()

if __name__ == "__main__":
    out = sys.argv[1]
    cfg = {}
    for kv in sys.argv[2:]:
        k, v = kv.split("=", 1)
        cfg[k] = eval(v)
    open(out, "w").write(build(cfg))
```

```python
import sys

WS_WQ = 0
WS_WV = 8 << 20
WS_XR = 16 << 20
WS_FL = 24 << 20
WS_STAMP = 0xff00000
KN = "standalone__weight_only_int_quip__prompt_kernel"
PX, PQW, PSC, PZE, PU, PV, POUT, PDBG, PWS = 48, 50, 52, 54, 56, 58, 60, 62, 64
NONCE = 66

class A:
    def __init__(s): s.L = []; s.n = 0
    def e(s, t):
        for ln in t.split("\n"): s.L.append(ln)
    def lbl(s, p): s.n += 1; return f"{p}_{s.n}"
    def text(s): return "\n".join(s.L) + "\n"

def srd(a, d, p, nbytes, off=0):
    if off: a.e(f"s_add_u32 s{d}, s{p}, {off}\ns_addc_u32 s{d+1}, s{p+1}, 0")
    else: a.e(f"s_mov_b32 s{d}, s{p}\ns_mov_b32 s{d+1}, s{p+1}")
    a.e(f"s_mov_b32 s{d+2}, {nbytes}\ns_mov_b32 s{d+3}, 0x20000")

class Op:
    def __init__(s, kind, nblk, stepbytes, pitch=0, lay='kg', kmap='nat', flags=''):
        s.lay = lay; s.kmap = kmap; s.kind = kind; s.nblk = nblk; s.stepbytes = stepbytes; s.pitch = pitch
        s.stage = nblk * 2048; s.npieces = nblk * 2; s.R = nblk * 32; s.flags = flags

class Gemm:
    def __init__(g, a, nm, P, Q, S, lag, nsteps, lead, cfg, rmask=3):
        g.a = a; g.nm = nm; g.ops = [P, Q]; g.S = S; g.lag = lag; g.nsteps = nsteps; g.lead = lead; g.cfg = cfg; g.rmask = rmask
        g.base = [0, P.stage * S]
        g.lds = (P.stage + Q.stage) * S
        g.npw = [P.npieces // 4, Q.npieces // 4]
        g.nld = sum(g.npw)
        g.D = S - 1 - lag
        g.first = (S - (nsteps % S)) % S
        g.sstride = [op.stage // 2 if op.lay == 'perm8' else op.stage for op in g.ops]
    def p_setup(g, nv=8):
        e = g.a.e
        e("v_and_b32 v1, 63, v0")
        g.voff = [[], []]
        for o, op in enumerate(g.ops):
            sb = (20, 21)[o]; n = g.npw[o]
            if op.kind == 'lin':
                e(f"s_mul_i32 s19, s17, {n*1024}\ns_add_u32 s19, s19, s{sb}")
                e(f"v_lshl_add_u32 v{nv}, v1, 4, s19")
                g.voff[o].append(nv); nv += 1
                for u in range(1, n):
                    e(f"v_add_u32 v{nv}, {u*1024}, v{g.voff[o][0]}")
                    g.voff[o].append(nv); nv += 1
            elif op.kind == 'tr':
                cpr = op.R // 16; rpp = 1024 // op.R; sh = cpr.bit_length() - 1
                for u in range(n):
                    r = nv; nv += 1; g.voff[o].append(r)
                    e(f"s_mul_i32 s19, s17, {n*rpp}\ns_add_u32 s19, s19, {u*rpp}")
                    e(f"v_lshrrev_b32 v2, {sh}, v1\nv_add_u32 v2, s19, v2")
                    e(f"v_and_b32 v3, {cpr-1}, v1")
                    if op.kmap == 'nat':
                        e("v_and_b32 v4, 3, v2\nv_bfe_u32 v5, v2, 3, 1\nv_lshl_add_u32 v4, v5, 2, v4\nv_lshlrev_b32 v4, 1, v4")
                    else:
                        e("v_and_b32 v4, 7, v2\nv_lshlrev_b32 v4, 1, v4")
                    e("v_xor_b32 v3, v3, v4")
                    e(f"v_mul_u32_u24 v2, {op.pitch}, v2")
                    e(f"v_lshl_add_u32 v2, v3, 4, v2\nv_add_u32 v{r}, s{sb}, v2")
            else:
                e(f"s_mul_i32 s19, s17, {n//2*16}")
                e(f"v_lshrrev_b32 v2, 2, v1\nv_add_u32 v2, s19, v2\nv_mul_u32_u24 v2, {op.pitch}, v2")
                e(f"v_lshrrev_b32 v3, 4, v1\nv_sub_u32 v3, 0, v3\nv_xor_b32 v3, v3, v1\nv_and_b32 v3, 3, v3")
                e(f"v_lshl_add_u32 v2, v3, 4, v2\nv_add_u32 v2, s{sb}, v2")
                for u in range(n):
                    r = nv; nv += 1; g.voff[o].append(r)
                    e(f"v_add_u32 v{r}, {(u>>1)*16*op.pitch + (u&1)*64}, v2")
        for o, op in enumerate(g.ops):
            if op.lay == 'perm8':
                e(f"s_lshr_b32 s19, s17, 1\ns_mul_i32 s{32+o}, s19, {op.stage//2*g.S}\ns_and_b32 s19, s17, 1\ns_mul_i32 s19, s19, {g.npw[o]*1024}\ns_add_u32 s{32+o}, s{32+o}, s19")
            else:
                e(f"s_mul_i32 s{32+o}, s17, {g.npw[o]*1024}")
            if g.base[o]: e(f"s_add_u32 s{32+o}, s{32+o}, {g.base[o]}")
        g.p_rewind()
        return nv
    def p_rewind(g):
        g.a.e(f"s_mov_b32 s34, 0\ns_mov_b32 s35, {g.first}")
    def p_issue(g, which=(1, 0)):
        e = g.a.e; P, Q = g.ops
        if getattr(g, 'seq2', False):
            e(f"s_add_u32 s37, s22, {g.nsteps - g.lead}\ns_cmp_gt_u32 s34, s37\ns_cselect_b32 s37, 0, 1\ns_sub_u32 s37, s34, s37")
            e(f"s_and_b32 s36, s37, {g.rmask}\ns_cmp_eq_u32 s36, s22\ns_cselect_b32 s36, {g.lead}, 0\ns_add_u32 s36, s36, s37")
            e(f"s_cmp_eq_u32 s34, 0\ns_cselect_b32 s36, s22, s36\ns_add_u32 s36, s36, s23")
            e(f"s_sub_u32 s37, s36, {g.nsteps}\ns_cmp_ge_u32 s36, {g.nsteps}\ns_cselect_b32 s36, s37, s36")
        else:
            e(f"s_and_b32 s36, s34, {g.rmask}\ns_cmp_eq_u32 s36, s22")
            e(f"s_cselect_b32 s36, {g.lead}, 0\ns_add_u32 s36, s36, s34\ns_add_u32 s36, s36, s23")
            e(f"s_sub_u32 s37, s36, {g.nsteps}\ns_cmp_ge_u32 s36, {g.nsteps}\ns_cselect_b32 s36, s37, s36")
        if getattr(g, 'usexor', False): e("s_xor_b32 s36, s36, s94")
        for o in which:
            e(f"s_mul_i32 s{38+o}, s36, {g.ops[o].stepbytes}")
            e(f"s_mul_i32 s{40+o}, s35, {g.sstride[o]}\ns_add_u32 s{40+o}, s{40+o}, s{32+o}")
        for o in which:
            for u in range(g.npw[o]):
                e(f"s_add_u32 m0, s{40+o}, {u*1024}")
                e("s_nop 0")
                e(f"buffer_load_dwordx4 v{g.voff[o][u]}, s[{4+4*o}:{7+4*o}], s{38+o} offen {g.ops[o].flags} lds")
        e("s_add_u32 s34, s34, 1")
        e(f"s_add_u32 s35, s35, 1\ns_cmp_eq_u32 s35, {g.S}\ns_cselect_b32 s35, 0, s35")
    def p_pre(g, o):
        l = g.a.lbl(g.nm + "_pre")
        g.p_rewind()
        g.a.e(f"{l}:")
        g.p_issue((o,))
        g.a.e(f"s_cmp_lt_u32 s34, {g.D}\ns_cbranch_scc1 {l}")
    def p_loop(g, last_op=None, mid=None):
        e = g.a.e; D = g.D; l = g.a.lbl(g.nm + "_pl")
        if last_op is not None:
            assert D <= 2
            e(f"s_waitcnt vmcnt({g.npw[last_op]*(D-1)})\ns_barrier")
        cur = D
        for (T0, pre, after, extra, post) in (mid or []):
            assert last_op is not None
            if T0 is not None and T0 != cur:
                l0 = g.a.lbl(g.nm + "_pm"); l1 = g.a.lbl(g.nm + "_pn")
                if isinstance(T0, str) or cur is None: e(f"s_cmp_ge_u32 s34, {T0}\ns_cbranch_scc1 {l1}")
                else: assert T0 > cur
                e(f"{l0}:")
                g.p_issue()
                e(f"s_waitcnt vmcnt({g.nld*(D-1)})\ns_barrier")
                e(f"s_cmp_lt_u32 s34, {T0}\ns_cbranch_scc1 {l0}")
                e(f"{l1}:")
            if pre: pre()
            g.p_issue()
            if after: after()
            e(f"s_waitcnt vmcnt({g.nld*(D-1) + extra})")
            if post: post()
            e("s_barrier")
            cur = T0 + 1 if isinstance(T0, int) else (cur + 1 if (T0 is None and cur is not None) else None)
        e(f"{l}:")
        g.p_issue()
        if last_op is None: e(f"s_cmp_lt_u32 s34, {D}\ns_cbranch_scc1 {l}")
        e(f"s_waitcnt vmcnt({g.nld*(D-1)})\ns_barrier")
        e(f"s_cmp_lt_u32 s34, {g.nsteps}\ns_cbranch_scc1 {l}")
        for i in range(D):
            e(f"s_waitcnt vmcnt({g.nld*max(D-2-i,0)})\ns_barrier")
        e("s_barrier")
    def c_body(g, VL, st0=None, st1=None, prebar=0):
        e = g.a.e; cfg = g.cfg; ops = g.ops; S = g.S; P, Q = ops
        nPw, nQw = P.nblk // 2, Q.nblk // 2
        nacc = nPw * nQw * 4
        FR = nacc; setsz = (nPw + nQw) * 4; AD = FR + 2 * setsz
        def acc(p, q): return (p * nQw + q) * 4
        def frag(st, o, b): return FR + st * setsz + (b if o == 0 else nPw + b) * 4
        tt = FR; vt = VL
        addr = {}; nxt = AD
        for o, op in enumerate(ops):
            nw = (nPw, nQw)[o]; sw = (17, 18)[o]
            nwin = (g.sstride[o] * S + 65535) // 65536
            if op.kind == 'tr':
                e(f"v_lshrrev_b32 v{tt+1}, 4, v{vt}")
                e(f"v_bfe_u32 v{tt+2}, v{vt}, 2, 2")
                e(f"v_and_b32 v{tt+3}, 3, v{vt}")
                e(f"v_lshl_add_u32 v{tt+4}, v{tt+1}, {3 if op.kmap == 'nat' else 2}, v{tt+2}")
                e(f"v_mul_u32_u24 v{tt+4}, {op.R}, v{tt+4}")
                e(f"v_and_b32 v{tt+5}, 1, v{tt+1}")
                e(f"v_lshl_add_u32 v{tt+5}, v{tt+5}, 2, v{tt+2}")
                e(f"v_lshlrev_b32 v{tt+5}, 1, v{tt+5}")
                e(f"v_lshl_add_u32 v{tt+4}, v{tt+3}, 3, v{tt+4}")
                e(f"s_mul_i32 s19, s{sw}, {2*nw}")
                for b in range(nw):
                    e(f"s_add_u32 s36, s19, {2*b}")
                    e(f"v_xor_b32 v{tt+6}, s36, v{tt+5}")
                    e(f"v_lshl_add_u32 v{tt+6}, v{tt+6}, 4, v{tt+4}")
                    for w in range(nwin):
                        e(f"v_add_u32 v{nxt}, {g.base[o] + w*65536}, v{tt+6}")
                        addr[(o, b, w)] = nxt; nxt += 1
            elif op.lay == 'perm8':
                assert nw == 8 and nwin == 1
                e(f"s_mul_i32 s19, s{sw}, {op.stage//2*S}\ns_add_u32 s19, s19, {g.base[o]}")
                e(f"v_bfe_u32 v{tt+1}, v{vt}, 1, 3")
                e(f"v_lshl_add_u32 v{tt+2}, v{tt+1}, 11, s19")
                e(f"v_lshrrev_b32 v{tt+3}, 4, v{vt}\nv_lshl_add_u32 v{tt+2}, v{tt+3}, 8, v{tt+2}")
                e(f"v_and_b32 v{tt+3}, 1, v{vt}\nv_lshl_add_u32 v{tt+2}, v{tt+3}, 7, v{tt+2}")
                for b in range(nw):
                    e(f"v_xor_b32 v{tt+3}, {b}, v{tt+1}\nv_lshl_add_u32 v{nxt}, v{tt+3}, 4, v{tt+2}")
                    addr[(o, b, 0)] = nxt; nxt += 1
            else:
                e(f"s_mul_i32 s19, s{sw}, {nw*2048}")
                if op.lay == 'kg':
                    e(f"v_lshl_add_u32 v{tt+6}, v{vt}, 4, s19")
                else:
                    e(f"v_and_b32 v{tt+1}, 15, v{vt}\nv_lshl_add_u32 v{tt+6}, v{tt+1}, 6, s19")
                    e(f"v_lshrrev_b32 v{tt+1}, 2, v{tt+1}\nv_sub_u32 v{tt+1}, 0, v{tt+1}\nv_lshrrev_b32 v{tt+2}, 4, v{vt}\nv_xor_b32 v{tt+1}, v{tt+1}, v{tt+2}\nv_and_b32 v{tt+1}, 3, v{tt+1}")
                    e(f"v_lshl_add_u32 v{tt+6}, v{tt+1}, 4, v{tt+6}")
                for w in range(nwin):
                    e(f"v_add_u32 v{nxt}, {g.base[o] + w*65536}, v{tt+6}")
                    addr[(o, None, w)] = nxt; nxt += 1
        assert nxt <= VL, (nxt, VL)
        for i in range(0, nacc, 2): e(f"v_mov_b64 v[{i}:{i+1}], 0")
        def rd1(slot, kb, st, o, b):
            op = ops[o]; f = frag(st, o, b); out = []
            if op.kind == 'tr':
                for t in range(2):
                    off = slot * op.stage + {'nat': kb*32 + t*4, 'split': kb*32 + t*16, 'split64': kb*16 + t*32}[op.kmap] * op.R
                    w, off = off // 65536, off % 65536
                    out.append((f"ds_read_b64_tr_b16 v[{f+2*t}:{f+2*t+1}], v{addr[(o,b,w)]} offset:{off}", (o, b)))
            elif op.lay == 'perm8':
                out.append((f"ds_read_b128 v[{f}:{f+3}], v{addr[(o,b,0)]} offset:{slot*g.sstride[o] + kb*1024}", (o, b)))
            else:
                off = slot * op.stage + b * 2048 + kb * 1024
                w, off = off // 65536, off % 65536
                out.append((f"ds_read_b128 v[{f}:{f+3}], v{addr[(o,None,w)]} offset:{off}", (o, b)))
            return out
        morder = []
        if nPw >= nQw:
            for p in range(nPw):
                for q in (range(nQw) if p % 2 == 0 else range(nQw - 1, -1, -1)): morder.append((p, q))
        else:
            for q in range(nQw):
                for p in (range(nPw) if q % 2 == 0 else range(nPw - 1, -1, -1)): morder.append((p, q))
        forder = []
        for (p, q) in morder:
            for f in ((0, p), (1, q)):
                if f not in forder: forder.append(f)
        def reads(slot, kb, st):
            out = []
            for (o, b) in forder: out += rd1(slot, kb, st, o, b)
            return out
        R = len(reads(0, 0, 0))
        lastpos = {}
        for i, (_, f) in enumerate(reads(0, 0, 0)): lastpos[f] = i
        def half(st, rd, barrier, tail=""):
            rd = list(rd); k = 0; waited = -1
            for i, (p, q) in enumerate(morder):
                if barrier and i == 0:
                    if g.lag == 0:
                        e("s_waitcnt lgkmcnt(0)"); waited = R
                    e("s_barrier")
                need = max(lastpos[(0, p)], lastpos[(1, q)])
                if need > waited:
                    e(f"s_waitcnt lgkmcnt({min(R - 1 - need + k, 15)})")
                    waited = need
                c = acc(p, q); fp = frag(st, 0, p); fq = frag(st, 1, q)
                e(f"v_mfma_f32_16x16x32_bf16 v[{c}:{c+3}], v[{fp}:{fp+3}], v[{fq}:{fq+3}], v[{c}:{c+3}]")
                if rd:
                    e(rd.pop(0)[0]); k += 1
                if i == len(morder) - 2 and tail: e(tail)
            assert not rd
        for _ in range(prebar): e("s_barrier")
        e("s_barrier")
        if st0: st0()
        for r, _ in reads(g.first, 0, 0): e(r)
        e(f"s_mov_b32 s19, {(g.nsteps + g.first) // S}")
        if g.first: e(f"s_branch {g.nm}_c{g.first}")
        e(".p2align 6")
        for u in range(S):
            e(f"{g.nm}_c{u}:")
            half(0, reads(u, 1, 1), False)
            half(1, reads((u + 1) % S, 0, 0), True, "s_sub_u32 s19, s19, 1\ns_cmp_lg_u32 s19, 0" if u == S - 1 else "")
        e(f"s_cbranch_scc1 {g.nm}_c0")
        e("s_waitcnt lgkmcnt(0)\ns_barrier")
        if st1: st1()
        e("s_nop 7")
        return acc, nPw, nQw, FR

def pack4(a, dst, c0, c1):
    a.e(f"v_cvt_pk_bf16_f32 v{dst}, v{c0}, v{c0+1}\nv_cvt_pk_bf16_f32 v{dst+1}, v{c0+2}, v{c0+3}")
    a.e(f"v_cvt_pk_bf16_f32 v{dst+2}, v{c1}, v{c1+1}\nv_cvt_pk_bf16_f32 v{dst+3}, v{c1+2}, v{c1+3}")

SPIN = 1 << 15
def build(cfg):
    a = A(); e = a.e
    stf = cfg.get('stflags', 'sc1'); ldf = cfg.get('hflags', 'sc1')
    VL = 250
    def stamp(i, dbg=False):
        if (cfg.get('dbgD') or cfg.get('dbgP')) and i in (3, 4, 5, 6) and not dbg: return
        if dbg is True and not cfg.get('dbgD'): return
        if dbg == 'P' and not cfg.get('dbgP'): return
        if cfg.get('stamp'): e(f"s_memrealtime s[{68+2*i}:{69+2*i}]\ns_waitcnt lgkmcnt(0)")
    def stamp_out(t):
        if not cfg.get('stamp'): return
        e("s_waitcnt vmcnt(0)")
        stamp(7)
        if cfg.get('dbgout'):
            l = a.lbl("so")
            srd(a, 24, PDBG, 256)
            for i in range(8): e(f"s_sub_u32 s19, s{68+2*i}, s{NONCE}\nv_mov_b32 v{t+i}, s19")
            e(f"v_mov_b32 v{t+11}, 0\ns_cmp_lg_u32 s16, 4\ns_cbranch_scc1 {l}")
            e(f"s_cmp_eq_u32 s2, 101\ns_cselect_b32 s86, 4, 0\ns_cmp_eq_u32 s2, 5\ns_cselect_b32 s86, 36, s86\ns_cmp_eq_u32 s86, 0\ns_cbranch_scc1 {l}")
            e("s_mov_b64 exec, 1")
            for i in range(8): e(f"buffer_store_dword v{t+i}, v{t+11}, s[24:27], s86 offen offset:{4*i}")
            e(f"{l}:")
            return
        e("s_memtime s[86:87]\ns_getreg_b32 s88, hwreg(HW_REG_XCC_ID)\ns_waitcnt lgkmcnt(0)")
        srd(a, 24, PWS, 0x10000000)
        for i in range(8): e(f"v_mov_b32 v{t+i}, s{68+2*i}")
        e(f"s_sub_u32 s86, s86, s84\nv_mov_b32 v{t+8}, s86\nv_mov_b32 v{t+9}, s88\nv_mov_b32 v{t+10}, s67\nv_mov_b32 v{t+11}, 0")
        e(f"s_lshl_b32 s86, s2, 7\ns_and_b32 s87, s16, 4\ns_xor_b32 s87, s87, 4\ns_lshl_b32 s87, s87, 4\ns_add_u32 s86, s86, s87\ns_add_u32 s86, s86, {WS_STAMP}")
        l = a.lbl("st")
        e(f"s_and_b32 s87, s16, 3\ns_cmp_lg_u32 s87, 0\ns_cbranch_scc1 {l}")
        e("s_mov_b64 exec, 1")
        for i in range(3): e(f"buffer_store_dwordx4 v[{t+4*i}:{t+4*i+3}], v{t+11}, s[24:27], s86 offen offset:{16*i}")
        e(f"{l}:")
    def get_nonce(t, first_loaded=False):
        l = a.lbl("nn"); d = a.lbl("nd")
        e(f"s_mov_b32 s19, {SPIN}")
        if first_loaded:
            e(f"v_readfirstlane_b32 s{NONCE}, v{t+1}\ns_nop 3\ns_cmp_lg_u32 s{NONCE}, 0\ns_cbranch_scc1 {d}")
        e(f"{l}:")
        e(f"buffer_load_dword v{t+1}, v{t}, s[28:31], 0 offen sc1\ns_waitcnt vmcnt(0)")
        e(f"v_readfirstlane_b32 s{NONCE}, v{t+1}\ns_nop 3\ns_cmp_lg_u32 s{NONCE}, 0\ns_cbranch_scc1 {d}")
        e(f"s_sleep 4\ns_sub_u32 s19, s19, 1\ns_cmp_lg_u32 s19, 0\ns_cbranch_scc1 {l}")
        e(f"{d}:")
    def publish(t, soff, wait=True):
        if wait: e("s_waitcnt vmcnt(0)")
        e(f"v_mov_b32 v{t}, 0\nv_mov_b32 v{t+1}, s{NONCE}\ns_mov_b64 exec, 1")
        e(f"buffer_store_dword v{t+1}, v{t}, s[24:27], s{soff} offen sc1")
        e("s_mov_b64 exec, -1")
    def poll_addr(t, nlanes, width):
        e(f"v_min_u32 v{t}, {nlanes-1}, v1\nv_lshlrev_b32 v{t}, {2 if width == 1 else 4}, v{t}")
    def poll_load(t, soff, width):
        if width == 1: e(f"buffer_load_dword v{t+2}, v{t}, s[24:27], s{soff} offen sc1")
        else: e(f"buffer_load_dwordx4 v[{t+2}:{t+5}], v{t}, s[24:27], s{soff} offen sc1")
    def poll_check(t, width, done):
        if width == 1:
            e(f"v_cmp_ne_u32 vcc, s{NONCE}, v{t+2}")
        else:
            e(f"v_xor_b32 v{t+2}, s{NONCE}, v{t+2}\nv_xor_b32 v{t+3}, s{NONCE}, v{t+3}\nv_xor_b32 v{t+4}, s{NONCE}, v{t+4}\nv_xor_b32 v{t+5}, s{NONCE}, v{t+5}")
            e(f"v_or3_b32 v{t+2}, v{t+2}, v{t+3}, v{t+4}\nv_or_b32 v{t+2}, v{t+2}, v{t+5}")
            e(f"v_cmp_ne_u32 vcc, 0, v{t+2}")
        e(f"s_nop 4\ns_cmp_eq_u64 vcc, 0\ns_cbranch_scc1 {done}")
    def poll(t, soff, nlanes, width, loaded=False):
        l = a.lbl("pl"); d = a.lbl("pd")
        if loaded: poll_check(t, width, d)
        else: poll_addr(t, nlanes, width)
        e(f"s_mov_b32 s19, {SPIN}")
        e(f"{l}:")
        poll_load(t, soff, width)
        e("s_waitcnt vmcnt(0)")
        poll_check(t, width, d)
        e(f"s_add_u32 s67, s67, 1\ns_sleep {cfg.get('psleep', 2)}\ns_sub_u32 s19, s19, 1\ns_cmp_lg_u32 s19, 0\ns_cbranch_scc1 {l}")
        e(f"{d}:")
    B = 40
    DL, DR, DKG, DVQ, DVS, DVO, DVQ2, DT = B, B+1, B+2, B+3, B+4, B+5, B+6, B+8
    DUN = B + 12; DQV = B + 44; DSV = B + 76; DNV = B + 92
    def dq_lanes():
        e(f"v_and_b32 v{DL}, 63, v0")
        e(f"v_lshrrev_b32 v{DKG}, 4, v{DL}\nv_bfe_u32 v{DR}, v{DL}, 3, 1\nv_lshl_add_u32 v{DR}, v{DKG}, 2, v{DR}")
        e(f"v_sub_u32 v{DKG}, 0, v{DKG}\nv_and_b32 v{DKG}, 3, v{DKG}\nv_xor_b32 v{DKG}, v{DKG}, v{DL}\nv_and_b32 v{DKG}, 7, v{DKG}")
        e(f"v_mul_u32_u24 v{DVQ}, 14336, v{DR}\nv_lshl_add_u32 v{DVQ}, v{DKG}, 4, v{DVQ}\nv_add_u32 v{DVQ2}, {2*14336}, v{DVQ}")
        e(f"v_lshlrev_b32 v{DVS}, 3, v{DKG}")
        e(f"v_bfe_u32 v{DVO}, v{DL}, 2, 1\nv_lshlrev_b32 v{DVO}, 10, v{DVO}\nv_lshl_add_u32 v{DVO}, v{DR}, 6, v{DVO}\nv_and_b32 v{DT}, 3, v{DL}\nv_lshl_add_u32 v{DVO}, v{DT}, 4, v{DVO}")
    def dq_scalars(sg, sks, sq, ss, so, sh=None):
        e(f"s_mul_i32 s{sq}, s{sg}, {32*14336}\ns_lshl_b32 s19, s{sks}, 8\ns_add_u32 s{sq}, s{sq}, s19")
        if sh is None: e(f"s_add_u32 s{sq+1}, s{sq}, {16*14336}")
        else: e(f"s_mul_i32 s19, s{sh}, {16*14336}\ns_add_u32 s{sq}, s{sq}, s19")
        e(f"s_mul_i32 s{ss}, s{sg}, 7168\ns_lshl_b32 s19, s{sks}, 7\ns_add_u32 s{ss}, s{ss}, s19")
        e(f"s_mul_i32 s{so}, s44, 56\ns_add_u32 s{so}, s{so}, s{sks}\ns_lshl_b32 s{so}, s{so}, 14")
        e(f"s_and_b32 s19, s{sg}, 3\ns_lshl_b32 s19, s19, 12\ns_add_u32 s{so}, s{so}, s19")
        if sh is not None: e(f"s_lshl_b32 s19, s{sh}, 11\ns_add_u32 s{so}, s{so}, s19")
    def dq_qload(h, ap, rq, sq):
        q = DQV + (h*2+ap)*8; v = DVQ2 if ap else DVQ
        e(f"buffer_load_dwordx4 v[{q}:{q+3}], v{v}, s[{rq}:{rq+3}], s{sq+h} offen nt")
        e(f"buffer_load_dwordx4 v[{q+4}:{q+7}], v{v}, s[{rq}:{rq+3}], s{sq+h} offen offset:128 nt")
    def dq_sload(rs, rz, ss):
        s_ = DSV
        for hf in range(2):
            e(f"buffer_load_dwordx2 v[{s_+2*hf}:{s_+2*hf+1}], v{DVS}, s[{rs}:{rs+3}], s{ss} offen offset:{hf*64}")
            e(f"buffer_load_dwordx2 v[{s_+4+2*hf}:{s_+5+2*hf}], v{DVS}, s[{rz}:{rz+3}], s{ss} offen offset:{hf*64}")
    def dq_unpack():
        u = DUN; s_ = DSV
        for j in range(4):
            e(f"v_lshlrev_b32 v{u+2*j}, 16, v{s_+j}\nv_and_b32 v{u+2*j+1}, 0xffff0000, v{s_+j}")
            e(f"v_lshlrev_b32 v{u+8+2*j}, 16, v{s_+4+j}\nv_and_b32 v{u+8+2*j+1}, 0xffff0000, v{s_+4+j}")
    def dq_conv1(h, ap):
        q = DQV + (h*2+ap)*8; T = DT
        for j in range(8): e(f"v_cvt_f32_i32 v{q+j}, v{q+j}")
        for j in range(4): e(f"v_cvt_pk_bf16_f32 v{T+j}, v{q+2*j}, v{q+2*j+1}")
        for j in range(4): e(f"v_lshlrev_b32 v{q+2*j}, 16, v{T+j}\nv_and_b32 v{q+2*j+1}, 0xffff0000, v{T+j}")
    def dq_conv2(h, ap, ro, so):
        q = DQV + (h*2+ap)*8; u = DUN; o = DUN + 16 + (h*2+ap)*4; T = DT
        for j in range(4): e(f"v_pk_add_f32 v[{q+2*j}:{q+2*j+1}], v[{q+2*j}:{q+2*j+1}], v[{u+8+2*j}:{u+9+2*j}] neg_lo:[0,1] neg_hi:[0,1]")
        for j in range(4): e(f"v_cvt_pk_bf16_f32 v{T+j}, v{q+2*j}, v{q+2*j+1}")
        for j in range(4): e(f"v_lshlrev_b32 v{q+2*j}, 16, v{T+j}\nv_and_b32 v{q+2*j+1}, 0xffff0000, v{T+j}")
        for j in range(4): e(f"v_pk_mul_f32 v[{q+2*j}:{q+2*j+1}], v[{q+2*j}:{q+2*j+1}], v[{u+2*j}:{u+2*j+1}]")
        for j in range(4): e(f"v_cvt_pk_bf16_f32 v{o+j}, v{q+2*j}, v{q+2*j+1}")
        e(f"buffer_store_dwordx4 v[{o}:{o+3}], v{DVO}, s[{ro}:{ro+3}], s{so} offen offset:{h*2048+ap*128} sc1")
    def dq_conv(h, ap, ro, so):
        dq_conv1(h, ap); dq_conv2(h, ap, ro, so)
    def dequant1():
        dq_lanes()
        e("s_and_b32 s36, s16, 3\ns_lshl_b32 s37, s44, 2\ns_add_u32 s36, s36, s37")
        e("s_add_u32 s37, s23, s45\ns_lshr_b32 s39, s16, 2")
        dq_scalars(36, 37, 38, 40, 41, sh=39)
        e("s_waitcnt lgkmcnt(0)")
        srd(a, 12, PQW, 1024*3584*4)
        dq_qload(0, 0, 12, 38); dq_qload(0, 1, 12, 38)
        srd(a, 24, PSC, 32*3584*2)
        srd(a, 28, PZE, 32*3584*2)
        dq_sload(24, 28, 40)
        srd(a, 28, PDBG, 256)
        e(f"v_mov_b32 v{DNV}, 0")
        e(f"buffer_load_dword v{DNV+1}, v{DNV}, s[28:31], 0 offen sc1")
        srd(a, 4, PWS, 1024*3584*2, WS_WQ)
        stamp(3, True)
        if cfg.get('vearly', 2):
            e(f"s_mul_i32 s20, s44, {56*16384}\ns_lshl_b32 s21, s45, 8\ns_mov_b32 s47, s41")
            srd(a, 8, PV, 3584*3584*2)
            e("s_and_b32 s17, s16, 3")
            G1.p_setup()
        e("s_waitcnt vmcnt(7)")
        dq_conv1(0, 0)
        e("s_waitcnt vmcnt(5)")
        dq_conv1(0, 1)
        e("s_waitcnt vmcnt(1)")
        stamp(4, True)
        dq_unpack()
        dq_conv2(0, 0, 4, 41); dq_conv2(0, 1, 4, 41)
        stamp(6, True)
        e("s_waitcnt vmcnt(2)")
        get_nonce(DNV, True)
        srd(a, 24, PWS, 32768, WS_FL)
        e("s_lshl_b32 s46, s44, 10\ns_lshl_b32 s41, s45, 5\ns_add_u32 s46, s46, s41\ns_lshl_b32 s41, s16, 2\ns_add_u32 s46, s46, s41")
        if cfg.get('vearly', 2) >= 2:
            publish(DT, 46)
            if cfg.get('vearly', 2) == 2: e("s_barrier")
        elif cfg.get('vearly', 2):
            e("s_cmp_ge_u32 s16, 4\ns_cbranch_scc1 L_ve2")
            G1.p_pre(1)
            e(f"s_waitcnt vmcnt({G1.D * G1.npw[1]})")
            e("s_branch L_ve3\nL_ve2:\ns_waitcnt vmcnt(0)\nL_ve3:")
            publish(DT, 46, wait=False)
        else:
            publish(DT, 46)

    def code_pf(vt, wave_sgpr):
        l = a.lbl("cp")
        e(f"s_getpc_b64 s[38:39]\n{l}:\ns_sub_u32 s38, s38, {l}-{KN}\ns_subb_u32 s39, s39, 0")
        e(f"s_lshl_b32 s19, s{wave_sgpr}, 13\nv_mbcnt_lo_u32_b32 v{vt}, -1, 0\nv_mbcnt_hi_u32_b32 v{vt}, -1, v{vt}\nv_lshl_add_u32 v{vt}, v{vt}, 7, s19")
        e(f"v_min_u32 v{vt}, L_end-{KN}, v{vt}")
        e(f"global_load_dword v{VL+1}, v{vt}, s[38:39]")
    G1 = Gemm(a, "p1", Op('lin', 8, 16384, lay='row', flags=ldf), Op('tr', 8, 64*7168, 7168, kmap='split64'), 4, 1, 56, cfg.get('lead1', 4), cfg)
    G2 = Gemm(a, "p2", Op('lin', 8, 16384, flags=ldf), Op('lin', 16, 32768, lay='perm8', flags=ldf), 3, 0, 16, cfg.get('lead2', 4), cfg)
    GX = Gemm(a, "px", Op('tr', 16, 64*2048, 2048), Op('gather', 8, 128, 2048, lay='row'), 3, 0, 16, cfg.get('leadx', 2), cfg, rmask=1)
    G1.seq2 = bool(cfg.get('seq2', 7) & 1); G2.seq2 = bool(cfg.get('seq2', 7) & 2); GX.seq2 = bool(cfg.get('seq2', 7) & 4)
    lds = max(G1.lds, G2.lds, GX.lds)
    e(f"; @launch grid=(256,1,1) block=(512,1,1) lds={lds}")
    e('.amdgcn_target "amdgcn-amd-amdhsa--gfx950"')
    e(f".text\n.globl {KN}\n.p2align 8\n.type {KN},@function\n{KN}:")
    e("s_cmp_ge_u32 s2, 256\ns_cbranch_scc1 L_end")
    e("s_load_dwordx16 s[48:63], s[0:1], 0\ns_load_dwordx2 s[64:65], s[0:1], 64")
    if cfg.get('stamp'):
        e("s_memtime s[84:85]")
        for i in range(1, 8): e(f"s_mov_b64 s[{68+2*i}:{69+2*i}], 0")
    e("s_memrealtime s[68:69]")
    e("v_lshrrev_b32 v1, 6, v0\ns_and_b32 s42, s2, 7\nv_readfirstlane_b32 s16, v1\ns_lshr_b32 s43, s2, 3\ns_mov_b32 s67, 0")
    e("s_or_b32 s19, s2, s16\ns_cmp_lg_u32 s19, 0\ns_cbranch_scc1 L_non")
    e("s_waitcnt lgkmcnt(0)")
    srd(a, 28, PDBG, 256)
    e("s_or_b32 s19, s68, 1\nv_mov_b32 v2, 0\nv_mov_b32 v3, s19\ns_mov_b64 exec, 1")
    e("buffer_store_dword v3, v2, s[28:31], 0 offen sc1\ns_mov_b64 exec, -1")
    e("L_non:")
    e("s_cmp_ge_u32 s2, 32\ns_cbranch_scc1 L_g")
    if cfg.get('cpf', 3) & 1:
        e("s_and_b32 s36, s16, 3")
        code_pf(VL, 36)
    e("s_branch L_xr\nL_g:")
    e("s_sub_u32 s43, s43, 4")
    e("s_and_b32 s44, s43, 3\ns_lshr_b32 s45, s43, 2")
    e("s_add_u32 s22, s44, s45\ns_and_b32 s22, s22, 3")
    e("s_and_b32 s46, s42, 1\ns_lshl_b32 s46, s46, 2\ns_add_u32 s44, s44, s46")
    e("s_lshr_b32 s46, s42, 1\ns_mul_i32 s46, s46, 7\ns_add_u32 s45, s45, s46")
    if cfg.get('kxor', 4):
        G1.usexor = True
        e(f"s_mov_b32 s23, 0\ns_and_b32 s94, s42, 1\ns_mul_i32 s94, s94, {cfg.get('kxor', 4)}")
    else:
        e(f"s_and_b32 s23, s42, 1\ns_mul_i32 s23, s23, {cfg.get('koff1', 28)}")
    dequant1()
    stamp(1)
    e(f"s_mul_i32 s20, s44, {56*16384}\ns_lshl_b32 s21, s45, 8")
    srd(a, 8, PV, 3584*3584*2)
    srd(a, 12, PWS, 1024*3584*2, WS_WV)
    def g2_scalars():
        e("s_and_b32 s46, s43, 3\ns_lshr_b32 s47, s43, 2")
        e("s_lshr_b32 s19, s42, 1\ns_lshl_b32 s19, s19, 2\ns_add_u32 s46, s46, s19")
        e("s_and_b32 s19, s42, 1\ns_mul_i32 s19, s19, 7\ns_add_u32 s47, s47, s19")
        e("s_bfe_u32 s23, s42, 0x10001\ns_lshl_b32 s23, s23, 3")
        e("s_lshl_b32 s21, s47, 19\ns_lshl_b32 s20, s46, 18")
        srd(a, 4, PWS, 2048*1024*2, WS_XR)
        srd(a, 8, PWS, 1024*3584*2, WS_WV)
        srd(a, 12, POUT, 2048*3584*2)
    e("s_cmp_ge_u32 s16, 4\ns_cbranch_scc1 L_gc")
    def poll1(t, soff, nl, w):
        l = a.lbl("p1w")
        e(f"s_cmp_lg_u32 s16, 0\ns_cbranch_scc1 {l}")
        poll(t, soff, nl, w)
        e(f"{l}:\ns_barrier")
    if not cfg.get('vearly', 2):
        e("s_mov_b32 s17, s16")
        G1.p_setup()
    if cfg.get('vearly', 2) != 1: G1.p_pre(1)
    e("s_lshl_b32 s28, s44, 10\ns_lshl_b32 s29, s44, 9\ns_add_u32 s29, s29, 20480")
    e("s_lshl_b32 s36, s44, 2\ns_add_u32 s36, s36, s16\ns_sub_u32 s37, 28, s23\ns_add_u32 s37, s37, s45")
    dq_scalars(36, 37, 90, 92, 93)
    e("s_lshl_b32 s30, s45, 4\ns_add_u32 s30, s30, s29\ns_lshl_b32 s19, s16, 2\ns_add_u32 s30, s30, s19")
    poll1(24, 28, 56, 4)
    stamp(2)
    e("s_waitcnt vmcnt(0)")
    G1.p_pre(0)
    Ta = cfg.get('Ta', 3)
    def d2_load():
        srd(a, 12, PSC, 32*3584*2)
        srd(a, 96, PZE, 32*3584*2)
        dq_sload(12, 96, 92)
        srd(a, 12, PQW, 1024*3584*4)
        for h in range(2):
            for ap in range(2): dq_qload(h, ap, 12, 90)
    def d2_conv(h, ap):
        def f():
            if h == 0 and ap == 0: dq_unpack()
            dq_conv(h, ap, 4, 93)
        return f
    def d2_pub():
        e(f"v_mov_b32 v{DT}, 0\nv_mov_b32 v{DT+1}, s{NONCE}\ns_mov_b64 exec, 1")
        e(f"buffer_store_dword v{DT+1}, v{DT}, s[24:27], s30 offen sc1")
        e("s_mov_b64 exec, -1")
    def pre1():
        poll_addr(24, 28, 4); poll_load(24, 29, 4)
    def post1():
        poll(24, 29, 28, 4, loaded=True)
    if cfg.get('sd2', 0):
        mids = []
    else:
        mids = [(Ta, d2_load, None, 0, None)]
        for n, (h, kb) in enumerate([(0, 0), (1, 0), (0, 1), (1, 1)]):
            mids.append((Ta + 1 + n, None, d2_conv(h, kb), 1, None))
        mids.append((Ta + 5, None, None, 0, d2_pub))
    mids.append((cfg.get('T1', 18), pre1, None, 0, post1))
    if cfg.get('dbgP'):
        for i, T in enumerate(cfg.get('dbgT', (14, 28, 42, 54))):
            hit = [k for k, m in enumerate(mids) if m[0] == T]
            if hit:
                m = mids[hit[0]]
                mids[hit[0]] = (m[0], m[1], m[2], m[3], (lambda i=i, p=m[4]: ((p() if p else None), stamp(3 + i, 'P'))))
            else:
                mids.append((T, None, None, 0, (lambda i=i: stamp(3 + i, 'P'))))
        mids.sort(key=lambda m: m[0])
    G1.p_loop(last_op=0, mid=mids)
    stamp(3)
    g2_scalars()
    G2.p_setup()
    e("s_lshl_b32 s28, s46, 7\ns_add_u32 s28, s28, 16384\ns_lshl_b32 s19, s23, 2\ns_add_u32 s28, s28, s19\ns_xor_b32 s29, s28, 32")
    e("s_lshl_b32 s30, s47, 8\ns_add_u32 s30, s30, 8192\ns_lshl_b32 s19, s23, 4\ns_add_u32 s30, s30, s19\ns_xor_b32 s31, s30, 128")
    e("s_barrier")
    poll1(24, 28, 8, 1)
    stamp(4)
    G2.p_pre(0)
    poll1(24, 30, 32, 1)
    stamp(5)
    e("s_waitcnt vmcnt(0)")
    G2.p_pre(1)
    def pre2():
        poll_addr(24, 8, 1); poll_load(24, 29, 1)
        poll_addr(32, 32, 1); poll_load(32, 31, 1)
    def post2():
        poll(24, 29, 8, 1, loaded=True)
        poll(32, 31, 32, 1, loaded=True)
    G2.p_loop(last_op=1, mid=[(cfg.get('T2', 3), pre2, None, 0, post2)])
    stamp_out(32)
    e("s_endpgm")
    e("L_gc:")
    e(f"v_and_b32 v{VL}, 63, v0")
    e("s_bfe_u32 s17, s16, 0x10001\ns_and_b32 s18, s16, 1")
    if cfg.get('cprio', 2): e(f"s_setprio {cfg.get('cprio', 2)}")
    if cfg.get('xpf', 0):
        srd(a, 28, PX, 2048*1024*2)
        e(f"s_sub_u32 s36, s2, 32\ns_lshl_b32 s36, s36, 2\ns_and_b32 s37, s16, 3\ns_add_u32 s36, s36, s37\ns_lshl_b32 s36, s36, 13\nv_lshl_add_u32 v2, v{VL}, 7, s36")
        e(f"v_subrev_u32 v4, 0x400000, v2")
        e(f"buffer_load_dword v{VL+1}, v2, s[28:31], 0 offen")
        srd(a, 28, PU, 1024*1024*2)
        e(f"buffer_load_dword v{VL+1}, v4, s[28:31], 0 offen")
    acc, nPw, nQw, FR = G1.c_body(VL, lambda: stamp(2), lambda: stamp(3), prebar=1)
    t = FR + 40
    e("s_lshr_b32 s36, s45, 1\ns_lshl_b32 s36, s36, 4\ns_lshl_b32 s37, s44, 1\ns_add_u32 s36, s36, s37\ns_add_u32 s36, s36, s17\ns_lshl_b32 s36, s36, 15")
    e("s_and_b32 s37, s45, 1\ns_lshl_b32 s37, s37, 14\ns_add_u32 s36, s36, s37\ns_lshl_b32 s37, s18, 13\ns_add_u32 s36, s36, s37\ns_add_u32 s37, s36, 4096")
    e(f"s_lshl_b32 s38, s18, 2\nv_xor_b32 v{t+4}, s38, v{VL}")
    for bq in range(nQw): e(f"v_xor_b32 v{t+bq}, {bq}, v{t+4}\nv_lshlrev_b32 v{t+bq}, 4, v{t+bq}")
    k = 0
    for bq in range(nQw):
        for m in range(nPw // 2):
            d = FR + 4 * k; k += 1
            pack4(a, d, acc(2*m, bq), acc(2*m+1, bq))
            e(f"buffer_store_dwordx4 v[{d}:{d+3}], v{t+bq}, s[12:15], s{36+(bq>>1)} offen offset:{m*1024+(bq&1)*2048} sc1")
    e("s_barrier")
    e("s_lshr_b32 s40, s45, 1\ns_lshl_b32 s40, s40, 8\ns_and_b32 s41, s45, 1\ns_lshl_b32 s41, s41, 6\ns_add_u32 s40, s40, s41")
    e("s_lshr_b32 s41, s44, 2\ns_lshl_b32 s41, s41, 7\ns_add_u32 s40, s40, s41\ns_and_b32 s41, s44, 3\ns_lshl_b32 s41, s41, 4\ns_add_u32 s40, s40, s41")
    e("s_and_b32 s41, s16, 3\ns_lshl_b32 s41, s41, 2\ns_add_u32 s40, s40, s41\ns_add_u32 s40, s40, 8192")
    publish(t + 8, 40)
    stamp(4)
    g2_scalars()
    acc, nPw, nQw, FR = G2.c_body(VL, lambda: stamp(5), lambda: stamp(6), prebar=2)
    t = FR + 90
    e(f"v_lshrrev_b32 v{t}, 4, v{VL}\nv_mul_u32_u24 v{t}, {4*7168}, v{t}")
    e(f"v_and_b32 v{t+1}, 15, v{VL}\nv_lshl_add_u32 v{t+1}, v{t+1}, 4, v{t}")
    e(f"s_lshl_b32 s36, s46, 1\ns_add_u32 s36, s36, s17\ns_mul_i32 s36, s36, {64*7168}\ns_lshl_b32 s37, s47, 9\ns_add_u32 s36, s36, s37\ns_lshl_b32 s37, s18, 8\ns_add_u32 s36, s36, s37")
    k = 0
    of = cfg.get('outflags', 'nt')
    for pb in range(nPw):
        for r in range(4):
            d = FR + 4 * k; k += 1
            e(f"s_add_u32 s37, s36, {(pb*16+r)*7168}")
            for j in range(4): e(f"v_cvt_pk_bf16_f32 v{d+j}, v{acc(pb,2*j)+r}, v{acc(pb,2*j+1)+r}")
            e(f"buffer_store_dwordx4 v[{d}:{d+3}], v{t+1}, s[12:15], s37 offen {of}")
    stamp_out(0)
    e("s_endpgm")
    e("L_xr:")
    e("s_waitcnt lgkmcnt(0)")
    if cfg.get('spf', 0):
        srd(a, 8, PV, 3584*3584*2)
        e("s_and_b32 s44, s42, 1\ns_lshl_b32 s44, s44, 2\ns_add_u32 s44, s44, s43\ns_lshl_b32 s44, s44, 3\ns_add_u32 s44, s44, s16\ns_lshl_b32 s44, s44, 6")
        e(f"s_lshr_b32 s45, s42, 1\ns_mul_i32 s45, s45, 1792\ns_add_u32 s45, s45, {cfg.get('sp0', 2)*64*7168}")
        e(f"v_and_b32 v1, 63, v0\nv_add_u32 v1, s44, v1\ns_mov_b32 s46, {(1<<32)//14+1}\ns_movk_i32 s47, 7168")
        for r in range(cfg['spf']):
            e("v_mul_hi_u32 v2, v1, s46\nv_mul_u32_u24 v3, 14, v2\nv_sub_u32 v3, v1, v3\nv_mul_lo_u32 v2, v2, s47\nv_lshl_add_u32 v2, v3, 7, v2")
            e(f"buffer_load_dword v{VL+1}, v2, s[8:11], s45 offen\nv_add_u32 v1, 4096, v1")
    srd(a, 4, PU, 1024*1024*2)
    srd(a, 8, PX, 2048*1024*2)
    srd(a, 12, PWS, 2048*1024*2, WS_XR)
    e("s_mov_b32 s46, 0")
    def xr_scalars():
        e("s_and_b32 s45, s43, 1\ns_bfe_u32 s44, s43, 0x10001\ns_xor_b32 s22, s44, s45")
        e("s_lshl_b32 s47, s42, 1\ns_add_u32 s45, s45, s47")
        e("s_lshr_b32 s47, s42, 1\ns_xor_b32 s47, s46, s47\ns_and_b32 s47, s47, 1\ns_lshl_b32 s47, s47, 1\ns_add_u32 s44, s44, s47")
        e("s_and_b32 s23, s42, 1\ns_lshr_b32 s47, s42, 2\ns_lshl_b32 s47, s47, 1\ns_add_u32 s23, s23, s47\ns_lshl_b32 s23, s23, 2")
        e("s_lshl_b32 s20, s44, 9\ns_lshl_b32 s21, s45, 18")
    e("s_cmp_ge_u32 s16, 4\ns_cbranch_scc1 L_xc")
    e("s_mov_b32 s17, s16")
    e("L_xp:")
    xr_scalars()
    GX.p_setup()
    GX.p_loop()
    e("s_add_u32 s46, s46, 1\ns_cmp_lt_u32 s46, 2\ns_cbranch_scc1 L_xp")
    stamp_out(32)
    e("s_endpgm")
    e("L_xc:")
    e(f"v_and_b32 v{VL}, 63, v0")
    e("s_bfe_u32 s17, s16, 0x10001\ns_and_b32 s18, s16, 1")
    srd(a, 28, PDBG, 256)
    srd(a, 24, PWS, 32768, WS_FL)
    e("L_xc2:")
    xr_scalars()
    acc, nPw, nQw, FR = GX.c_body(VL, lambda: stamp(2), lambda: stamp(3))
    t = FR + 80
    e(f"v_lshlrev_b32 v{t}, 4, v{VL}")
    e("s_lshl_b32 s36, s45, 4\ns_lshl_b32 s37, s44, 2\ns_add_u32 s36, s36, s37\ns_lshl_b32 s37, s17, 1\ns_add_u32 s36, s36, s37")
    e("s_lshl_b32 s36, s36, 14\ns_lshl_b32 s37, s18, 13\ns_add_u32 s36, s36, s37")
    k = 0
    for mh in range(2):
        for bq in range(nQw):
            e(f"s_add_u32 s37, s36, {mh*16384 + bq*2048}")
            for kb in range(2):
                m = mh*2 + kb
                d = FR + 4 * k; k += 1
                pack4(a, d, acc(2*m, bq), acc(2*m+1, bq))
                e(f"buffer_store_dwordx4 v[{d}:{d+3}], v{t}, s[12:15], s37 offen offset:{kb*1024} sc1")
    e(f"v_mov_b32 v{t+2}, 0")
    get_nonce(t + 2)
    e("s_lshl_b32 s40, s45, 7\ns_lshl_b32 s41, s44, 4\ns_add_u32 s40, s40, s41\ns_and_b32 s41, s16, 3\ns_lshl_b32 s41, s41, 2\ns_add_u32 s40, s40, s41\ns_add_u32 s40, s40, 16384")
    publish(t + 4, 40)
    if cfg.get('cpf', 3) & 2:
        e("s_and_b32 s36, s16, 3")
        code_pf(t + 6, 36)
    if cfg.get('stamp'):
        l = a.lbl("sx")
        e(f"s_cmp_lg_u32 s46, 0\ns_cbranch_scc1 {l}")
        stamp(1)
        e(f"{l}:")
    e("s_add_u32 s46, s46, 1\ns_cmp_lt_u32 s46, 2\ns_cbranch_scc1 L_xc2")
    stamp_out(0)
    e("L_end:\ns_endpgm")
    e('.section .rodata,"a"\n.p2align 6')
    e(f""".amdhsa_kernel {KN}
  .amdhsa_next_free_vgpr 252
  .amdhsa_next_free_sgpr 102
  .amdhsa_accum_offset 252
  .amdhsa_group_segment_fixed_size 0
  .amdhsa_kernarg_size 72
  .amdhsa_user_sgpr_count 2
  .amdhsa_user_sgpr_kernarg_segment_ptr 1
  .amdhsa_system_sgpr_workgroup_id_x 1
  .amdhsa_float_denorm_mode_32 3
.end_amdhsa_kernel""")
    return a.text()

if __name__ == "__main__":
    out = sys.argv[1]
    cfg = {}
    for kv in sys.argv[2:]:
        k, v = kv.split("=", 1)
        cfg[k] = eval(v)
    open(out, "w").write(build(cfg))
```

```python
import sys

WS_WQ = 0
WS_WV = 8 << 20
WS_XR = 16 << 20
WS_FL = 24 << 20
WS_STAMP = 0xff00000
KN = "standalone__weight_only_int_quip__prompt_kernel"
PX, PQW, PSC, PZE, PU, PV, POUT, PDBG, PWS = 48, 50, 52, 54, 56, 58, 60, 62, 64
NONCE = 66

class A:
    def __init__(s): s.L = []; s.n = 0
    def e(s, t):
        for ln in t.split("\n"): s.L.append(ln)
    def lbl(s, p): s.n += 1; return f"{p}_{s.n}"
    def text(s): return "\n".join(s.L) + "\n"

def srd(a, d, p, nbytes, off=0):
    if off: a.e(f"s_add_u32 s{d}, s{p}, {off}\ns_addc_u32 s{d+1}, s{p+1}, 0")
    else: a.e(f"s_mov_b32 s{d}, s{p}\ns_mov_b32 s{d+1}, s{p+1}")
    a.e(f"s_mov_b32 s{d+2}, {nbytes}\ns_mov_b32 s{d+3}, 0x20000")

class Op:
    def __init__(s, kind, nblk, stepbytes, pitch=0, lay='kg', kmap='nat', flags=''):
        s.lay = lay; s.kmap = kmap; s.kind = kind; s.nblk = nblk; s.stepbytes = stepbytes; s.pitch = pitch
        s.stage = nblk * 2048; s.npieces = nblk * 2; s.R = nblk * 32; s.flags = flags

class Gemm:
    def __init__(g, a, nm, P, Q, S, lag, nsteps, lead, cfg, rmask=3):
        g.a = a; g.nm = nm; g.ops = [P, Q]; g.S = S; g.lag = lag; g.nsteps = nsteps; g.lead = lead; g.cfg = cfg; g.rmask = rmask
        g.base = [0, P.stage * S]
        g.rot = 0
        g.lds = (P.stage + Q.stage) * S
        g.npw = [P.npieces // 4, Q.npieces // 4]
        g.nld = sum(g.npw)
        g.D = S - 1 - lag
        g.first = (S - (nsteps % S)) % S
        g.sstride = [op.stage // 2 if op.lay == 'perm8' else op.stage for op in g.ops]
    def p_setup(g, nv=8):
        e = g.a.e
        e("v_and_b32 v1, 63, v0")
        g.voff = [[], []]
        for o, op in enumerate(g.ops):
            sb = (20, 21)[o]; n = g.npw[o]
            if op.kind == 'lin':
                e(f"s_mul_i32 s19, s17, {n*1024}\ns_add_u32 s19, s19, s{sb}")
                e(f"v_lshl_add_u32 v{nv}, v1, 4, s19")
                g.voff[o].append(nv); nv += 1
                for u in range(1, n):
                    e(f"v_add_u32 v{nv}, {u*1024}, v{g.voff[o][0]}")
                    g.voff[o].append(nv); nv += 1
            elif op.kind == 'tr':
                cpr = op.R // 16; rpp = 1024 // op.R; sh = cpr.bit_length() - 1
                for u in range(n):
                    r = nv; nv += 1; g.voff[o].append(r)
                    e(f"s_mul_i32 s19, s17, {n*rpp}\ns_add_u32 s19, s19, {u*rpp}")
                    e(f"v_lshrrev_b32 v2, {sh}, v1\nv_add_u32 v2, s19, v2")
                    e(f"v_and_b32 v3, {cpr-1}, v1")
                    if op.kmap == 'nat':
                        e("v_and_b32 v4, 3, v2\nv_bfe_u32 v5, v2, 3, 1\nv_lshl_add_u32 v4, v5, 2, v4\nv_lshlrev_b32 v4, 1, v4")
                    else:
                        e("v_and_b32 v4, 7, v2\nv_lshlrev_b32 v4, 1, v4")
                    e("v_xor_b32 v3, v3, v4")
                    e(f"v_mul_u32_u24 v2, {op.pitch}, v2")
                    if getattr(op, 'splitcol', False):
                        e(f"v_lshrrev_b32 v4, 3, v3\nv_mul_lo_u32 v4, v4, s3\nv_add_u32 v2, v2, v4")
                    e(f"v_lshl_add_u32 v2, v3, 4, v2\nv_add_u32 v{r}, s{sb}, v2")
            else:
                e(f"s_mul_i32 s19, s17, {n//2*16}")
                e(f"v_lshrrev_b32 v2, 2, v1\nv_add_u32 v2, s19, v2\nv_mul_u32_u24 v2, {op.pitch}, v2")
                e(f"v_lshrrev_b32 v3, 4, v1\nv_sub_u32 v3, 0, v3\nv_xor_b32 v3, v3, v1\nv_and_b32 v3, 3, v3")
                e(f"v_lshl_add_u32 v2, v3, 4, v2\nv_add_u32 v2, s{sb}, v2")
                for u in range(n):
                    r = nv; nv += 1; g.voff[o].append(r)
                    e(f"v_add_u32 v{r}, {(u>>1)*16*op.pitch + (u&1)*64}, v2")
        for o, op in enumerate(g.ops):
            if op.lay == 'perm8':
                e(f"s_lshr_b32 s19, s17, 1\ns_mul_i32 s{32+o}, s19, {op.stage//2*g.S}\ns_and_b32 s19, s17, 1\ns_mul_i32 s19, s19, {g.npw[o]*1024}\ns_add_u32 s{32+o}, s{32+o}, s19")
            else:
                e(f"s_mul_i32 s{32+o}, s17, {g.npw[o]*1024}")
            if g.base[o]: e(f"s_add_u32 s{32+o}, s{32+o}, {g.base[o]}")
        g.p_rewind()
        return nv
    def p_rewind(g):
        g.a.e(f"s_mov_b32 s34, 0\ns_mov_b32 s35, {(g.first + g.rot) % g.S}")
    def p_issue(g, which=None):
        e = g.a.e; P, Q = g.ops
        if which is None: which = g.cfg.get('order_' + g.nm, (1, 0))
        if getattr(g, 'seq2', False):
            e(f"s_add_u32 s37, s22, {g.nsteps - g.lead}\ns_cmp_gt_u32 s34, s37\ns_cselect_b32 s37, 0, 1\ns_sub_u32 s37, s34, s37")
            e(f"s_and_b32 s36, s37, {g.rmask}\ns_cmp_eq_u32 s36, s22\ns_cselect_b32 s36, {g.lead}, 0\ns_add_u32 s36, s36, s37")
            e(f"s_cmp_eq_u32 s34, 0\ns_cselect_b32 s36, s22, s36\ns_add_u32 s36, s36, s23")
            e(f"s_sub_u32 s37, s36, {g.nsteps}\ns_cmp_ge_u32 s36, {g.nsteps}\ns_cselect_b32 s36, s37, s36")
        else:
            e(f"s_and_b32 s36, s34, {g.rmask}\ns_cmp_eq_u32 s36, s22")
            e(f"s_cselect_b32 s36, {g.lead}, 0\ns_add_u32 s36, s36, s34\ns_add_u32 s36, s36, s23")
            e(f"s_sub_u32 s37, s36, {g.nsteps}\ns_cmp_ge_u32 s36, {g.nsteps}\ns_cselect_b32 s36, s37, s36")
        if getattr(g, 'usexor', False): e("s_xor_b32 s36, s36, s94")
        for o in which:
            e(f"s_mul_i32 s{38+o}, s36, {g.ops[o].stepbytes}")
            e(f"s_mul_i32 s{40+o}, s35, {g.sstride[o]}\ns_add_u32 s{40+o}, s{40+o}, s{32+o}")
        for o in which:
            for u in range(g.npw[o]):
                e(f"s_add_u32 m0, s{40+o}, {u*1024}")
                e("s_nop 0")
                e(f"buffer_load_dwordx4 v{g.voff[o][u]}, s[{4+4*o}:{7+4*o}], s{38+o} offen {g.ops[o].flags} lds")
        e("s_add_u32 s34, s34, 1")
        e(f"s_add_u32 s35, s35, 1\ns_cmp_eq_u32 s35, {g.S}\ns_cselect_b32 s35, 0, s35")
    def p_pre(g, o):
        l = g.a.lbl(g.nm + "_pre")
        g.p_rewind()
        g.a.e(f"{l}:")
        g.p_issue((o,))
        g.a.e(f"s_cmp_lt_u32 s34, 2\ns_cbranch_scc1 {l}")
    def wait_for(g, tag, extra=""):
        n = 0
        for t, c in reversed(g.hist):
            if t == tag: break
            n += c
        else: raise Exception("tag " + str(tag))
        g.a.e(f"s_waitcnt vmcnt({min(n, 63)}){extra}")
    def note(g, tag, n): g.hist.append((tag, n))
    def p_loop(g, last_op=None, mid=None, tailhook=None):
        e = g.a.e; D = g.D; N = g.nsteps
        mid = mid or {}
        g.hist = []
        if last_op is None:
            assert D == 2 and not mid
            l = g.a.lbl(g.nm + "_pl")
            e(f"{l}:")
            g.p_issue()
            e(f"s_cmp_lt_u32 s34, {D}\ns_cbranch_scc1 {l}")
            e(f"s_waitcnt vmcnt({g.nld*(D-1)})\ns_barrier")
            e(f"s_cmp_lt_u32 s34, {N}\ns_cbranch_scc1 {l}")
        else:
            g.note(0, g.npw[last_op]); g.note(1, g.npw[last_op])
            g.wait_for(0, "\ns_barrier")
            cur = 2
            nb = 1
            def one(stage):
                pre, after, post = mid.get(stage, (None, None, None))
                if pre: pre()
                g.p_issue(); g.note(stage, g.nld)
                if after: after()
                return post
            def steady_ok():
                return all(isinstance(t, int) and c == g.nld for t, c in g.hist[-(D-2):]) if D > 2 else True
            while cur < N:
                ramp = (cur - nb) < D - 1 and nb >= 2
                nxt = min([k for k in mid if k >= cur] + [N])
                if not ramp and (cur - nb) == D - 1 and nxt - cur >= 2 and steady_ok():
                    l0 = g.a.lbl(g.nm + "_pm")
                    e(f"{l0}:")
                    g.p_issue()
                    e(f"s_waitcnt vmcnt({g.nld*(D-1)})\ns_barrier")
                    e(f"s_cmp_lt_u32 s34, {nxt}\ns_cbranch_scc1 {l0}")
                    for k in range(cur, nxt): g.note(k, g.nld)
                    nb += nxt - cur; cur = nxt
                    continue
                posts = [one(cur)]; cur += 1
                if ramp and cur < N:
                    posts.append(one(cur)); cur += 1
                g.wait_for(nb)
                for p in posts:
                    if p: p()
                e("s_barrier"); nb += 1
            if tailhook: tailhook()
            while nb <= N:
                if nb < N: g.wait_for(nb, "\ns_barrier")
                else: e("s_barrier")
                nb += 1
            e("s_barrier")
            return
        for i in range(D):
            e(f"s_waitcnt vmcnt({g.nld*max(D-2-i,0)})\ns_barrier")
        e("s_barrier")
    def c_body(g, VL, st0=None, st1=None, prebar=0):
        e = g.a.e; cfg = g.cfg; ops = g.ops; S = g.S; P, Q = ops
        nPw, nQw = P.nblk // 2, Q.nblk // 2
        nacc = nPw * nQw * 4
        FR = nacc; setsz = (nPw + nQw) * 4; AD = FR + 2 * setsz
        def acc(p, q): return (p * nQw + q) * 4
        def frag(st, o, b): return FR + st * setsz + (b if o == 0 else nPw + b) * 4
        tt = FR; vt = VL
        addr = {}; nxt = AD
        for o, op in enumerate(ops):
            nw = (nPw, nQw)[o]; sw = (17, 18)[o]
            nwin = (g.sstride[o] * S + 65535) // 65536
            if op.kind == 'tr':
                e(f"v_lshrrev_b32 v{tt+1}, 4, v{vt}")
                e(f"v_bfe_u32 v{tt+2}, v{vt}, 2, 2")
                e(f"v_and_b32 v{tt+3}, 3, v{vt}")
                e(f"v_lshl_add_u32 v{tt+4}, v{tt+1}, {3 if op.kmap == 'nat' else 2}, v{tt+2}")
                e(f"v_mul_u32_u24 v{tt+4}, {op.R}, v{tt+4}")
                e(f"v_and_b32 v{tt+5}, 1, v{tt+1}")
                e(f"v_lshl_add_u32 v{tt+5}, v{tt+5}, 2, v{tt+2}")
                e(f"v_lshlrev_b32 v{tt+5}, 1, v{tt+5}")
                e(f"v_lshl_add_u32 v{tt+4}, v{tt+3}, 3, v{tt+4}")
                e(f"s_mul_i32 s19, s{sw}, {2*nw}")
                for b in range(nw):
                    e(f"s_add_u32 s36, s19, {2*b}")
                    e(f"v_xor_b32 v{tt+6}, s36, v{tt+5}")
                    e(f"v_lshl_add_u32 v{tt+6}, v{tt+6}, 4, v{tt+4}")
                    for w in range(nwin):
                        e(f"v_add_u32 v{nxt}, {g.base[o] + w*65536}, v{tt+6}")
                        addr[(o, b, w)] = nxt; nxt += 1
            elif op.lay == 'perm8':
                assert nw == 8 and nwin == 1
                e(f"s_mul_i32 s19, s{sw}, {op.stage//2*S}\ns_add_u32 s19, s19, {g.base[o]}")
                e(f"v_bfe_u32 v{tt+1}, v{vt}, 1, 3")
                e(f"v_lshl_add_u32 v{tt+2}, v{tt+1}, 11, s19")
                e(f"v_lshrrev_b32 v{tt+3}, 4, v{vt}\nv_lshl_add_u32 v{tt+2}, v{tt+3}, 8, v{tt+2}")
                e(f"v_and_b32 v{tt+3}, 1, v{vt}\nv_lshl_add_u32 v{tt+2}, v{tt+3}, 7, v{tt+2}")
                for b in range(nw):
                    e(f"v_xor_b32 v{tt+3}, {b}, v{tt+1}\nv_lshl_add_u32 v{nxt}, v{tt+3}, 4, v{tt+2}")
                    addr[(o, b, 0)] = nxt; nxt += 1
            else:
                e(f"s_mul_i32 s19, s{sw}, {nw*2048}")
                if op.lay == 'kg':
                    e(f"v_lshl_add_u32 v{tt+6}, v{vt}, 4, s19")
                else:
                    e(f"v_and_b32 v{tt+1}, 15, v{vt}\nv_lshl_add_u32 v{tt+6}, v{tt+1}, 6, s19")
                    e(f"v_lshrrev_b32 v{tt+1}, 2, v{tt+1}\nv_sub_u32 v{tt+1}, 0, v{tt+1}\nv_lshrrev_b32 v{tt+2}, 4, v{vt}\nv_xor_b32 v{tt+1}, v{tt+1}, v{tt+2}\nv_and_b32 v{tt+1}, 3, v{tt+1}")
                    e(f"v_lshl_add_u32 v{tt+6}, v{tt+1}, 4, v{tt+6}")
                for w in range(nwin):
                    e(f"v_add_u32 v{nxt}, {g.base[o] + w*65536}, v{tt+6}")
                    addr[(o, None, w)] = nxt; nxt += 1
        assert nxt <= VL, (nxt, VL)
        for i in range(0, nacc, 2): e(f"v_mov_b64 v[{i}:{i+1}], 0")
        def rd1(slot, kb, st, o, b):
            op = ops[o]; f = frag(st, o, b); out = []; slot = (slot + g.rot) % S
            if op.kind == 'tr':
                for t in range(2):
                    off = slot * op.stage + {'nat': kb*32 + t*4, 'split': kb*32 + t*16, 'split64': kb*16 + t*32}[op.kmap] * op.R
                    w, off = off // 65536, off % 65536
                    out.append((f"ds_read_b64_tr_b16 v[{f+2*t}:{f+2*t+1}], v{addr[(o,b,w)]} offset:{off}", (o, b)))
            elif op.lay == 'perm8':
                out.append((f"ds_read_b128 v[{f}:{f+3}], v{addr[(o,b,0)]} offset:{slot*g.sstride[o] + kb*1024}", (o, b)))
            else:
                off = slot * op.stage + b * 2048 + kb * 1024
                w, off = off // 65536, off % 65536
                out.append((f"ds_read_b128 v[{f}:{f+3}], v{addr[(o,None,w)]} offset:{off}", (o, b)))
            return out
        morder = []
        if nPw >= nQw:
            for p in range(nPw):
                for q in (range(nQw) if p % 2 == 0 else range(nQw - 1, -1, -1)): morder.append((p, q))
        else:
            for q in range(nQw):
                for p in (range(nPw) if q % 2 == 0 else range(nPw - 1, -1, -1)): morder.append((p, q))
        forder = []
        for (p, q) in morder:
            for f in ((0, p), (1, q)):
                if f not in forder: forder.append(f)
        def reads(slot, kb, st):
            out = []
            for (o, b) in forder: out += rd1(slot, kb, st, o, b)
            return out
        R = len(reads(0, 0, 0))
        lastpos = {}
        for i, (_, f) in enumerate(reads(0, 0, 0)): lastpos[f] = i
        def half(st, rd, barrier, tail=""):
            rd = list(rd); k = 0; waited = -1
            for i, (p, q) in enumerate(morder):
                if barrier and i == 0:
                    if g.lag == 0:
                        e("s_waitcnt lgkmcnt(0)"); waited = R
                    e("s_barrier")
                need = max(lastpos[(0, p)], lastpos[(1, q)])
                if need > waited:
                    e(f"s_waitcnt lgkmcnt({min(R - 1 - need + k, 15)})")
                    waited = need
                c = acc(p, q); fp = frag(st, 0, p); fq = frag(st, 1, q)
                e(f"v_mfma_f32_16x16x32_bf16 v[{c}:{c+3}], v[{fp}:{fp+3}], v[{fq}:{fq+3}], v[{c}:{c+3}]")
                if rd:
                    e(rd.pop(0)[0]); k += 1
                if i == len(morder) - 2 and tail: e(tail)
            assert not rd
        for _ in range(prebar): e("s_barrier")
        e("s_barrier")
        if st0: st0()
        for r, _ in reads(g.first, 0, 0): e(r)
        e(f"s_mov_b32 s19, {(g.nsteps + g.first) // S}")
        if g.first: e(f"s_branch {g.nm}_c{g.first}")
        e(".p2align 6")
        for u in range(S):
            e(f"{g.nm}_c{u}:")
            half(0, reads(u, 1, 1), False)
            half(1, reads((u + 1) % S, 0, 0), True, "s_sub_u32 s19, s19, 1\ns_cmp_lg_u32 s19, 0" if u == S - 1 else "")
        e(f"s_cbranch_scc1 {g.nm}_c0")
        e("s_waitcnt lgkmcnt(0)\ns_barrier")
        if st1: st1()
        e("s_nop 7")
        return acc, nPw, nQw, FR

def pack4(a, dst, c0, c1):
    a.e(f"v_cvt_pk_bf16_f32 v{dst}, v{c0}, v{c0+1}\nv_cvt_pk_bf16_f32 v{dst+1}, v{c0+2}, v{c0+3}")
    a.e(f"v_cvt_pk_bf16_f32 v{dst+2}, v{c1}, v{c1+1}\nv_cvt_pk_bf16_f32 v{dst+3}, v{c1+2}, v{c1+3}")

SPIN = 1 << 15
def build(cfg):
    a = A(); e = a.e
    stf = cfg.get('stflags', 'sc1'); ldf = cfg.get('hflags', 'sc1')
    VL = 250
    def stamp(i, dbg=False):
        if (cfg.get('dbgD') or cfg.get('dbgP')) and i in (3, 4, 5, 6) and not dbg: return
        if dbg is True and not cfg.get('dbgD'): return
        if dbg == 'P' and not cfg.get('dbgP'): return
        if cfg.get('stamp'): e(f"s_memrealtime s[{68+2*i}:{69+2*i}]\ns_waitcnt lgkmcnt(0)")
    def stamp_out(t):
        if not cfg.get('stamp'): return
        e("s_waitcnt vmcnt(0)")
        stamp(7)
        if cfg.get('dbgout'):
            l = a.lbl("so")
            srd(a, 24, PDBG, 256)
            for i in range(8): e(f"s_sub_u32 s19, s{68+2*i}, s{NONCE}\nv_mov_b32 v{t+i}, s19")
            e(f"v_mov_b32 v{t+11}, 0\ns_cmp_lg_u32 s16, 4\ns_cbranch_scc1 {l}")
            e(f"s_cmp_eq_u32 s2, 101\ns_cselect_b32 s86, 4, 0\ns_cmp_eq_u32 s2, 5\ns_cselect_b32 s86, 36, s86\ns_cmp_eq_u32 s86, 0\ns_cbranch_scc1 {l}")
            e("s_mov_b64 exec, 1")
            for i in range(8): e(f"buffer_store_dword v{t+i}, v{t+11}, s[24:27], s86 offen offset:{4*i}")
            e(f"{l}:")
            return
        e("s_memtime s[86:87]\ns_getreg_b32 s88, hwreg(HW_REG_XCC_ID)\ns_waitcnt lgkmcnt(0)")
        srd(a, 24, PWS, 0x10000000)
        for i in range(8): e(f"v_mov_b32 v{t+i}, s{68+2*i}")
        e(f"s_sub_u32 s86, s86, s84\nv_mov_b32 v{t+8}, s86\nv_mov_b32 v{t+9}, s88\nv_mov_b32 v{t+10}, s100\nv_mov_b32 v{t+11}, 0")
        e(f"s_lshl_b32 s86, s2, 7\ns_and_b32 s87, s16, 4\ns_xor_b32 s87, s87, 4\ns_lshl_b32 s87, s87, 4\ns_add_u32 s86, s86, s87\ns_add_u32 s86, s86, {WS_STAMP}")
        l = a.lbl("st")
        e(f"s_and_b32 s87, s16, 3\ns_cmp_lg_u32 s87, 0\ns_cbranch_scc1 {l}")
        e("s_mov_b64 exec, 1")
        for i in range(3): e(f"buffer_store_dwordx4 v[{t+4*i}:{t+4*i+3}], v{t+11}, s[24:27], s86 offen offset:{16*i}")
        e(f"{l}:")
    def get_nonce(t, first_loaded=False):
        l = a.lbl("nn"); d = a.lbl("nd")
        rd = f"v_readfirstlane_b32 s{NONCE}, v{t+2}\nv_readfirstlane_b32 s{NONCE+1}, v{t+3}\ns_nop 3\ns_cmp_lg_u32 s{NONCE}, 0\ns_cbranch_scc1 {d}"
        e(f"s_mov_b32 s19, {SPIN}")
        if first_loaded: e(rd)
        e(f"{l}:")
        e(f"buffer_load_dwordx2 v[{t+2}:{t+3}], v{t}, s[28:31], 0 offen sc1\ns_waitcnt vmcnt(0)")
        e(rd)
        e(f"s_sleep 4\ns_sub_u32 s19, s19, 1\ns_cmp_lg_u32 s19, 0\ns_cbranch_scc1 {l}")
        e(f"{d}:")
    def flag_store(t, soff):
        e(f"v_mov_b32 v{t}, 0\nv_mov_b32 v{t+2}, s{NONCE}\nv_mov_b32 v{t+3}, s{NONCE+1}\ns_mov_b64 exec, 1")
        e(f"buffer_store_dwordx2 v[{t+2}:{t+3}], v{t}, s[24:27], s{soff} offen sc1")
        e("s_mov_b64 exec, -1")
    def flag_store0(t, soff):
        l = a.lbl("f0")
        e(f"s_cmp_lg_u32 s16, 0\ns_cbranch_scc1 {l}")
        flag_store(t, soff)
        e(f"{l}:")
    def poll_addr(t, nlanes):
        e(f"v_min_u32 v{t}, {nlanes-1}, v1\nv_lshlrev_b32 v{t}, 3, v{t}")
    def poll_load(t, soff):
        e(f"buffer_load_dwordx2 v[{t+2}:{t+3}], v{t}, s[24:27], s{soff} offen sc1")
    def poll_check(t, done):
        e(f"v_cmp_ne_u64 vcc, s[{NONCE}:{NONCE+1}], v[{t+2}:{t+3}]")
        e(f"s_nop 4\ns_cmp_eq_u64 vcc, 0\ns_cbranch_scc1 {done}")
    def poll(t, soff, nlanes, loaded=False):
        l = a.lbl("pl"); d = a.lbl("pd")
        if loaded: poll_check(t, d)
        else: poll_addr(t, nlanes)
        e(f"s_mov_b32 s19, {SPIN}")
        e(f"{l}:")
        poll_load(t, soff)
        e("s_waitcnt vmcnt(0)")
        poll_check(t, d)
        e(f"s_add_u32 s100, s100, 1\ns_sleep {cfg.get('psleep', 2)}\ns_sub_u32 s19, s19, 1\ns_cmp_lg_u32 s19, 0\ns_cbranch_scc1 {l}")
        e(f"{d}:")
    B = 40
    DL, DR, DKG, DVQ, DVS, DVO, DVQ2, DT = B, B+1, B+2, B+3, B+4, B+5, B+6, B+8
    DUN = B + 12; DQV = B + 44; DSV = B + 76; DNV = B + 92
    def dq_lanes():
        e(f"v_and_b32 v{DL}, 63, v0")
        e(f"v_lshrrev_b32 v{DKG}, 4, v{DL}\nv_bfe_u32 v{DR}, v{DL}, 3, 1\nv_lshl_add_u32 v{DR}, v{DKG}, 2, v{DR}")
        e(f"v_sub_u32 v{DKG}, 0, v{DKG}\nv_and_b32 v{DKG}, 3, v{DKG}\nv_xor_b32 v{DKG}, v{DKG}, v{DL}\nv_and_b32 v{DKG}, 7, v{DKG}")
        e(f"v_mul_u32_u24 v{DVQ}, 14336, v{DR}\nv_lshl_add_u32 v{DVQ}, v{DKG}, 4, v{DVQ}\nv_add_u32 v{DVQ2}, {2*14336}, v{DVQ}")
        e(f"v_lshlrev_b32 v{DVS}, 3, v{DKG}")
        e(f"v_bfe_u32 v{DVO}, v{DL}, 2, 1\nv_lshlrev_b32 v{DVO}, 10, v{DVO}\nv_lshl_add_u32 v{DVO}, v{DR}, 6, v{DVO}\nv_and_b32 v{DT}, 3, v{DL}\nv_lshl_add_u32 v{DVO}, v{DT}, 4, v{DVO}")
    def dq_scalars(sg, sks, sq, ss, so, sh=None):
        e(f"s_mul_i32 s{sq}, s{sg}, {32*14336}\ns_lshl_b32 s19, s{sks}, 8\ns_add_u32 s{sq}, s{sq}, s19")
        if sh is None: e(f"s_add_u32 s{sq+1}, s{sq}, {16*14336}")
        else: e(f"s_mul_i32 s19, s{sh}, {16*14336}\ns_add_u32 s{sq}, s{sq}, s19")
        e(f"s_mul_i32 s{ss}, s{sg}, 7168\ns_lshl_b32 s19, s{sks}, 7\ns_add_u32 s{ss}, s{ss}, s19")
        e(f"s_mul_i32 s{so}, s44, 56\ns_add_u32 s{so}, s{so}, s{sks}\ns_lshl_b32 s{so}, s{so}, 14")
        e(f"s_and_b32 s19, s{sg}, 3\ns_lshl_b32 s19, s19, 12\ns_add_u32 s{so}, s{so}, s19")
        if sh is not None: e(f"s_lshl_b32 s19, s{sh}, 11\ns_add_u32 s{so}, s{so}, s19")
    def dq_qload(h, ap, rq, sq):
        q = DQV + (h*2+ap)*8; v = DVQ2 if ap else DVQ
        e(f"buffer_load_dwordx4 v[{q}:{q+3}], v{v}, s[{rq}:{rq+3}], s{sq+h} offen nt")
        e(f"buffer_load_dwordx4 v[{q+4}:{q+7}], v{v}, s[{rq}:{rq+3}], s{sq+h} offen offset:128 nt")
    def dq_sload(rs, rz, ss):
        s_ = DSV
        for hf in range(2):
            e(f"buffer_load_dwordx2 v[{s_+2*hf}:{s_+2*hf+1}], v{DVS}, s[{rs}:{rs+3}], s{ss} offen offset:{hf*64}")
            e(f"buffer_load_dwordx2 v[{s_+4+2*hf}:{s_+5+2*hf}], v{DVS}, s[{rz}:{rz+3}], s{ss} offen offset:{hf*64}")
    def dq_unpack():
        u = DUN; s_ = DSV
        for j in range(4):
            e(f"v_lshlrev_b32 v{u+2*j}, 16, v{s_+j}\nv_and_b32 v{u+2*j+1}, 0xffff0000, v{s_+j}")
            e(f"v_lshlrev_b32 v{u+8+2*j}, 16, v{s_+4+j}\nv_and_b32 v{u+8+2*j+1}, 0xffff0000, v{s_+4+j}")
    def dq_conv1(h, ap):
        q = DQV + (h*2+ap)*8; T = DT
        for j in range(8): e(f"v_cvt_f32_i32 v{q+j}, v{q+j}")
        for j in range(4): e(f"v_cvt_pk_bf16_f32 v{T+j}, v{q+2*j}, v{q+2*j+1}")
        for j in range(4): e(f"v_lshlrev_b32 v{q+2*j}, 16, v{T+j}\nv_and_b32 v{q+2*j+1}, 0xffff0000, v{T+j}")
    def dq_conv2(h, ap, ro, so):
        q = DQV + (h*2+ap)*8; u = DUN; o = DUN + 16 + (h*2+ap)*4; T = DT
        for j in range(4): e(f"v_pk_add_f32 v[{q+2*j}:{q+2*j+1}], v[{q+2*j}:{q+2*j+1}], v[{u+8+2*j}:{u+9+2*j}] neg_lo:[0,1] neg_hi:[0,1]")
        for j in range(4): e(f"v_cvt_pk_bf16_f32 v{T+j}, v{q+2*j}, v{q+2*j+1}")
        for j in range(4): e(f"v_lshlrev_b32 v{q+2*j}, 16, v{T+j}\nv_and_b32 v{q+2*j+1}, 0xffff0000, v{T+j}")
        for j in range(4): e(f"v_pk_mul_f32 v[{q+2*j}:{q+2*j+1}], v[{q+2*j}:{q+2*j+1}], v[{u+2*j}:{u+2*j+1}]")
        for j in range(4): e(f"v_cvt_pk_bf16_f32 v{o+j}, v{q+2*j}, v{q+2*j+1}")
        e(f"buffer_store_dwordx4 v[{o}:{o+3}], v{DVO}, s[{ro}:{ro+3}], s{so} offen offset:{h*2048+ap*128} sc1")
    def dq_conv(h, ap, ro, so):
        dq_conv1(h, ap); dq_conv2(h, ap, ro, so)
    def dequant1():
        dq_lanes()
        e("s_and_b32 s36, s16, 3\ns_lshl_b32 s37, s44, 2\ns_add_u32 s36, s36, s37")
        dall = cfg.get('dall', 0)
        if dall:
            e("s_lshr_b32 s37, s16, 2\ns_mul_i32 s37, s37, 28\ns_add_u32 s37, s37, s45")
            dq_scalars(36, 37, 38, 40, 41)
        else:
            e("s_add_u32 s37, s23, s45\ns_lshr_b32 s39, s16, 2")
            dq_scalars(36, 37, 38, 40, 41, sh=39)
        e("s_waitcnt lgkmcnt(0)")
        srd(a, 12, PQW, 1024*3584*4)
        dq_qload(0, 0, 12, 38); dq_qload(0, 1, 12, 38)
        srd(a, 24, PSC, 32*3584*2)
        srd(a, 28, PZE, 32*3584*2)
        dq_sload(24, 28, 40)
        if dall: dq_qload(1, 0, 12, 38); dq_qload(1, 1, 12, 38)
        x = 4 if dall else 0
        srd(a, 28, PDBG, 256)
        e(f"v_mov_b32 v{DNV}, 0")
        e(f"buffer_load_dwordx2 v[{DNV+2}:{DNV+3}], v{DNV}, s[28:31], 0 offen sc1")
        srd(a, 4, PWS, 1024*3584*2, WS_WQ)
        stamp(3, True)
        if cfg.get('vearly', 2):
            e(f"s_mul_i32 s20, s44, {56*16384}\ns_lshl_b32 s21, s45, 8\ns_mov_b32 s47, s41")
            if cfg.get('remap', 0): e("s_lshr_b32 s19, s43, 2\ns_cmp_eq_u32 s19, 6\ns_cselect_b32 s3, -12, 2\ns_lshl_b32 s3, s3, 7")
            else: e("s_mov_b32 s3, 0")
            srd(a, 8, PV, 3584*3584*2)
            e("s_and_b32 s17, s16, 3")
            G1.p_setup()
        e(f"s_waitcnt vmcnt({7+x})")
        dq_conv1(0, 0)
        e(f"s_waitcnt vmcnt({5+x})")
        dq_conv1(0, 1)
        e(f"s_waitcnt vmcnt({1+x})")
        stamp(4, True)
        dq_unpack()
        dq_conv2(0, 0, 4, 41); dq_conv2(0, 1, 4, 41)
        if dall:
            e("s_waitcnt vmcnt(5)"); dq_conv(1, 0, 4, 41)
            e("s_waitcnt vmcnt(4)"); dq_conv(1, 1, 4, 41)
        stamp(6, True)
        e(f"s_waitcnt vmcnt({4 if dall else 2})")
        get_nonce(DNV, True)
        srd(a, 24, PWS, 32768, WS_FL)
        e("s_lshl_b32 s28, s44, 8\ns_lshl_b32 s41, s45, 3\ns_add_u32 s46, s28, s41")
        e("s_waitcnt vmcnt(0)\ns_barrier")
        flag_store0(DT, 46)
        e("s_barrier")

    def code_pf(vt, wave_sgpr):
        l = a.lbl("cp")
        e(f"s_getpc_b64 s[38:39]\n{l}:\ns_sub_u32 s38, s38, {l}-{KN}\ns_subb_u32 s39, s39, 0")
        e(f"s_lshl_b32 s19, s{wave_sgpr}, 13\nv_mbcnt_lo_u32_b32 v{vt}, -1, 0\nv_mbcnt_hi_u32_b32 v{vt}, -1, v{vt}\nv_lshl_add_u32 v{vt}, v{vt}, 7, s19")
        e(f"v_min_u32 v{vt}, L_end-{KN}, v{vt}")
        e(f"global_load_dword v{VL+1}, v{vt}, s[38:39]")
    G1 = Gemm(a, "p1", Op('lin', 8, 16384, lay='row', flags=ldf), Op('tr', 8, 64*7168, 7168, kmap='split64'), cfg.get('S1', 4), cfg.get('lag1', 0), 56, cfg.get('lead1', 4), cfg)
    G2 = Gemm(a, "p2", Op('lin', 8, 16384, flags=ldf), Op('lin', 16, 32768, lay='perm8', flags=ldf), 3, 0, 16, cfg.get('lead2', 4), cfg)
    GX = Gemm(a, "px", Op('tr', 16, 64*2048, 2048), Op('gather', 8, 128, 2048, lay='row'), 3, 0, 16, cfg.get('leadx', 2), cfg, rmask=1)
    G1.ops[1].splitcol = True
    G1.seq2 = bool(cfg.get('seq2', 7) & 1); G2.seq2 = bool(cfg.get('seq2', 7) & 2); GX.seq2 = bool(cfg.get('seq2', 7) & 4)
    xe = 1
    if xe:
        G2.base = [114688, 0]; G2.rot = 2; G2.lds = 163840
        assert G1.lds <= 131072
    lds = max(G1.lds, G2.lds, GX.lds)
    e(f"; @launch grid=(256,1,1) block=(512,1,1) lds={lds}")
    e('.amdgcn_target "amdgcn-amd-amdhsa--gfx950"')
    e(f".text\n.globl {KN}\n.p2align 8\n.type {KN},@function\n{KN}:")
    e("s_cmp_ge_u32 s2, 256\ns_cbranch_scc1 L_end")
    e("s_load_dwordx16 s[48:63], s[0:1], 0\ns_load_dwordx2 s[64:65], s[0:1], 64")
    if cfg.get('stamp'):
        e("s_memtime s[84:85]")
        for i in range(1, 8): e(f"s_mov_b64 s[{68+2*i}:{69+2*i}], 0")
    e("s_memrealtime s[68:69]")
    e("v_lshrrev_b32 v1, 6, v0\ns_and_b32 s42, s2, 7\nv_readfirstlane_b32 s16, v1\ns_lshr_b32 s43, s2, 3\ns_mov_b32 s100, 0")
    e("s_or_b32 s19, s2, s16\ns_cmp_lg_u32 s19, 0\ns_cbranch_scc1 L_non")
    e("s_waitcnt lgkmcnt(0)")
    srd(a, 28, PDBG, 256)
    e("s_or_b32 s19, s68, 1\nv_mov_b32 v2, 0\nv_mov_b32 v4, s19\nv_mov_b32 v5, s69\ns_mov_b64 exec, 1")
    e("buffer_store_dwordx2 v[4:5], v2, s[28:31], 0 offen sc1\ns_mov_b64 exec, -1")
    e("L_non:")
    e("s_cmp_ge_u32 s2, 32\ns_cbranch_scc1 L_g")
    if cfg.get('cpf', 3) & 1:
        e("s_and_b32 s36, s16, 3")
        code_pf(VL, 36)
    e("s_branch L_xr\nL_g:")
    e("s_sub_u32 s43, s43, 4")
    e("s_and_b32 s44, s43, 3\ns_lshr_b32 s45, s43, 2")
    e("s_add_u32 s22, s44, s45\ns_and_b32 s22, s22, 3")
    e("s_and_b32 s46, s42, 1\ns_lshl_b32 s46, s46, 2\ns_add_u32 s44, s44, s46")
    e("s_lshr_b32 s46, s42, 1\ns_mul_i32 s46, s46, 7\ns_add_u32 s45, s45, s46")
    if cfg.get('kxor', 4):
        G1.usexor = True
        e(f"s_mov_b32 s23, 0\ns_and_b32 s94, s42, 1\ns_mul_i32 s94, s94, {cfg.get('kxor', 4)}")
    else:
        e(f"s_and_b32 s23, s42, 1\ns_mul_i32 s23, s23, {cfg.get('koff1', 28)}")
    dequant1()
    stamp(1)
    e(f"s_mul_i32 s20, s44, {56*16384}\ns_lshl_b32 s21, s45, 8")
    srd(a, 8, PV, 3584*3584*2)
    srd(a, 12, PWS, 1024*3584*2, WS_WV)
    def g2_scalars():
        e("s_and_b32 s46, s43, 3\ns_lshr_b32 s47, s43, 2")
        e("s_lshr_b32 s19, s42, 1\ns_lshl_b32 s19, s19, 2\ns_add_u32 s46, s46, s19")
        e("s_and_b32 s19, s42, 1\ns_mul_i32 s19, s19, 7\ns_add_u32 s47, s47, s19")
        e("s_bfe_u32 s23, s42, 0x10001\ns_lshl_b32 s23, s23, 3")
        e("s_lshl_b32 s21, s47, 19\ns_lshl_b32 s20, s46, 18")
        srd(a, 4, PWS, 2048*1024*2, WS_XR)
        srd(a, 8, PWS, 1024*3584*2, WS_WV)
        srd(a, 12, POUT, 2048*3584*2)
    e("s_cmp_ge_u32 s16, 4\ns_cbranch_scc1 L_gc")
    def poll1(t, soff, nl, pre=None):
        l = a.lbl("p1w")
        e(f"s_cmp_lg_u32 s16, 0\ns_cbranch_scc1 {l}")
        if pre: pre()
        poll(t, soff, nl)
        e(f"{l}:\ns_barrier")
    if cfg.get('pprio'): e(f"s_setprio {cfg['pprio']}")
    G1.p_pre(1)
    e("s_add_u32 s29, s28, 2048\ns_add_u32 s30, s46, 2048")
    e("s_lshl_b32 s36, s44, 2\ns_add_u32 s36, s36, s16\ns_sub_u32 s37, 28, s23\ns_add_u32 s37, s37, s45")
    dq_scalars(36, 37, 90, 92, 93)
    e("s_lshr_b32 s95, s45, 1\ns_lshl_b32 s95, s95, 7\ns_and_b32 s19, s45, 1\ns_lshl_b32 s19, s19, 5\ns_add_u32 s95, s95, s19")
    e("s_lshr_b32 s19, s44, 2\ns_lshl_b32 s19, s19, 6\ns_add_u32 s95, s95, s19\ns_and_b32 s19, s44, 3\ns_lshl_b32 s19, s19, 3\ns_add_u32 s95, s95, s19\ns_add_u32 s95, s95, 4096")
    poll1(24, 28, 28)
    stamp(2)
    e("s_waitcnt vmcnt(0)")
    G1.p_pre(0)
    Ta = cfg.get('Ta', 3)
    def d2_load():
        srd(a, 12, PSC, 32*3584*2)
        srd(a, 96, PZE, 32*3584*2)
        dq_sload(12, 96, 92)
        srd(a, 12, PQW, 1024*3584*4)
        for h in range(2):
            for ap in range(2): dq_qload(h, ap, 12, 90)
        G1.note('D2L', 12)
    def d2_conv(h, ap):
        def f():
            if h == 0 and ap == 0:
                G1.wait_for('D2L'); dq_unpack()
            dq_conv(h, ap, 4, 93)
            G1.note(('D2S', h, ap), 1)
        return f
    def d2_wait():
        G1.wait_for(('D2S', 1, 1))
    def d2_pub():
        flag_store0(DT, 30)
    def pre1():
        poll_addr(24, 28); poll_load(24, 29); G1.note('PL', 1)
    def post1():
        G1.wait_for('PL')
        poll(24, 29, 28, loaded=True)
    mids = {}
    k = G1.D - 1
    mids[Ta] = (d2_load, None, None)
    for n, (h, ap) in enumerate([(0, 0), (0, 1), (1, 0), (1, 1)]):
        mids[Ta + k + n] = (None, d2_conv(h, ap), None)
    mids[Ta + 2*k + 3] = (None, None, d2_wait)
    mids[Ta + 2*k + 4] = (d2_pub, None, None)
    T1 = cfg.get('T1', 19)
    if k == 1: mids[T1] = (pre1, None, post1)
    else:
        mids[T1 - k + 1] = (pre1, None, None); mids[T1] = (None, None, post1)
    if cfg.get('dbgP'):
        for i, T in enumerate(cfg.get('dbgT', (14, 28, 42, 54))):
            m = mids.get(T, (None, None, None))
            mids[T] = (m[0], m[1], (lambda i=i, p=m[2]: ((p() if p else None), stamp(3 + i, 'P'))))
    def g2_prod_setup():
        g2_scalars()
        G2.p_setup()
        e("s_xor_b32 s29, s28, 64")
        e("s_lshl_b32 s30, s47, 7\ns_add_u32 s30, s30, 4096\ns_lshl_b32 s19, s23, 3\ns_add_u32 s30, s30, s19\ns_xor_b32 s31, s30, 64")
    def prex():
        e("s_and_b32 s28, s43, 3\ns_lshr_b32 s19, s42, 1\ns_lshl_b32 s19, s19, 2\ns_add_u32 s28, s28, s19\ns_lshl_b32 s28, s28, 7\ns_add_u32 s28, s28, 8192")
        e("s_bfe_u32 s19, s42, 0x10001\ns_lshl_b32 s19, s19, 6\ns_add_u32 s28, s28, s19")
        poll_addr(24, 8); poll_load(24, 28); G1.note('XL', 1)
    def postx():
        G1.wait_for('XL')
        poll(24, 28, 8, loaded=True)
    mids[50] = (prex, None, None); mids[52] = (None, None, postx)
    def th():
        g2_prod_setup()
        G2.p_pre(0); G1.note('XP', 2 * G2.npw[0])
    G1.p_loop(last_op=0, mid=mids, tailhook=th)
    stamp(3)
    e("s_barrier")
    stamp(4)
    poll1(24, 30, 8, pre=lambda: flag_store(28, 95))
    stamp(5)
    e("s_waitcnt vmcnt(0)")
    G2.p_pre(1)
    def pre2():
        poll_addr(24, 8); poll_load(24, 29)
        e("v_mov_b32 v32, v24"); poll_load(32, 31)
        G2.note('PL', 2)
    def post2():
        G2.wait_for('PL')
        poll(24, 29, 8, loaded=True)
        poll(32, 31, 8, loaded=True)
    G2.p_loop(last_op=1, mid={cfg.get('T2', 4): (pre2, None, post2)})
    stamp_out(32)
    e("s_endpgm")
    e("L_gc:")
    e(f"v_and_b32 v{VL}, 63, v0")
    e("s_bfe_u32 s17, s16, 0x10001\ns_and_b32 s18, s16, 1")
    if cfg.get('cprio', 2): e(f"s_setprio {cfg.get('cprio', 2)}")
    if cfg.get('xpf', 0):
        srd(a, 28, PX, 2048*1024*2)
        e(f"s_sub_u32 s36, s2, 32\ns_lshl_b32 s36, s36, 2\ns_and_b32 s37, s16, 3\ns_add_u32 s36, s36, s37\ns_lshl_b32 s36, s36, 13\nv_lshl_add_u32 v2, v{VL}, 7, s36")
        e(f"v_subrev_u32 v4, 0x400000, v2")
        e(f"buffer_load_dword v{VL+1}, v2, s[28:31], 0 offen")
        srd(a, 28, PU, 1024*1024*2)
        e(f"buffer_load_dword v{VL+1}, v4, s[28:31], 0 offen")
    acc, nPw, nQw, FR = G1.c_body(VL, lambda: stamp(2), lambda: stamp(3), prebar=1)
    t = FR + 40
    e("s_ashr_i32 s39, s3, 7\ns_add_i32 s39, s39, 1\ns_mul_i32 s39, s39, s18\ns_lshl_b32 s38, s45, 1\ns_add_i32 s39, s39, s38")
    e("s_lshr_b32 s36, s39, 2\ns_lshl_b32 s36, s36, 4\ns_lshl_b32 s37, s44, 1\ns_add_u32 s36, s36, s37\ns_add_u32 s36, s36, s17\ns_lshl_b32 s36, s36, 15")
    e("s_and_b32 s37, s39, 3\ns_lshl_b32 s37, s37, 13\ns_add_u32 s36, s36, s37\ns_add_u32 s37, s36, 4096")
    e(f"s_and_b32 s38, s39, 1\ns_lshl_b32 s38, s38, 2\nv_xor_b32 v{t+4}, s38, v{VL}")
    for bq in range(nQw): e(f"v_xor_b32 v{t+bq}, {bq}, v{t+4}\nv_lshlrev_b32 v{t+bq}, 4, v{t+bq}")
    k = 0
    for bq in range(nQw):
        for m in range(nPw // 2):
            d = FR + 4 * k; k += 1
            pack4(a, d, acc(2*m, bq), acc(2*m+1, bq))
            e(f"buffer_store_dwordx4 v[{d}:{d+3}], v{t+bq}, s[12:15], s{36+(bq>>1)} offen offset:{m*1024+(bq&1)*2048} sc1")
    e("s_waitcnt vmcnt(0)\ns_barrier")
    stamp(4)
    g2_scalars()
    acc, nPw, nQw, FR = G2.c_body(VL, lambda: stamp(5), lambda: stamp(6), prebar=(1 if xe else 2))
    t = FR + 90
    e(f"v_lshrrev_b32 v{t}, 4, v{VL}\nv_mul_u32_u24 v{t}, {4*7168}, v{t}")
    e(f"v_and_b32 v{t+1}, 15, v{VL}\nv_lshl_add_u32 v{t+1}, v{t+1}, 4, v{t}")
    e(f"s_lshl_b32 s36, s46, 1\ns_add_u32 s36, s36, s17\ns_mul_i32 s36, s36, {64*7168}\ns_lshl_b32 s37, s47, 9\ns_add_u32 s36, s36, s37\ns_lshl_b32 s37, s18, 8\ns_add_u32 s36, s36, s37")
    k = 0
    of = cfg.get('outflags', 'nt')
    for pb in range(nPw):
        for r in range(4):
            d = FR + 4 * k; k += 1
            e(f"s_add_u32 s37, s36, {(pb*16+r)*7168}")
            for j in range(4): e(f"v_cvt_pk_bf16_f32 v{d+j}, v{acc(pb,2*j)+r}, v{acc(pb,2*j+1)+r}")
            e(f"buffer_store_dwordx4 v[{d}:{d+3}], v{t+1}, s[12:15], s37 offen {of}")
    stamp_out(0)
    e("s_endpgm")
    e("L_xr:")
    e("s_waitcnt lgkmcnt(0)")
    if cfg.get('spf', 0):
        srd(a, 8, PV, 3584*3584*2)
        e("s_and_b32 s44, s42, 1\ns_lshl_b32 s44, s44, 2\ns_add_u32 s44, s44, s43\ns_lshl_b32 s44, s44, 3\ns_add_u32 s44, s44, s16\ns_lshl_b32 s44, s44, 6")
        e(f"s_lshr_b32 s45, s42, 1\ns_mul_i32 s45, s45, 1792\ns_add_u32 s45, s45, {cfg.get('sp0', 2)*64*7168}")
        e(f"v_and_b32 v1, 63, v0\nv_add_u32 v1, s44, v1\ns_mov_b32 s46, {(1<<32)//14+1}\ns_movk_i32 s47, 7168")
        for r in range(cfg['spf']):
            e("v_mul_hi_u32 v2, v1, s46\nv_mul_u32_u24 v3, 14, v2\nv_sub_u32 v3, v1, v3\nv_mul_lo_u32 v2, v2, s47\nv_lshl_add_u32 v2, v3, 7, v2")
            e(f"buffer_load_dword v{VL+1}, v2, s[8:11], s45 offen\nv_add_u32 v1, 4096, v1")
    srd(a, 4, PU, 1024*1024*2)
    srd(a, 8, PX, 2048*1024*2)
    srd(a, 12, PWS, 2048*1024*2, WS_XR)
    e("s_mov_b32 s46, 0")
    def xr_scalars():
        e("s_and_b32 s45, s43, 1\ns_bfe_u32 s44, s43, 0x10001\ns_xor_b32 s22, s44, s45")
        e("s_lshl_b32 s47, s42, 1\ns_add_u32 s45, s45, s47")
        e("s_lshr_b32 s47, s42, 1\ns_xor_b32 s47, s46, s47\ns_and_b32 s47, s47, 1\ns_lshl_b32 s47, s47, 1\ns_add_u32 s44, s44, s47")
        e("s_and_b32 s23, s42, 1\ns_lshr_b32 s47, s42, 2\ns_lshl_b32 s47, s47, 1\ns_add_u32 s23, s23, s47\ns_lshl_b32 s23, s23, 2")
        e("s_lshl_b32 s20, s44, 9\ns_lshl_b32 s21, s45, 18")
    e("s_cmp_ge_u32 s16, 4\ns_cbranch_scc1 L_xc")
    e("s_mov_b32 s17, s16")
    e("L_xp:")
    xr_scalars()
    GX.p_setup()
    GX.p_loop()
    e("s_add_u32 s46, s46, 1\ns_cmp_lt_u32 s46, 2\ns_cbranch_scc1 L_xp")
    stamp_out(32)
    e("s_endpgm")
    e("L_xc:")
    e(f"v_and_b32 v{VL}, 63, v0")
    e("s_bfe_u32 s17, s16, 0x10001\ns_and_b32 s18, s16, 1")
    srd(a, 28, PDBG, 256)
    srd(a, 24, PWS, 32768, WS_FL)
    e("L_xc2:")
    xr_scalars()
    acc, nPw, nQw, FR = GX.c_body(VL, lambda: stamp(2), lambda: stamp(3))
    t = FR + 80
    e(f"v_lshlrev_b32 v{t}, 4, v{VL}")
    e("s_lshl_b32 s36, s45, 4\ns_lshl_b32 s37, s44, 2\ns_add_u32 s36, s36, s37\ns_lshl_b32 s37, s17, 1\ns_add_u32 s36, s36, s37")
    e("s_lshl_b32 s36, s36, 14\ns_lshl_b32 s37, s18, 13\ns_add_u32 s36, s36, s37")
    k = 0
    for mh in range(2):
        for bq in range(nQw):
            e(f"s_add_u32 s37, s36, {mh*16384 + bq*2048}")
            for kb in range(2):
                m = mh*2 + kb
                d = FR + 4 * k; k += 1
                pack4(a, d, acc(2*m, bq), acc(2*m+1, bq))
                e(f"buffer_store_dwordx4 v[{d}:{d+3}], v{t}, s[12:15], s37 offen offset:{kb*1024} sc1")
    e(f"v_mov_b32 v{t+2}, 0")
    get_nonce(t + 2)
    e("s_lshl_b32 s40, s45, 7\ns_lshl_b32 s41, s44, 5\ns_add_u32 s40, s40, s41\ns_and_b32 s41, s16, 3\ns_lshl_b32 s41, s41, 3\ns_add_u32 s40, s40, s41\ns_add_u32 s40, s40, 8192")
    e("s_waitcnt vmcnt(0)")
    flag_store(t + 6, 40)
    if cfg.get('cpf', 3) & 2:
        e("s_and_b32 s36, s16, 3")
        code_pf(t + 10, 36)
    if cfg.get('stamp'):
        l = a.lbl("sx")
        e(f"s_cmp_lg_u32 s46, 0\ns_cbranch_scc1 {l}")
        stamp(1)
        e(f"{l}:")
    e("s_add_u32 s46, s46, 1\ns_cmp_lt_u32 s46, 2\ns_cbranch_scc1 L_xc2")
    stamp_out(0)
    e("L_end:\ns_endpgm")
    e('.section .rodata,"a"\n.p2align 6')
    e(f""".amdhsa_kernel {KN}
  .amdhsa_next_free_vgpr 252
  .amdhsa_next_free_sgpr 102
  .amdhsa_accum_offset 252
  .amdhsa_group_segment_fixed_size 0
  .amdhsa_kernarg_size 72
  .amdhsa_user_sgpr_count 2
  .amdhsa_user_sgpr_kernarg_segment_ptr 1
  .amdhsa_system_sgpr_workgroup_id_x 1
  .amdhsa_float_denorm_mode_32 3
.end_amdhsa_kernel""")
    return a.text()

if __name__ == "__main__":
    out = sys.argv[1]
    cfg = {}
    for kv in sys.argv[2:]:
        k, v = kv.split("=", 1)
        cfg[k] = eval(v)
    open(out, "w").write(build(cfg))
```

```python
import sys

WS_WQ = 0
WS_WV = 8 << 20
WS_XR = 16 << 20
WS_FL = 24 << 20
WS_STAMP = 0xff00000
KN = "standalone__weight_only_int_quip__prompt_kernel"
PX, PQW, PSC, PZE, PU, PV, POUT, PDBG, PWS = 48, 50, 52, 54, 56, 58, 60, 62, 64
NONCE = 66

class A:
    def __init__(s): s.L = []; s.n = 0
    def e(s, t):
        for ln in t.split("\n"): s.L.append(ln)
    def lbl(s, p): s.n += 1; return f"{p}_{s.n}"
    def text(s): return "\n".join(s.L) + "\n"

def srd(a, d, p, nbytes, off=0):
    if off: a.e(f"s_add_u32 s{d}, s{p}, {off}\ns_addc_u32 s{d+1}, s{p+1}, 0")
    else: a.e(f"s_mov_b32 s{d}, s{p}\ns_mov_b32 s{d+1}, s{p+1}")
    a.e(f"s_mov_b32 s{d+2}, {nbytes}\ns_mov_b32 s{d+3}, 0x20000")

class Op:
    def __init__(s, kind, nblk, stepbytes, pitch=0, lay='kg', kmap='nat', flags=''):
        s.lay = lay; s.kmap = kmap; s.kind = kind; s.nblk = nblk; s.stepbytes = stepbytes; s.pitch = pitch
        s.stage = nblk * 2048; s.npieces = nblk * 2; s.R = nblk * 32; s.flags = flags

class Gemm:
    def __init__(g, a, nm, P, Q, S, lag, nsteps, lead, cfg, rmask=3):
        g.a = a; g.nm = nm; g.ops = [P, Q]; g.S = S; g.lag = lag; g.nsteps = nsteps; g.lead = lead; g.cfg = cfg; g.rmask = rmask
        g.base = [0, P.stage * S]
        g.rot = 0
        g.lds = (P.stage + Q.stage) * S
        g.npw = [P.npieces // 4, Q.npieces // 4]
        g.nld = sum(g.npw)
        g.D = S - 1 - lag
        g.first = (S - (nsteps % S)) % S
        g.sstride = [op.stage for op in g.ops]
        g.grid = (2, 2); g.wrap = [0, 0]; g.own = False; g.barvm = None
    def slotaddr(g, o, k):
        a_ = g.base[o] + k * g.sstride[o]
        return a_ % g.wrap[o] if g.wrap[o] else a_
    def p_setup(g, nv=8):
        e = g.a.e
        e("v_and_b32 v1, 63, v0")
        g.voff = [[], []]
        for o, op in enumerate(g.ops):
            sb = (20, 21)[o]; n = g.npw[o]
            if op.kind == 'lin':
                e(f"s_mul_i32 s19, s17, {n*1024}\ns_add_u32 s19, s19, s{sb}")
                e(f"v_lshl_add_u32 v{nv}, v1, 4, s19")
                g.voff[o].append(nv); nv += 1
                for u in range(1, n):
                    e(f"v_add_u32 v{nv}, {u*1024}, v{g.voff[o][0]}")
                    g.voff[o].append(nv); nv += 1
            elif op.kind == 'tr':
                cpr = op.R // 16; rpp = 1024 // op.R; sh = cpr.bit_length() - 1
                for u in range(n):
                    r = nv; nv += 1; g.voff[o].append(r)
                    e(f"s_mul_i32 s19, s17, {n*rpp}\ns_add_u32 s19, s19, {u*rpp}")
                    e(f"v_lshrrev_b32 v2, {sh}, v1\nv_add_u32 v2, s19, v2")
                    e(f"v_and_b32 v3, {cpr-1}, v1")
                    if op.kmap == 'nat':
                        e("v_and_b32 v4, 3, v2\nv_bfe_u32 v5, v2, 3, 1\nv_lshl_add_u32 v4, v5, 2, v4\nv_lshlrev_b32 v4, 1, v4")
                    else:
                        e("v_and_b32 v4, 7, v2\nv_lshlrev_b32 v4, 1, v4")
                    e("v_xor_b32 v3, v3, v4")
                    e(f"v_mul_u32_u24 v2, {op.pitch}, v2")
                    if getattr(op, 'splitcol', False):
                        e(f"v_lshrrev_b32 v4, 3, v3\nv_mul_lo_u32 v4, v4, s3\nv_add_u32 v2, v2, v4")
                    e(f"v_lshl_add_u32 v2, v3, 4, v2\nv_add_u32 v{r}, s{sb}, v2")
            else:
                e(f"s_mul_i32 s19, s17, {n//2*16}")
                e(f"v_lshrrev_b32 v2, 2, v1\nv_add_u32 v2, s19, v2\nv_mul_u32_u24 v2, {op.pitch}, v2")
                e(f"v_lshrrev_b32 v3, 4, v1\nv_sub_u32 v3, 0, v3\nv_xor_b32 v3, v3, v1\nv_and_b32 v3, 3, v3")
                e(f"v_lshl_add_u32 v2, v3, 4, v2\nv_add_u32 v2, s{sb}, v2")
                for u in range(n):
                    r = nv; nv += 1; g.voff[o].append(r)
                    e(f"v_add_u32 v{r}, {(u>>1)*16*op.pitch + (u&1)*64}, v2")
        for o, op in enumerate(g.ops):
            e(f"s_mul_i32 s{32+o}, s17, {g.npw[o]*1024}")
            if g.base[o]: e(f"s_add_u32 s{32+o}, s{32+o}, {g.base[o]}")
        g.p_rewind()
        return nv
    def p_rewind(g):
        g.a.e(f"s_mov_b32 s34, 0\ns_mov_b32 s35, {(g.first + g.rot) % g.S}")
    def p_issue(g, which=None, inc=True):
        e = g.a.e; P, Q = g.ops
        if which is None: which = g.cfg.get('order_' + g.nm, (1, 0))
        if g.own:
            e("s_xor_b32 s36, s34, s47\ns_add_u32 s36, s36, s22\ns_and_b32 s36, s36, 7\ns_and_b32 s37, s34, 8\ns_xor_b32 s37, s37, s23\ns_or_b32 s36, s36, s37")
        elif getattr(g, 'seq2', False):
            hs = getattr(g, 'halfseq', False)
            n = g.nsteps // 2 if hs else g.nsteps
            T = "s34"
            if hs:
                e(f"s_and_b32 s38, s34, {n-1}"); T = "s38"
            e(f"s_add_u32 s37, s22, {n - g.lead}\ns_cmp_gt_u32 {T}, s37\ns_cselect_b32 s37, 0, 1\ns_sub_u32 s37, {T}, s37")
            e(f"s_and_b32 s36, s37, {g.rmask}\ns_cmp_eq_u32 s36, s22\ns_cselect_b32 s36, {g.lead}, 0\ns_add_u32 s36, s36, s37")
            e(f"s_cmp_eq_u32 {T}, 0\ns_cselect_b32 s36, s22, s36\ns_add_u32 s36, s36, s23")
            if hs: e(f"s_and_b32 s37, s34, {n}\ns_add_u32 s36, s36, s37")
            e(f"s_sub_u32 s37, s36, {g.nsteps}\ns_cmp_ge_u32 s36, {g.nsteps}\ns_cselect_b32 s36, s37, s36")
        else:
            e(f"s_and_b32 s36, s34, {g.rmask}\ns_cmp_eq_u32 s36, s22")
            e(f"s_cselect_b32 s36, {g.lead}, 0\ns_add_u32 s36, s36, s34\ns_add_u32 s36, s36, s23")
            e(f"s_sub_u32 s37, s36, {g.nsteps}\ns_cmp_ge_u32 s36, {g.nsteps}\ns_cselect_b32 s36, s37, s36")
        if getattr(g, 'usexor', False): e("s_xor_b32 s36, s36, s94")
        for o in which:
            e(f"s_mul_i32 s{38+o}, s36, {g.ops[o].stepbytes}")
            e(f"s_mul_i32 s{40+o}, s35, {g.sstride[o]}\ns_add_u32 s{40+o}, s{40+o}, s{32+o}")
            if g.wrap[o]: e(f"s_sub_u32 s37, s{40+o}, {g.wrap[o]}\ns_cmp_ge_u32 s{40+o}, {g.wrap[o]}\ns_cselect_b32 s{40+o}, s37, s{40+o}")
        for o in which:
            for u in range(g.npw[o]):
                e(f"s_add_u32 m0, s{40+o}, {u*1024}")
                e("s_nop 0")
                e(f"buffer_load_dwordx4 v{g.voff[o][u]}, s[{4+4*o}:{7+4*o}], s{38+o} offen {g.ops[o].flags} lds")
        if not inc: return
        e("s_add_u32 s34, s34, 1")
        e(f"s_add_u32 s35, s35, 1\ns_cmp_eq_u32 s35, {g.S}\ns_cselect_b32 s35, 0, s35")
    def p_pre(g, o):
        l = g.a.lbl(g.nm + "_pre")
        g.p_rewind()
        g.a.e(f"{l}:")
        g.p_issue((o,))
        g.a.e(f"s_cmp_lt_u32 s34, 2\ns_cbranch_scc1 {l}")
    def wait_for(g, tag, extra=""):
        n = 0
        for t, c in reversed(g.hist):
            if t == tag: break
            n += c
        else: raise Exception("tag " + str(tag))
        g.a.e(f"s_waitcnt vmcnt({min(n, 63)}){extra}")
    def note(g, tag, n): g.hist.append((tag, n))
    def p_loop(g, last_op=None, mid=None, tailhook=None, start=None):
        e = g.a.e; D = g.D; N = g.nsteps
        mid = mid or {}
        g.hist = []
        if last_op is None and start is None:
            assert D == 2 and not mid
            l = g.a.lbl(g.nm + "_pl")
            e(f"{l}:")
            g.p_issue()
            e(f"s_cmp_lt_u32 s34, {D}\ns_cbranch_scc1 {l}")
            e(f"s_waitcnt vmcnt({g.nld*(D-1)})\ns_barrier")
            e(f"s_cmp_lt_u32 s34, {N}\ns_cbranch_scc1 {l}")
        else:
            if start:
                cur, nb, g.hist = start
            else:
                g.note(0, g.npw[last_op]); g.note(1, g.npw[last_op])
                g.wait_for(0, "\ns_barrier")
                cur = 2
                nb = 1
            def one(stage):
                pre, after, post = mid.get(stage, (None, None, None))
                if pre: pre()
                g.p_issue(); g.note(stage, g.nld)
                if after: after()
                return post
            def steady_ok():
                return all(isinstance(t, int) and c == g.nld for t, c in g.hist[-(D-2):]) if D > 2 else True
            while cur < N:
                ramp = (cur - nb) < D - 1 and nb >= 2
                nxt = min([k for k in mid if k >= cur] + [N])
                if not ramp and (cur - nb) == D - 1 and nxt - cur >= 2 and steady_ok():
                    l0 = g.a.lbl(g.nm + "_pm")
                    e(f"{l0}:")
                    g.p_issue()
                    e(f"s_waitcnt vmcnt({g.nld*(D-1)})\ns_barrier")
                    e(f"s_cmp_lt_u32 s34, {nxt}\ns_cbranch_scc1 {l0}")
                    for k in range(cur, nxt): g.note(k, g.nld)
                    nb += nxt - cur; cur = nxt
                    continue
                posts = [one(cur)]; cur += 1
                if ramp and cur < N:
                    posts.append(one(cur)); cur += 1
                g.wait_for(nb)
                for p in posts:
                    if p: p()
                e("s_barrier"); nb += 1
            while nb <= N:
                if tailhook and nb in tailhook: tailhook[nb]()
                if nb < N: g.wait_for(nb, "\ns_barrier")
                else: e("s_barrier")
                nb += 1
            e("s_barrier")
            return
        for i in range(D):
            e(f"s_waitcnt vmcnt({g.nld*max(D-2-i,0)})\ns_barrier")
        e("s_barrier")
    def c_body(g, VL, st0=None, st1=None, prebar=0):
        e = g.a.e; cfg = g.cfg; ops = g.ops; S = g.S; P, Q = ops
        nPw, nQw = P.nblk // g.grid[0], Q.nblk // g.grid[1]
        nacc = nPw * nQw * 4
        FR = nacc; setsz = (nPw + nQw) * 4; AD = FR + 2 * setsz
        def acc(p, q): return (p * nQw + q) * 4
        def frag(st, o, b): return FR + st * setsz + (b if o == 0 else nPw + b) * 4
        tt = FR; vt = VL
        addr = {}; nxt = AD
        for o, op in enumerate(ops):
            nw = (nPw, nQw)[o]; sw = (17, 18)[o]
            nwin = (g.sstride[o] * S + 65535) // 65536
            if op.kind == 'tr':
                e(f"v_lshrrev_b32 v{tt+1}, 4, v{vt}")
                e(f"v_bfe_u32 v{tt+2}, v{vt}, 2, 2")
                e(f"v_and_b32 v{tt+3}, 3, v{vt}")
                e(f"v_lshl_add_u32 v{tt+4}, v{tt+1}, {3 if op.kmap == 'nat' else 2}, v{tt+2}")
                e(f"v_mul_u32_u24 v{tt+4}, {op.R}, v{tt+4}")
                e(f"v_and_b32 v{tt+5}, 1, v{tt+1}")
                e(f"v_lshl_add_u32 v{tt+5}, v{tt+5}, 2, v{tt+2}")
                e(f"v_lshlrev_b32 v{tt+5}, 1, v{tt+5}")
                e(f"v_lshl_add_u32 v{tt+4}, v{tt+3}, 3, v{tt+4}")
                e(f"s_mul_i32 s19, s{sw}, {2*nw}")
                for b in range(nw):
                    e(f"s_add_u32 s36, s19, {2*b}")
                    e(f"v_xor_b32 v{tt+6}, s36, v{tt+5}")
                    e(f"v_lshl_add_u32 v{tt+6}, v{tt+6}, 4, v{tt+4}")
                    for w in range(nwin):
                        e(f"v_add_u32 v{nxt}, {g.base[o] + w*65536}, v{tt+6}")
                        addr[(o, b, w)] = nxt; nxt += 1
            elif op.lay == 'perm8':
                assert nw == 8 and nwin == 1 and op.nblk == 8
                e(f"v_bfe_u32 v{tt+1}, v{vt}, 1, 3")
                e(f"v_lshlrev_b32 v{tt+2}, 11, v{tt+1}\nv_add_u32 v{tt+2}, {g.base[o]}, v{tt+2}")
                e(f"v_lshrrev_b32 v{tt+3}, 4, v{vt}\nv_lshl_add_u32 v{tt+2}, v{tt+3}, 8, v{tt+2}")
                e(f"v_and_b32 v{tt+3}, 1, v{vt}\nv_lshl_add_u32 v{tt+2}, v{tt+3}, 7, v{tt+2}")
                for b in range(nw):
                    e(f"v_xor_b32 v{tt+3}, {b}, v{tt+1}\nv_lshl_add_u32 v{nxt}, v{tt+3}, 4, v{tt+2}")
                    addr[(o, b, 0)] = nxt; nxt += 1
            else:
                e(f"s_mul_i32 s19, s{sw}, {nw*2048}")
                if op.lay == 'kg':
                    e(f"v_lshl_add_u32 v{tt+6}, v{vt}, 4, s19")
                else:
                    e(f"v_and_b32 v{tt+1}, 15, v{vt}\nv_lshl_add_u32 v{tt+6}, v{tt+1}, 6, s19")
                    e(f"v_lshrrev_b32 v{tt+1}, 2, v{tt+1}\nv_sub_u32 v{tt+1}, 0, v{tt+1}\nv_lshrrev_b32 v{tt+2}, 4, v{vt}\nv_xor_b32 v{tt+1}, v{tt+1}, v{tt+2}\nv_and_b32 v{tt+1}, 3, v{tt+1}")
                    e(f"v_lshl_add_u32 v{tt+6}, v{tt+1}, 4, v{tt+6}")
                wins = sorted(set((g.slotaddr(o, k) + b*2048 + kb*1024) // 65536 for k in range(S) for b in range(nw) for kb in range(2)))
                for w in wins:
                    e(f"v_add_u32 v{nxt}, {w*65536}, v{tt+6}")
                    addr[(o, None, w)] = nxt; nxt += 1
        assert nxt <= VL, (nxt, VL)
        for i in range(0, nacc, 2): e(f"v_mov_b64 v[{i}:{i+1}], 0")
        def rd1(slot, kb, st, o, b):
            op = ops[o]; f = frag(st, o, b); out = []; slot = (slot + g.rot) % S
            if op.kind == 'tr':
                for t in range(2):
                    off = slot * op.stage + {'nat': kb*32 + t*4, 'split': kb*32 + t*16, 'split64': kb*16 + t*32}[op.kmap] * op.R
                    w, off = off // 65536, off % 65536
                    out.append((f"ds_read_b64_tr_b16 v[{f+2*t}:{f+2*t+1}], v{addr[(o,b,w)]} offset:{off}", (o, b)))
            elif op.lay == 'perm8':
                out.append((f"ds_read_b128 v[{f}:{f+3}], v{addr[(o,b,0)]} offset:{slot*g.sstride[o] + kb*1024}", (o, b)))
            else:
                off = g.slotaddr(o, slot) + b * 2048 + kb * 1024
                w, off = off // 65536, off % 65536
                out.append((f"ds_read_b128 v[{f}:{f+3}], v{addr[(o,None,w)]} offset:{off}", (o, b)))
            return out
        morder = []
        if nPw >= nQw:
            for p in range(nPw):
                for q in (range(nQw) if p % 2 == 0 else range(nQw - 1, -1, -1)): morder.append((p, q))
        else:
            for q in range(nQw):
                for p in (range(nPw) if q % 2 == 0 else range(nPw - 1, -1, -1)): morder.append((p, q))
        forder = []
        for (p, q) in morder:
            for f in ((0, p), (1, q)):
                if f not in forder: forder.append(f)
        def reads(slot, kb, st):
            out = []
            for (o, b) in forder: out += rd1(slot, kb, st, o, b)
            return out
        R = len(reads(0, 0, 0))
        lastpos = {}
        for i, (_, f) in enumerate(reads(0, 0, 0)): lastpos[f] = i
        def half(st, rd, barrier, tail="", vm=False):
            rd = list(rd); k = 0; waited = -1
            for i, (p, q) in enumerate(morder):
                if barrier and i == 0:
                    if g.lag == 0:
                        e("s_waitcnt vmcnt(0) lgkmcnt(0)" if vm else "s_waitcnt lgkmcnt(0)"); waited = R
                    e("s_barrier")
                need = max(lastpos[(0, p)], lastpos[(1, q)])
                if need > waited:
                    e(f"s_waitcnt lgkmcnt({min(R - 1 - need + k, 15)})")
                    waited = need
                c = acc(p, q); fp = frag(st, 0, p); fq = frag(st, 1, q)
                e(f"v_mfma_f32_16x16x32_bf16 v[{c}:{c+3}], v[{fp}:{fp+3}], v[{fq}:{fq+3}], v[{c}:{c+3}]")
                if rd:
                    e(rd.pop(0)[0]); k += 1
                if i == len(morder) - 2 and tail: e(tail)
            assert not rd
        for _ in range(prebar): e("s_barrier")
        e("s_waitcnt vmcnt(0) lgkmcnt(0)\ns_barrier" if (g.own and g.barvm is None) else "s_waitcnt lgkmcnt(0)\ns_barrier")
        if st0: st0()
        for r, _ in reads(g.first, 0, 0): e(r)
        e(f"s_mov_b32 s19, {(g.nsteps + g.first) // S}")
        if g.first: e(f"s_branch {g.nm}_c{g.first}")
        e(".p2align 6")
        for u in range(S):
            e(f"{g.nm}_c{u}:")
            half(0, reads(u, 1, 1), False)
            half(1, reads((u + 1) % S, 0, 0), True, "s_sub_u32 s19, s19, 1\ns_cmp_lg_u32 s19, 0" if u == S - 1 else "", vm=(g.barvm == u))
        e(f"s_cbranch_scc1 {g.nm}_c0")
        e("s_waitcnt lgkmcnt(0)\ns_barrier")
        if st1: st1()
        e("s_nop 7")
        return acc, nPw, nQw, FR

def pack4(a, dst, c0, c1):
    a.e(f"v_cvt_pk_bf16_f32 v{dst}, v{c0}, v{c0+1}\nv_cvt_pk_bf16_f32 v{dst+1}, v{c0+2}, v{c0+3}")
    a.e(f"v_cvt_pk_bf16_f32 v{dst+2}, v{c1}, v{c1+1}\nv_cvt_pk_bf16_f32 v{dst+3}, v{c1+2}, v{c1+3}")

SPIN = 1 << 15
def build(cfg):
    a = A(); e = a.e
    stf = cfg.get('stflags', 'sc1'); ldf = cfg.get('hflags', 'sc1')
    VL = 250
    def stamp(i, dbg=False):
        if (cfg.get('dbgD') or cfg.get('dbgP')) and i in (3, 4, 5, 6) and not dbg: return
        if dbg is True and not cfg.get('dbgD'): return
        if dbg == 'P' and not cfg.get('dbgP'): return
        if cfg.get('stamp'): e(f"s_memrealtime s[{68+2*i}:{69+2*i}]\ns_waitcnt lgkmcnt(0)")
    def stamp_out(t):
        if not cfg.get('stamp'): return
        e("s_waitcnt vmcnt(0)")
        stamp(7)
        if cfg.get('dbgout'):
            l = a.lbl("so")
            srd(a, 24, PDBG, 256)
            for i in range(8): e(f"s_sub_u32 s19, s{68+2*i}, s{NONCE}\nv_mov_b32 v{t+i}, s19")
            e(f"v_mov_b32 v{t+11}, 0\ns_cmp_lg_u32 s16, 4\ns_cbranch_scc1 {l}")
            e(f"s_cmp_eq_u32 s2, 101\ns_cselect_b32 s86, 4, 0\ns_cmp_eq_u32 s2, 5\ns_cselect_b32 s86, 36, s86\ns_cmp_eq_u32 s86, 0\ns_cbranch_scc1 {l}")
            e("s_mov_b64 exec, 1")
            for i in range(8): e(f"buffer_store_dword v{t+i}, v{t+11}, s[24:27], s86 offen offset:{4*i}")
            e(f"{l}:")
            return
        e("s_memtime s[86:87]\ns_getreg_b32 s88, hwreg(HW_REG_XCC_ID)\ns_waitcnt lgkmcnt(0)")
        srd(a, 24, PWS, 0x10000000)
        for i in range(8): e(f"v_mov_b32 v{t+i}, s{68+2*i}")
        e(f"s_sub_u32 s86, s86, s84\nv_mov_b32 v{t+8}, s86\nv_mov_b32 v{t+9}, s88\nv_mov_b32 v{t+10}, s100\nv_mov_b32 v{t+11}, 0")
        e(f"s_lshl_b32 s86, s2, 7\ns_and_b32 s87, s16, 4\ns_xor_b32 s87, s87, 4\ns_lshl_b32 s87, s87, 4\ns_add_u32 s86, s86, s87\ns_add_u32 s86, s86, {WS_STAMP}")
        l = a.lbl("st")
        e(f"s_and_b32 s87, s16, 3\ns_cmp_lg_u32 s87, 0\ns_cbranch_scc1 {l}")
        e("s_mov_b64 exec, 1")
        for i in range(3): e(f"buffer_store_dwordx4 v[{t+4*i}:{t+4*i+3}], v{t+11}, s[24:27], s86 offen offset:{16*i}")
        e(f"{l}:")
    def get_nonce(t, first_loaded=False):
        l = a.lbl("nn"); d = a.lbl("nd")
        rd = f"v_readfirstlane_b32 s{NONCE}, v{t+2}\nv_readfirstlane_b32 s{NONCE+1}, v{t+3}\ns_nop 3\ns_cmp_lg_u32 s{NONCE}, 0\ns_cbranch_scc1 {d}"
        e(f"s_mov_b32 s19, {SPIN}")
        if first_loaded: e(rd)
        e(f"{l}:")
        e(f"buffer_load_dwordx2 v[{t+2}:{t+3}], v{t}, s[28:31], 0 offen sc1\ns_waitcnt vmcnt(0)")
        e(rd)
        e(f"s_sleep 4\ns_sub_u32 s19, s19, 1\ns_cmp_lg_u32 s19, 0\ns_cbranch_scc1 {l}")
        e(f"{d}:")
    def flag_store(t, soff):
        e(f"v_mov_b32 v{t}, 0\nv_mov_b32 v{t+2}, s{NONCE}\nv_mov_b32 v{t+3}, s{NONCE+1}\ns_mov_b64 exec, 1")
        e(f"buffer_store_dwordx2 v[{t+2}:{t+3}], v{t}, s[24:27], s{soff} offen sc1")
        e("s_mov_b64 exec, -1")
    def flag_store0(t, soff):
        l = a.lbl("f0")
        e(f"s_cmp_lg_u32 s16, 0\ns_cbranch_scc1 {l}")
        flag_store(t, soff)
        e(f"{l}:")
    def poll_addr(t, nlanes):
        e(f"v_min_u32 v{t}, {nlanes-1}, v1\nv_lshlrev_b32 v{t}, 3, v{t}")
    def poll_load(t, soff):
        e(f"buffer_load_dwordx2 v[{t+2}:{t+3}], v{t}, s[24:27], s{soff} offen sc1")
    def poll_check(t, done):
        e(f"v_cmp_ne_u64 vcc, s[{NONCE}:{NONCE+1}], v[{t+2}:{t+3}]")
        e(f"s_nop 4\ns_cmp_eq_u64 vcc, 0\ns_cbranch_scc1 {done}")
    def poll(t, soff, nlanes, loaded=False):
        l = a.lbl("pl"); d = a.lbl("pd")
        if loaded: poll_check(t, d)
        else: poll_addr(t, nlanes)
        e(f"s_mov_b32 s19, {SPIN}")
        e(f"{l}:")
        poll_load(t, soff)
        e("s_waitcnt vmcnt(0)")
        poll_check(t, d)
        e(f"s_add_u32 s100, s100, 1\ns_sleep {cfg.get('psleep', 2)}\ns_sub_u32 s19, s19, 1\ns_cmp_lg_u32 s19, 0\ns_cbranch_scc1 {l}")
        e(f"{d}:")
    B = 40
    DL, DR, DKG, DVQ, DVS, DVO, DVQ2, DT = B, B+1, B+2, B+3, B+4, B+5, B+6, B+8
    DUN = B + 12; DQV = B + 44; DSV = B + 76; DNV = B + 92
    def dq_lanes():
        e(f"v_and_b32 v{DL}, 63, v0")
        e(f"v_lshrrev_b32 v{DKG}, 4, v{DL}\nv_bfe_u32 v{DR}, v{DL}, 3, 1\nv_lshl_add_u32 v{DR}, v{DKG}, 2, v{DR}")
        e(f"v_sub_u32 v{DKG}, 0, v{DKG}\nv_and_b32 v{DKG}, 3, v{DKG}\nv_xor_b32 v{DKG}, v{DKG}, v{DL}\nv_and_b32 v{DKG}, 7, v{DKG}")
        e(f"v_mul_u32_u24 v{DVQ}, 14336, v{DR}\nv_lshl_add_u32 v{DVQ}, v{DKG}, 4, v{DVQ}\nv_add_u32 v{DVQ2}, {2*14336}, v{DVQ}")
        e(f"v_lshlrev_b32 v{DVS}, 3, v{DKG}")
        e(f"v_bfe_u32 v{DVO}, v{DL}, 2, 1\nv_lshlrev_b32 v{DVO}, 10, v{DVO}\nv_lshl_add_u32 v{DVO}, v{DR}, 6, v{DVO}\nv_and_b32 v{DT}, 3, v{DL}\nv_lshl_add_u32 v{DVO}, v{DT}, 4, v{DVO}")
    def dq_scalars(sg, sks, sq, ss, so, sh=None):
        e(f"s_mul_i32 s{sq}, s{sg}, {32*14336}\ns_lshl_b32 s19, s{sks}, 8\ns_add_u32 s{sq}, s{sq}, s19")
        if sh is None: e(f"s_add_u32 s{sq+1}, s{sq}, {16*14336}")
        else: e(f"s_mul_i32 s19, s{sh}, {16*14336}\ns_add_u32 s{sq}, s{sq}, s19")
        e(f"s_mul_i32 s{ss}, s{sg}, 7168\ns_lshl_b32 s19, s{sks}, 7\ns_add_u32 s{ss}, s{ss}, s19")
        e(f"s_mul_i32 s{so}, s44, 56\ns_add_u32 s{so}, s{so}, s{sks}\ns_lshl_b32 s{so}, s{so}, 14")
        e(f"s_and_b32 s19, s{sg}, 3\ns_lshl_b32 s19, s19, 12\ns_add_u32 s{so}, s{so}, s19")
        if sh is not None: e(f"s_lshl_b32 s19, s{sh}, 11\ns_add_u32 s{so}, s{so}, s19")
    def dq_qload(h, ap, rq, sq):
        q = DQV + (h*2+ap)*8; v = DVQ2 if ap else DVQ
        e(f"buffer_load_dwordx4 v[{q}:{q+3}], v{v}, s[{rq}:{rq+3}], s{sq+h} offen {cfg.get('qflags', 'nt')}")
        e(f"buffer_load_dwordx4 v[{q+4}:{q+7}], v{v}, s[{rq}:{rq+3}], s{sq+h} offen offset:128 {cfg.get('qflags', 'nt')}")
    def dq_sload(rs, rz, ss):
        s_ = DSV
        for hf in range(2):
            e(f"buffer_load_dwordx2 v[{s_+2*hf}:{s_+2*hf+1}], v{DVS}, s[{rs}:{rs+3}], s{ss} offen offset:{hf*64}")
            e(f"buffer_load_dwordx2 v[{s_+4+2*hf}:{s_+5+2*hf}], v{DVS}, s[{rz}:{rz+3}], s{ss} offen offset:{hf*64}")
    def dq_unpack():
        u = DUN; s_ = DSV
        for j in range(4):
            e(f"v_lshlrev_b32 v{u+2*j}, 16, v{s_+j}\nv_and_b32 v{u+2*j+1}, 0xffff0000, v{s_+j}")
            e(f"v_lshlrev_b32 v{u+8+2*j}, 16, v{s_+4+j}\nv_and_b32 v{u+8+2*j+1}, 0xffff0000, v{s_+4+j}")
    def dq_conv1(h, ap):
        q = DQV + (h*2+ap)*8; T = DT
        for j in range(8): e(f"v_cvt_f32_i32 v{q+j}, v{q+j}")
        for j in range(4): e(f"v_cvt_pk_bf16_f32 v{T+j}, v{q+2*j}, v{q+2*j+1}")
        for j in range(4): e(f"v_lshlrev_b32 v{q+2*j}, 16, v{T+j}\nv_and_b32 v{q+2*j+1}, 0xffff0000, v{T+j}")
    def dq_conv2(h, ap, ro, so):
        q = DQV + (h*2+ap)*8; u = DUN; o = DUN + 16 + (h*2+ap)*4; T = DT
        for j in range(4): e(f"v_pk_add_f32 v[{q+2*j}:{q+2*j+1}], v[{q+2*j}:{q+2*j+1}], v[{u+8+2*j}:{u+9+2*j}] neg_lo:[0,1] neg_hi:[0,1]")
        for j in range(4): e(f"v_cvt_pk_bf16_f32 v{T+j}, v{q+2*j}, v{q+2*j+1}")
        for j in range(4): e(f"v_lshlrev_b32 v{q+2*j}, 16, v{T+j}\nv_and_b32 v{q+2*j+1}, 0xffff0000, v{T+j}")
        for j in range(4): e(f"v_pk_mul_f32 v[{q+2*j}:{q+2*j+1}], v[{q+2*j}:{q+2*j+1}], v[{u+2*j}:{u+2*j+1}]")
        for j in range(4): e(f"v_cvt_pk_bf16_f32 v{o+j}, v{q+2*j}, v{q+2*j+1}")
        e(f"buffer_store_dwordx4 v[{o}:{o+3}], v{DVO}, s[{ro}:{ro+3}], s{so} offen offset:{h*2048+ap*128} sc1")
    def dq_conv(h, ap, ro, so):
        dq_conv1(h, ap); dq_conv2(h, ap, ro, so)
    def dequant1():
        dq_lanes()
        e("s_and_b32 s36, s16, 3\ns_lshl_b32 s37, s44, 2\ns_add_u32 s36, s36, s37")
        dall = cfg.get('dall', 0)
        if dall:
            e("s_lshr_b32 s37, s16, 2\ns_mul_i32 s37, s37, 28\ns_add_u32 s37, s37, s45")
            dq_scalars(36, 37, 38, 40, 41)
        else:
            e("s_add_u32 s37, s23, s45\ns_lshr_b32 s39, s16, 2")
            dq_scalars(36, 37, 38, 40, 41, sh=39)
        e("s_waitcnt lgkmcnt(0)")
        srd(a, 12, PQW, 1024*3584*4)
        dq_qload(0, 0, 12, 38); dq_qload(0, 1, 12, 38)
        srd(a, 24, PSC, 32*3584*2)
        srd(a, 28, PZE, 32*3584*2)
        dq_sload(24, 28, 40)
        if dall: dq_qload(1, 0, 12, 38); dq_qload(1, 1, 12, 38)
        x = 4 if dall else 0
        srd(a, 28, PDBG, 256)
        e(f"v_mov_b32 v{DNV}, 0")
        e(f"buffer_load_dwordx2 v[{DNV+2}:{DNV+3}], v{DNV}, s[28:31], 0 offen sc1")
        srd(a, 4, PWS, 1024*3584*2, WS_WQ)
        stamp(3, True)
        if cfg.get('vearly', 2):
            e(f"s_mul_i32 s20, s44, {56*16384}\ns_lshl_b32 s21, s45, 8\ns_mov_b32 s47, s41")
            if cfg.get('remap', 0): e("s_lshr_b32 s19, s43, 2\ns_cmp_eq_u32 s19, 6\ns_cselect_b32 s3, -12, 2\ns_lshl_b32 s3, s3, 7")
            else: e("s_mov_b32 s3, 0")
            srd(a, 8, PV, 3584*3584*2)
            e("s_and_b32 s17, s16, 3")
            G1.p_setup()
        e(f"s_waitcnt vmcnt({7+x})")
        dq_conv1(0, 0)
        e(f"s_waitcnt vmcnt({5+x})")
        dq_conv1(0, 1)
        e(f"s_waitcnt vmcnt({1+x})")
        stamp(4, True)
        dq_unpack()
        dq_conv2(0, 0, 4, 41); dq_conv2(0, 1, 4, 41)
        if dall:
            e("s_waitcnt vmcnt(5)"); dq_conv(1, 0, 4, 41)
            e("s_waitcnt vmcnt(4)"); dq_conv(1, 1, 4, 41)
        stamp(6, True)
        e(f"s_waitcnt vmcnt({4 if dall else 2})")
        get_nonce(DNV, True)
        srd(a, 24, PWS, 32768, WS_FL)
        e("s_lshl_b32 s28, s44, 8\ns_lshl_b32 s41, s45, 3\ns_add_u32 s46, s28, s41")
        e("s_waitcnt vmcnt(0)\ns_barrier")
        flag_store0(DT, 46)
        e("s_barrier")

    def code_pf(vt, wave_sgpr):
        l = a.lbl("cp")
        e(f"s_getpc_b64 s[38:39]\n{l}:\ns_sub_u32 s38, s38, {l}-{KN}\ns_subb_u32 s39, s39, 0")
        e(f"s_lshl_b32 s19, s{wave_sgpr}, 13\nv_mbcnt_lo_u32_b32 v{vt}, -1, 0\nv_mbcnt_hi_u32_b32 v{vt}, -1, v{vt}\nv_lshl_add_u32 v{vt}, v{vt}, 7, s19")
        e(f"v_min_u32 v{vt}, L_end-{KN}, v{vt}")
        e(f"global_load_dword v{VL+1}, v{vt}, s[38:39]")
    G1 = Gemm(a, "p1", Op('lin', 8, 16384, lay='row', flags=ldf), Op('tr', 8, 64*7168, 7168, kmap='split64'), cfg.get('S1', 4), cfg.get('lag1', 0), 56, cfg.get('lead1', 4), cfg)
    G2 = Gemm(a, "p2", Op('lin', 16, 32768, flags=ldf), Op('lin', 8, 16384, lay='perm8', flags=ldf), 3, 0, 16, 0, cfg)
    G2.grid = (4, 1); G2.base = [131072, 65536]; G2.wrap = [163840, 0]; G2.rot = 1; G2.own = True; G2.lds = 163840; G2.barvm = (None if cfg.get('pub0', 1) else G2.first)
    GX = Gemm(a, "px", Op('tr', 16, 64*2048, 2048), Op('gather', 8, 128, 2048, lay='row'), 3, 0, 16, cfg.get('leadx', 2), cfg, rmask=1)
    G1.ops[1].splitcol = True
    G2.halfseq = bool(cfg.get('hs2', 1))
    G1.seq2 = bool(cfg.get('seq2', 7) & 1); G2.seq2 = bool(cfg.get('seq2', 7) & 2); GX.seq2 = bool(cfg.get('seq2', 7) & 4)
    assert G1.S == 4 and G1.lag == 0
    lds = max(G1.lds, G2.lds, GX.lds)
    e(f"; @launch grid=(256,1,1) block=(512,1,1) lds={lds}")
    e('.amdgcn_target "amdgcn-amd-amdhsa--gfx950"')
    e(f".text\n.globl {KN}\n.p2align 8\n.type {KN},@function\n{KN}:")
    e("s_cmp_ge_u32 s2, 256\ns_cbranch_scc1 L_end")
    e("s_load_dwordx16 s[48:63], s[0:1], 0\ns_load_dwordx2 s[64:65], s[0:1], 64")
    if cfg.get('stamp'):
        e("s_memtime s[84:85]")
        for i in range(1, 8): e(f"s_mov_b64 s[{68+2*i}:{69+2*i}], 0")
    e("s_memrealtime s[68:69]")
    e("v_lshrrev_b32 v1, 6, v0\ns_and_b32 s42, s2, 7\nv_readfirstlane_b32 s16, v1\ns_lshr_b32 s43, s2, 3\ns_mov_b32 s100, 0")
    e("s_or_b32 s19, s2, s16\ns_cmp_lg_u32 s19, 0\ns_cbranch_scc1 L_non")
    e("s_waitcnt lgkmcnt(0)")
    srd(a, 28, PDBG, 256)
    e("s_or_b32 s19, s68, 1\nv_mov_b32 v2, 0\nv_mov_b32 v4, s19\nv_mov_b32 v5, s69\ns_mov_b64 exec, 1")
    e("buffer_store_dwordx2 v[4:5], v2, s[28:31], 0 offen sc1\ns_mov_b64 exec, -1")
    e("L_non:")
    e("s_cmp_ge_u32 s2, 32\ns_cbranch_scc1 L_g")
    if cfg.get('cpf', 3) & 1:
        e("s_and_b32 s36, s16, 3")
        code_pf(VL, 36)
    e("s_branch L_xr\nL_g:")
    e("s_sub_u32 s43, s43, 4")
    e("s_and_b32 s44, s43, 3\ns_lshr_b32 s45, s43, 2")
    e("s_add_u32 s22, s44, s45\ns_and_b32 s22, s22, 3")
    e("s_and_b32 s46, s42, 1\ns_lshl_b32 s46, s46, 2\ns_add_u32 s44, s44, s46")
    e("s_lshr_b32 s46, s42, 1\ns_mul_i32 s46, s46, 7\ns_add_u32 s45, s45, s46")
    if cfg.get('kxor', 4):
        G1.usexor = True
        e(f"s_mov_b32 s23, 0\ns_and_b32 s94, s42, 1\ns_mul_i32 s94, s94, {cfg.get('kxor', 4)}")
    else:
        e(f"s_and_b32 s23, s42, 1\ns_mul_i32 s23, s23, {cfg.get('koff1', 28)}")
    for _ in range(cfg.get('gdelay', 0)): e("s_sleep 36")
    dequant1()
    stamp(1)
    e(f"s_mul_i32 s20, s44, {56*16384}\ns_lshl_b32 s21, s45, 8")
    srd(a, 8, PV, 3584*3584*2)
    srd(a, 12, PWS, 1024*3584*2, WS_WV)
    def g2_scalars():
        e("s_and_b32 s22, s44, 3\ns_lshl_b32 s22, s22, 1\ns_lshr_b32 s23, s44, 2\ns_lshl_b32 s23, s23, 3")
        e("s_lshl_b32 s21, s45, 18\ns_lshl_b32 s20, s44, 19")
        e("s_bfe_u32 s47, s43, 0x10002" if cfg.get('g2x', 1) else "s_mov_b32 s47, 0")
        srd(a, 4, PWS, 2048*1024*2, WS_XR)
        srd(a, 8, PWS, 1024*3584*2, WS_WV)
        srd(a, 12, POUT, 2048*3584*2)
    e("s_cmp_ge_u32 s16, 4\ns_cbranch_scc1 L_gc")
    def poll1(t, soff, nl, pre=None):
        l = a.lbl("p1w")
        e(f"s_cmp_lg_u32 s16, 0\ns_cbranch_scc1 {l}")
        if pre: pre()
        poll(t, soff, nl)
        e(f"{l}:\ns_barrier")
    if cfg.get('pprio'): e(f"s_setprio {cfg['pprio']}")
    G1.p_pre(1)
    e("s_add_u32 s29, s28, 2048\ns_add_u32 s30, s46, 2048")
    e("s_lshl_b32 s36, s44, 2\ns_add_u32 s36, s36, s16\ns_sub_u32 s37, 28, s23\ns_add_u32 s37, s37, s45")
    dq_scalars(36, 37, 90, 92, 93)
    e("s_lshl_b32 s95, s45, 6\ns_lshl_b32 s19, s44, 3\ns_add_u32 s95, s95, s19\ns_add_u32 s95, s95, 4096")
    poll1(24, 28, 28)
    stamp(2)
    e("s_waitcnt vmcnt(0)")
    G1.p_pre(0)
    Ta = cfg.get('Ta', 3)
    def d2_load():
        srd(a, 12, PSC, 32*3584*2)
        srd(a, 96, PZE, 32*3584*2)
        dq_sload(12, 96, 92)
        srd(a, 12, PQW, 1024*3584*4)
        for h in range(2):
            for ap in range(2): dq_qload(h, ap, 12, 90)
        G1.note('D2L', 12)
    def d2_conv(h, ap):
        def f():
            if h == 0 and ap == 0:
                G1.wait_for('D2L'); dq_unpack()
            dq_conv(h, ap, 4, 93)
            G1.note(('D2S', h, ap), 1)
        return f
    def d2_wait():
        G1.wait_for(('D2S', 1, 1))
    def d2_pub():
        flag_store0(DT, 30)
    def pre1():
        poll_addr(24, 28); poll_load(24, 29); G1.note('PL', 1)
    def post1():
        G1.wait_for('PL')
        poll(24, 29, 28, loaded=True)
    mids = {}
    k = G1.D - 1
    mids[Ta] = (d2_load, None, None)
    for n, (h, ap) in enumerate([(0, 0), (0, 1), (1, 0), (1, 1)]):
        mids[Ta + k + n] = (None, d2_conv(h, ap), None)
    mids[Ta + 2*k + 3] = (None, None, d2_wait)
    mids[Ta + 2*k + 4] = (d2_pub, None, None)
    T1 = cfg.get('T1', 19)
    if k == 1: mids[T1] = (pre1, None, post1)
    else:
        mids[T1 - k + 1] = (pre1, None, None); mids[T1] = (None, None, post1)
    if cfg.get('dbgP'):
        for i, T in enumerate(cfg.get('dbgT', (14, 28, 42, 54))):
            m = mids.get(T, (None, None, None))
            mids[T] = (m[0], m[1], (lambda i=i, p=m[2]: ((p() if p else None), stamp(3 + i, 'P'))))
    def prex():
        e("s_lshl_b32 s28, s44, 8\ns_lshr_b32 s19, s44, 2\ns_lshl_b32 s19, s19, 7\ns_add_u32 s28, s28, s19\ns_add_u32 s28, s28, 8192")
        poll_addr(24, 16); poll_load(24, 28); G1.note('XL', 1)
    def postx():
        G1.wait_for('XL')
        poll(24, 28, 16, loaded=True)
    mids[50] = (prex, None, None); mids[52] = (None, None, postx)
    def th0():
        g2_scalars()
        G2.p_setup()
        e("s_xor_b32 s29, s28, 128\ns_and_b32 s30, s95, -32\ns_xor_b32 s31, s30, 32")
        G2.p_issue((0,)); G1.note('X0', G2.npw[0])
    def th1():
        G2.p_issue((0,)); G1.note('X1', G2.npw[0])
    G1.p_loop(last_op=0, mid=mids, tailhook={54: th0, 55: th1})
    stamp(3)
    def pubw():
        e("s_cmp_lg_u32 s16, 0\ns_cbranch_scc1 L_w123")
        flag_store(28, 95)
        e("s_branch L_wj\nL_w123:\ns_sleep 2\nL_wj:")
    p2f = cfg.get('p2first', 1)
    if cfg.get('pub0', 1):
        e("s_waitcnt vmcnt(0)\ns_barrier")
        stamp(4)
        pubw()
        if p2f: G2.p_issue((0,), inc=False)
        e("s_barrier")
    else:
        G1.wait_for('X0', "\ns_barrier")
        e("s_waitcnt vmcnt(0)\ns_barrier")
        stamp(4)
        pubw()
        if p2f: G2.p_issue((0,), inc=False)
    poll(24, 30, 4)
    stamp(5)
    if p2f: G2.p_issue((1,)); h0 = [(2, G2.npw[1])]
    else: G2.p_issue(); h0 = [(2, G2.nld)]
    def pre2():
        poll_addr(24, 16); poll_load(24, 29)
        poll_addr(32, 4); poll_load(32, 31)
        G2.note('PL', 2)
    def post2():
        G2.wait_for('PL')
        poll(24, 29, 16, loaded=True)
        poll(32, 31, 4, loaded=True)
    G2.p_loop(mid={cfg.get('T2', 7): (pre2, None, post2)}, start=(3, 2, h0))
    stamp_out(32)
    e("s_endpgm")
    e("L_gc:")
    e(f"v_and_b32 v{VL}, 63, v0")
    e("s_bfe_u32 s17, s16, 0x10001\ns_and_b32 s18, s16, 1")
    if cfg.get('cprio', 2): e(f"s_setprio {cfg.get('cprio', 2)}")
    if cfg.get('xpf', 0):
        srd(a, 28, PX, 2048*1024*2)
        e(f"s_sub_u32 s36, s2, 32\ns_lshl_b32 s36, s36, 2\ns_and_b32 s37, s16, 3\ns_add_u32 s36, s36, s37\ns_lshl_b32 s36, s36, 13\nv_lshl_add_u32 v2, v{VL}, 7, s36")
        e(f"v_subrev_u32 v4, 0x400000, v2")
        e(f"buffer_load_dword v{VL+1}, v2, s[28:31], 0 offen")
        srd(a, 28, PU, 1024*1024*2)
        e(f"buffer_load_dword v{VL+1}, v4, s[28:31], 0 offen")
    acc, nPw, nQw, FR = G1.c_body(VL, lambda: stamp(2), lambda: stamp(3), prebar=1)
    t = FR + 40
    e("s_lshl_b32 s36, s45, 4\ns_lshl_b32 s37, s44, 1\ns_add_u32 s36, s36, s37\ns_add_u32 s36, s36, s17\ns_lshl_b32 s36, s36, 14")
    e(f"s_lshl_b32 s37, s18, 13\ns_add_u32 s36, s36, s37\ns_bfe_u32 s39, s43, {0x10002 if cfg.get('g2x', 1) else 0x1001f}\ns_xor_b32 s39, s39, s17\ns_lshl_b32 s39, s39, 14\ns_add_u32 s39, s39, s37\ns_add_u32 s39, s39, 65536\ns_add_u32 s37, s36, 4096")
    e(f"s_lshl_b32 s38, s18, 2\nv_xor_b32 v{t+8}, s38, v{VL}")
    for bq in range(nQw): e(f"v_xor_b32 v{t+bq}, {bq}, v{t+8}\nv_lshlrev_b32 v{t+bq}, 4, v{t+bq}\nv_add_u32 v{t+4+bq}, s39, v{t+bq}")
    k = 0
    for bq in range(nQw):
        for m in range(nPw // 2):
            d = FR + 4 * k; k += 1
            pack4(a, d, acc(2*m, bq), acc(2*m+1, bq))
            e(f"buffer_store_dwordx4 v[{d}:{d+3}], v{t+bq}, s[12:15], s{36+(bq>>1)} offen offset:{m*1024+(bq&1)*2048} sc1")
    k = 0
    for bq in range(nQw):
        for m in range(nPw // 2):
            d = FR + 4 * k; k += 1
            e(f"ds_write_b128 v{t+4+bq}, v[{d}:{d+3}] offset:{m*1024+bq*2048}")
    stamp(4)
    g2_scalars()
    e("s_and_b32 s17, s16, 3\ns_mov_b32 s18, 0\ns_waitcnt lgkmcnt(0)")
    acc, nPw, nQw, FR = G2.c_body(VL, lambda: stamp(5), lambda: stamp(6))
    t = FR + 90
    e(f"v_lshrrev_b32 v{t}, 4, v{VL}\nv_mul_u32_u24 v{t}, {4*7168}, v{t}")
    e(f"v_and_b32 v{t+1}, 15, v{VL}\nv_lshl_add_u32 v{t+1}, v{t+1}, 4, v{t}")
    e(f"s_lshl_b32 s36, s44, 2\ns_add_u32 s36, s36, s17\ns_mul_i32 s36, s36, {64*7168}\ns_lshl_b32 s37, s45, 8\ns_add_u32 s36, s36, s37")
    k = 0
    of = cfg.get('outflags', 'nt')
    for pb in range(nPw):
        for r in range(4):
            d = FR + 4 * k; k += 1
            e(f"s_add_u32 s37, s36, {(pb*16+r)*7168}")
            for j in range(4): e(f"v_cvt_pk_bf16_f32 v{d+j}, v{acc(pb,2*j)+r}, v{acc(pb,2*j+1)+r}")
            e(f"buffer_store_dwordx4 v[{d}:{d+3}], v{t+1}, s[12:15], s37 offen {of}")
    stamp_out(0)
    e("s_endpgm")
    e("L_xr:")
    e("s_waitcnt lgkmcnt(0)")
    if cfg.get('spf', 0):
        srd(a, 8, PV, 3584*3584*2)
        e("s_and_b32 s44, s42, 1\ns_lshl_b32 s44, s44, 2\ns_add_u32 s44, s44, s43\ns_lshl_b32 s44, s44, 3\ns_add_u32 s44, s44, s16\ns_lshl_b32 s44, s44, 6")
        e(f"s_lshr_b32 s45, s42, 1\ns_mul_i32 s45, s45, 1792\ns_add_u32 s45, s45, {cfg.get('sp0', 2)*64*7168}")
        e(f"v_and_b32 v1, 63, v0\nv_add_u32 v1, s44, v1\ns_mov_b32 s46, {(1<<32)//14+1}\ns_movk_i32 s47, 7168")
        for r in range(cfg['spf']):
            e("v_mul_hi_u32 v2, v1, s46\nv_mul_u32_u24 v3, 14, v2\nv_sub_u32 v3, v1, v3\nv_mul_lo_u32 v2, v2, s47\nv_lshl_add_u32 v2, v3, 7, v2")
            e(f"buffer_load_dword v{VL+1}, v2, s[8:11], s45 offen\nv_add_u32 v1, 4096, v1")
    srd(a, 4, PU, 1024*1024*2)
    srd(a, 8, PX, 2048*1024*2)
    srd(a, 12, PWS, 2048*1024*2, WS_XR)
    for _ in range(cfg.get('xdelay', 0)): e("s_sleep 36")
    e("s_mov_b32 s46, 0")
    def xr_scalars():
        e("s_and_b32 s45, s43, 1\ns_bfe_u32 s44, s43, 0x10001\ns_xor_b32 s22, s44, s45")
        e("s_lshl_b32 s47, s42, 1\ns_add_u32 s45, s45, s47")
        e("s_lshr_b32 s47, s42, 2\ns_xor_b32 s47, s46, s47\ns_and_b32 s47, s47, 1\ns_lshl_b32 s47, s47, 1\ns_add_u32 s44, s44, s47")
        e("s_and_b32 s23, s42, 3\ns_lshl_b32 s23, s23, 2")
        e("s_lshl_b32 s20, s44, 9\ns_lshl_b32 s21, s45, 18")
    e("s_cmp_ge_u32 s16, 4\ns_cbranch_scc1 L_xc")
    e("s_mov_b32 s17, s16")
    e("L_xp:")
    xr_scalars()
    GX.p_setup()
    GX.p_loop()
    e("s_add_u32 s46, s46, 1\ns_cmp_lt_u32 s46, 2\ns_cbranch_scc1 L_xp")
    stamp_out(32)
    e("s_endpgm")
    e("L_xc:")
    e(f"v_and_b32 v{VL}, 63, v0")
    e("s_bfe_u32 s17, s16, 0x10001\ns_and_b32 s18, s16, 1")
    srd(a, 28, PDBG, 256)
    srd(a, 24, PWS, 32768, WS_FL)
    e("L_xc2:")
    xr_scalars()
    acc, nPw, nQw, FR = GX.c_body(VL, lambda: stamp(2), lambda: stamp(3))
    t = FR + 80
    e(f"v_lshlrev_b32 v{t}, 4, v{VL}")
    e("s_lshl_b32 s36, s42, 4\ns_lshl_b32 s37, s44, 2\ns_add_u32 s36, s36, s37\ns_lshl_b32 s37, s17, 1\ns_add_u32 s36, s36, s37")
    e("s_lshl_b32 s36, s36, 15\ns_lshl_b32 s37, s18, 13\ns_add_u32 s36, s36, s37\ns_and_b32 s37, s45, 1\ns_lshl_b32 s37, s37, 14\ns_add_u32 s36, s36, s37")
    k = 0
    for mh in range(2):
        for bq in range(nQw):
            e(f"s_add_u32 s37, s36, {mh*32768 + bq*2048}")
            for kb in range(2):
                m = mh*2 + kb
                d = FR + 4 * k; k += 1
                pack4(a, d, acc(2*m, bq), acc(2*m+1, bq))
                e(f"buffer_store_dwordx4 v[{d}:{d+3}], v{t}, s[12:15], s37 offen offset:{kb*1024} sc1")
    e(f"v_mov_b32 v{t+2}, 0")
    get_nonce(t + 2)
    e("s_lshl_b32 s40, s42, 8\ns_lshr_b32 s41, s44, 1\ns_lshl_b32 s41, s41, 7\ns_add_u32 s40, s40, s41\ns_and_b32 s41, s45, 1\ns_lshl_b32 s41, s41, 6\ns_add_u32 s40, s40, s41")
    e("s_and_b32 s41, s44, 1\ns_lshl_b32 s41, s41, 5\ns_add_u32 s40, s40, s41\ns_and_b32 s41, s16, 3\ns_lshl_b32 s41, s41, 3\ns_add_u32 s40, s40, s41\ns_add_u32 s40, s40, 8192")
    e("s_waitcnt vmcnt(0)")
    flag_store(t + 6, 40)
    if cfg.get('cpf', 3) & 2:
        e("s_and_b32 s36, s16, 3")
        code_pf(t + 10, 36)
    if cfg.get('stamp'):
        l = a.lbl("sx")
        e(f"s_cmp_lg_u32 s46, 0\ns_cbranch_scc1 {l}")
        stamp(1)
        e(f"{l}:")
    e("s_add_u32 s46, s46, 1\ns_cmp_lt_u32 s46, 2\ns_cbranch_scc1 L_xc2")
    stamp_out(0)
    e("L_end:\ns_endpgm")
    e('.section .rodata,"a"\n.p2align 6')
    e(f""".amdhsa_kernel {KN}
  .amdhsa_next_free_vgpr 252
  .amdhsa_next_free_sgpr 102
  .amdhsa_accum_offset 252
  .amdhsa_group_segment_fixed_size 0
  .amdhsa_kernarg_size 72
  .amdhsa_user_sgpr_count 2
  .amdhsa_user_sgpr_kernarg_segment_ptr 1
  .amdhsa_system_sgpr_workgroup_id_x 1
  .amdhsa_float_denorm_mode_32 3
.end_amdhsa_kernel""")
    return a.text()

if __name__ == "__main__":
    out = sys.argv[1]
    cfg = {}
    for kv in sys.argv[2:]:
        k, v = kv.split("=", 1)
        cfg[k] = eval(v)
    open(out, "w").write(build(cfg))
```

```python
import sys

WS_WQ = 0
WS_WV = 8 << 20
WS_XR = 16 << 20
WS_FL = 24 << 20
WS_STAMP = 0xff00000
KN = "standalone__weight_only_int_quip__prompt_kernel"
PX, PQW, PSC, PZE, PU, PV, POUT, PDBG, PWS = 48, 50, 52, 54, 56, 58, 60, 62, 64
NONCE = 66

class A:
    def __init__(s): s.L = []; s.n = 0
    def e(s, t):
        for ln in t.split("\n"): s.L.append(ln)
    def lbl(s, p): s.n += 1; return f"{p}_{s.n}"
    def text(s): return "\n".join(s.L) + "\n"

def srd(a, d, p, nbytes, off=0):
    if off: a.e(f"s_add_u32 s{d}, s{p}, {off}\ns_addc_u32 s{d+1}, s{p+1}, 0")
    else: a.e(f"s_mov_b32 s{d}, s{p}\ns_mov_b32 s{d+1}, s{p+1}")
    a.e(f"s_mov_b32 s{d+2}, {nbytes}\ns_mov_b32 s{d+3}, 0x20000")

class Op:
    def __init__(s, kind, nblk, stepbytes, pitch=0, lay='kg', kmap='nat', flags=''):
        s.lay = lay; s.kmap = kmap; s.kind = kind; s.nblk = nblk; s.stepbytes = stepbytes; s.pitch = pitch
        s.stage = nblk * 2048; s.npieces = nblk * 2; s.R = nblk * 32; s.flags = flags

class Gemm:
    def __init__(g, a, nm, P, Q, S, lag, nsteps, lead, cfg, rmask=3):
        g.a = a; g.nm = nm; g.ops = [P, Q]; g.S = S; g.lag = lag; g.nsteps = nsteps; g.lead = lead; g.cfg = cfg; g.rmask = rmask
        g.base = [0, P.stage * S]
        g.rot = 0
        g.lds = (P.stage + Q.stage) * S
        g.npw = [P.npieces // 4, Q.npieces // 4]
        g.nld = sum(g.npw)
        g.D = S - 1 - lag
        g.first = (S - (nsteps % S)) % S
        g.sstride = [op.stage for op in g.ops]
        g.grid = (2, 2); g.wrap = [0, 0]; g.own = False; g.barvm = None
    def slotaddr(g, o, k):
        a_ = g.base[o] + k * g.sstride[o]
        return a_ % g.wrap[o] if g.wrap[o] else a_
    def p_setup(g, nv=8):
        e = g.a.e
        e("v_and_b32 v1, 63, v0")
        g.voff = [[], []]
        for o, op in enumerate(g.ops):
            sb = (20, 21)[o]; n = g.npw[o]
            if op.kind == 'lin':
                e(f"s_mul_i32 s19, s17, {n*1024}\ns_add_u32 s19, s19, s{sb}")
                e(f"v_lshl_add_u32 v{nv}, v1, 4, s19")
                g.voff[o].append(nv); nv += 1
                for u in range(1, n):
                    e(f"v_add_u32 v{nv}, {u*1024}, v{g.voff[o][0]}")
                    g.voff[o].append(nv); nv += 1
            elif op.kind == 'tr':
                cpr = op.R // 16; rpp = 1024 // op.R; sh = cpr.bit_length() - 1
                for u in range(n):
                    r = nv; nv += 1; g.voff[o].append(r)
                    e(f"s_mul_i32 s19, s17, {n*rpp}\ns_add_u32 s19, s19, {u*rpp}")
                    e(f"v_lshrrev_b32 v2, {sh}, v1\nv_add_u32 v2, s19, v2")
                    e(f"v_and_b32 v3, {cpr-1}, v1")
                    if op.kmap == 'nat':
                        e("v_and_b32 v4, 3, v2\nv_bfe_u32 v5, v2, 3, 1\nv_lshl_add_u32 v4, v5, 2, v4\nv_lshlrev_b32 v4, 1, v4")
                    else:
                        e("v_and_b32 v4, 7, v2\nv_lshlrev_b32 v4, 1, v4")
                    e("v_xor_b32 v3, v3, v4")
                    e(f"v_mul_u32_u24 v2, {op.pitch}, v2")
                    if getattr(op, 'splitcol', False):
                        e(f"v_lshrrev_b32 v4, 3, v3\nv_mul_lo_u32 v4, v4, s3\nv_add_u32 v2, v2, v4")
                    e(f"v_lshl_add_u32 v2, v3, 4, v2\nv_add_u32 v{r}, s{sb}, v2")
            else:
                e(f"s_mul_i32 s19, s17, {n//2*16}")
                e(f"v_lshrrev_b32 v2, 2, v1\nv_add_u32 v2, s19, v2\nv_mul_u32_u24 v2, {op.pitch}, v2")
                e(f"v_lshrrev_b32 v3, 4, v1\nv_sub_u32 v3, 0, v3\nv_xor_b32 v3, v3, v1\nv_and_b32 v3, 3, v3")
                e(f"v_lshl_add_u32 v2, v3, 4, v2\nv_add_u32 v2, s{sb}, v2")
                for u in range(n):
                    r = nv; nv += 1; g.voff[o].append(r)
                    e(f"v_add_u32 v{r}, {(u>>1)*16*op.pitch + (u&1)*64}, v2")
        for o, op in enumerate(g.ops):
            e(f"s_mul_i32 s{32+o}, s17, {g.npw[o]*1024}")
            if g.base[o]: e(f"s_add_u32 s{32+o}, s{32+o}, {g.base[o]}")
        g.p_rewind()
        return nv
    def p_rewind(g):
        g.a.e(f"s_mov_b32 s34, 0\ns_mov_b32 s35, {(g.first + g.rot) % g.S}")
    def p_issue(g, which=None, inc=True):
        e = g.a.e; P, Q = g.ops
        if which is None: which = g.cfg.get('order_' + g.nm, (1, 0))
        if g.own:
            e("s_xor_b32 s36, s34, s47\ns_add_u32 s36, s36, s22\ns_and_b32 s36, s36, 7\ns_and_b32 s37, s34, 8\ns_xor_b32 s37, s37, s23\ns_or_b32 s36, s36, s37")
        elif getattr(g, 'seq2', False):
            hs = getattr(g, 'halfseq', False)
            n = g.nsteps // 2 if hs else g.nsteps
            T = "s34"
            if hs:
                e(f"s_and_b32 s38, s34, {n-1}"); T = "s38"
            e(f"s_add_u32 s37, s22, {n - g.lead}\ns_cmp_gt_u32 {T}, s37\ns_cselect_b32 s37, 0, 1\ns_sub_u32 s37, {T}, s37")
            e(f"s_and_b32 s36, s37, {g.rmask}\ns_cmp_eq_u32 s36, s22\ns_cselect_b32 s36, {g.lead}, 0\ns_add_u32 s36, s36, s37")
            e(f"s_cmp_eq_u32 {T}, 0\ns_cselect_b32 s36, s22, s36\ns_add_u32 s36, s36, s23")
            if hs: e(f"s_and_b32 s37, s34, {n}\ns_add_u32 s36, s36, s37")
            e(f"s_sub_u32 s37, s36, {g.nsteps}\ns_cmp_ge_u32 s36, {g.nsteps}\ns_cselect_b32 s36, s37, s36")
        else:
            e(f"s_and_b32 s36, s34, {g.rmask}\ns_cmp_eq_u32 s36, s22")
            e(f"s_cselect_b32 s36, {g.lead}, 0\ns_add_u32 s36, s36, s34\ns_add_u32 s36, s36, s23")
            e(f"s_sub_u32 s37, s36, {g.nsteps}\ns_cmp_ge_u32 s36, {g.nsteps}\ns_cselect_b32 s36, s37, s36")
        if getattr(g, 'usexor', False): e("s_xor_b32 s36, s36, s94")
        for o in which:
            e(f"s_mul_i32 s{38+o}, s36, {g.ops[o].stepbytes}")
            e(f"s_mul_i32 s{40+o}, s35, {g.sstride[o]}\ns_add_u32 s{40+o}, s{40+o}, s{32+o}")
            if g.wrap[o]: e(f"s_sub_u32 s37, s{40+o}, {g.wrap[o]}\ns_cmp_ge_u32 s{40+o}, {g.wrap[o]}\ns_cselect_b32 s{40+o}, s37, s{40+o}")
        for o in which:
            for u in range(g.npw[o]):
                e(f"s_add_u32 m0, s{40+o}, {u*1024}")
                e("s_nop 0")
                e(f"buffer_load_dwordx4 v{g.voff[o][u]}, s[{4+4*o}:{7+4*o}], s{38+o} offen {g.ops[o].flags} lds")
        if not inc: return
        e("s_add_u32 s34, s34, 1")
        e(f"s_add_u32 s35, s35, 1\ns_cmp_eq_u32 s35, {g.S}\ns_cselect_b32 s35, 0, s35")
    def p_pre(g, o):
        l = g.a.lbl(g.nm + "_pre")
        g.p_rewind()
        g.a.e(f"{l}:")
        g.p_issue((o,))
        g.a.e(f"s_cmp_lt_u32 s34, 2\ns_cbranch_scc1 {l}")
    def wait_for(g, tag, extra=""):
        n = 0
        for t, c in reversed(g.hist):
            if t == tag: break
            n += c
        else: raise Exception("tag " + str(tag))
        g.a.e(f"s_waitcnt vmcnt({min(n, 63)}){extra}")
    def note(g, tag, n): g.hist.append((tag, n))
    def p_loop(g, last_op=None, mid=None, tailhook=None, start=None):
        e = g.a.e; D = g.D; N = g.nsteps
        mid = mid or {}
        g.hist = []
        if last_op is None and start is None:
            assert D == 2 and not mid
            l = g.a.lbl(g.nm + "_pl")
            e(f"{l}:")
            g.p_issue()
            e(f"s_cmp_lt_u32 s34, {D}\ns_cbranch_scc1 {l}")
            e(f"s_waitcnt vmcnt({g.nld*(D-1)})\ns_barrier")
            e(f"s_cmp_lt_u32 s34, {N}\ns_cbranch_scc1 {l}")
        else:
            if start:
                cur, nb, g.hist = start
            else:
                g.note(0, g.npw[last_op]); g.note(1, g.npw[last_op])
                g.wait_for(0, "\ns_barrier")
                cur = 2
                nb = 1
            def one(stage):
                pre, after, post = mid.get(stage, (None, None, None))
                if pre: pre()
                g.p_issue(); g.note(stage, g.nld)
                if after: after()
                return post
            def steady_ok():
                return all(isinstance(t, int) and c == g.nld for t, c in g.hist[-(D-2):]) if D > 2 else True
            while cur < N:
                ramp = (cur - nb) < D - 1 and nb >= 2
                nxt = min([k for k in mid if k >= cur] + [N])
                if not ramp and (cur - nb) == D - 1 and nxt - cur >= 2 and steady_ok():
                    l0 = g.a.lbl(g.nm + "_pm")
                    e(f"{l0}:")
                    g.p_issue()
                    e(f"s_waitcnt vmcnt({g.nld*(D-1)})\ns_barrier")
                    e(f"s_cmp_lt_u32 s34, {nxt}\ns_cbranch_scc1 {l0}")
                    for k in range(cur, nxt): g.note(k, g.nld)
                    nb += nxt - cur; cur = nxt
                    continue
                posts = [one(cur)]; cur += 1
                if ramp and cur < N:
                    posts.append(one(cur)); cur += 1
                g.wait_for(nb)
                for p in posts:
                    if p: p()
                e("s_barrier"); nb += 1
            while nb <= N:
                if tailhook and nb in tailhook: tailhook[nb]()
                if nb < N: g.wait_for(nb, "\ns_barrier")
                else: e("s_barrier")
                nb += 1
            e("s_barrier")
            return
        for i in range(D):
            e(f"s_waitcnt vmcnt({g.nld*max(D-2-i,0)})\ns_barrier")
        e("s_barrier")
    def c_body(g, VL, st0=None, st1=None, prebar=0):
        e = g.a.e; cfg = g.cfg; ops = g.ops; S = g.S; P, Q = ops
        nPw, nQw = P.nblk // g.grid[0], Q.nblk // g.grid[1]
        nacc = nPw * nQw * 4
        FR = nacc; setsz = (nPw + nQw) * 4; AD = FR + 2 * setsz
        def acc(p, q): return (p * nQw + q) * 4
        def frag(st, o, b): return FR + st * setsz + (b if o == 0 else nPw + b) * 4
        tt = FR; vt = VL
        addr = {}; nxt = AD
        for o, op in enumerate(ops):
            nw = (nPw, nQw)[o]; sw = (17, 18)[o]
            nwin = (g.sstride[o] * S + 65535) // 65536
            if op.kind == 'tr':
                e(f"v_lshrrev_b32 v{tt+1}, 4, v{vt}")
                e(f"v_bfe_u32 v{tt+2}, v{vt}, 2, 2")
                e(f"v_and_b32 v{tt+3}, 3, v{vt}")
                e(f"v_lshl_add_u32 v{tt+4}, v{tt+1}, {3 if op.kmap == 'nat' else 2}, v{tt+2}")
                e(f"v_mul_u32_u24 v{tt+4}, {op.R}, v{tt+4}")
                e(f"v_and_b32 v{tt+5}, 1, v{tt+1}")
                e(f"v_lshl_add_u32 v{tt+5}, v{tt+5}, 2, v{tt+2}")
                e(f"v_lshlrev_b32 v{tt+5}, 1, v{tt+5}")
                e(f"v_lshl_add_u32 v{tt+4}, v{tt+3}, 3, v{tt+4}")
                e(f"s_mul_i32 s19, s{sw}, {2*nw}")
                for b in range(nw):
                    e(f"s_add_u32 s36, s19, {2*b}")
                    e(f"v_xor_b32 v{tt+6}, s36, v{tt+5}")
                    e(f"v_lshl_add_u32 v{tt+6}, v{tt+6}, 4, v{tt+4}")
                    for w in range(nwin):
                        e(f"v_add_u32 v{nxt}, {g.base[o] + w*65536}, v{tt+6}")
                        addr[(o, b, w)] = nxt; nxt += 1
            elif op.lay == 'perm8':
                assert nw == 8 and nwin == 1 and op.nblk == 8
                e(f"v_bfe_u32 v{tt+1}, v{vt}, 1, 3")
                e(f"v_lshlrev_b32 v{tt+2}, 11, v{tt+1}\nv_add_u32 v{tt+2}, {g.base[o]}, v{tt+2}")
                e(f"v_lshrrev_b32 v{tt+3}, 4, v{vt}\nv_lshl_add_u32 v{tt+2}, v{tt+3}, 8, v{tt+2}")
                e(f"v_and_b32 v{tt+3}, 1, v{vt}\nv_lshl_add_u32 v{tt+2}, v{tt+3}, 7, v{tt+2}")
                for b in range(nw):
                    e(f"v_xor_b32 v{tt+3}, {b}, v{tt+1}\nv_lshl_add_u32 v{nxt}, v{tt+3}, 4, v{tt+2}")
                    addr[(o, b, 0)] = nxt; nxt += 1
            else:
                e(f"s_mul_i32 s19, s{sw}, {nw*2048}")
                if op.lay == 'kg':
                    e(f"v_lshl_add_u32 v{tt+6}, v{vt}, 4, s19")
                else:
                    e(f"v_and_b32 v{tt+1}, 15, v{vt}\nv_lshl_add_u32 v{tt+6}, v{tt+1}, 6, s19")
                    e(f"v_lshrrev_b32 v{tt+1}, 2, v{tt+1}\nv_sub_u32 v{tt+1}, 0, v{tt+1}\nv_lshrrev_b32 v{tt+2}, 4, v{vt}\nv_xor_b32 v{tt+1}, v{tt+1}, v{tt+2}\nv_and_b32 v{tt+1}, 3, v{tt+1}")
                    e(f"v_lshl_add_u32 v{tt+6}, v{tt+1}, 4, v{tt+6}")
                wins = sorted(set((g.slotaddr(o, k) + b*2048 + kb*1024) // 65536 for k in range(S) for b in range(nw) for kb in range(2)))
                for w in wins:
                    e(f"v_add_u32 v{nxt}, {w*65536}, v{tt+6}")
                    addr[(o, None, w)] = nxt; nxt += 1
        assert nxt <= VL, (nxt, VL)
        for i in range(0, nacc, 2): e(f"v_mov_b64 v[{i}:{i+1}], 0")
        def rd1(slot, kb, st, o, b):
            op = ops[o]; f = frag(st, o, b); out = []; slot = (slot + g.rot) % S
            if op.kind == 'tr':
                for t in range(2):
                    off = slot * op.stage + {'nat': kb*32 + t*4, 'split': kb*32 + t*16, 'split64': kb*16 + t*32}[op.kmap] * op.R
                    w, off = off // 65536, off % 65536
                    out.append((f"ds_read_b64_tr_b16 v[{f+2*t}:{f+2*t+1}], v{addr[(o,b,w)]} offset:{off}", (o, b)))
            elif op.lay == 'perm8':
                out.append((f"ds_read_b128 v[{f}:{f+3}], v{addr[(o,b,0)]} offset:{slot*g.sstride[o] + kb*1024}", (o, b)))
            else:
                off = g.slotaddr(o, slot) + b * 2048 + kb * 1024
                w, off = off // 65536, off % 65536
                out.append((f"ds_read_b128 v[{f}:{f+3}], v{addr[(o,None,w)]} offset:{off}", (o, b)))
            return out
        morder = []
        mo_ = cfg.get('morder', 'auto'); snake = cfg.get('snake', 1)
        if mo_ == 'p' or (mo_ == 'auto' and nPw >= nQw):
            for p in range(nPw):
                for q in (range(nQw) if (p % 2 == 0 or not snake) else range(nQw - 1, -1, -1)): morder.append((p, q))
        elif mo_ == 'diag':
            for d_ in range(nQw):
                for p in range(nPw): morder.append((p, (p + d_) % nQw))
        else:
            for q in range(nQw):
                for p in (range(nPw) if (q % 2 == 0 or not snake) else range(nPw - 1, -1, -1)): morder.append((p, q))
        forder = []
        for (p, q) in morder:
            for f in ((0, p), (1, q)):
                if f not in forder: forder.append(f)
        def reads(slot, kb, st):
            out = []
            for (o, b) in forder: out += rd1(slot, kb, st, o, b)
            return out
        R = len(reads(0, 0, 0))
        lastpos = {}
        for i, (_, f) in enumerate(reads(0, 0, 0)): lastpos[f] = i
        def half(st, rd, barrier, tail="", vm=False):
            rd = list(rd); k = 0; waited = -1
            mo = morder
            m32 = cfg.get('mf32')
            if m32:
                mo = [(p, q) for (p, q) in morder if (p & 1) == (q & 1)]
            for i, (p, q) in enumerate(mo):
                if barrier and i == 0:
                    if g.lag == 0:
                        e("s_waitcnt vmcnt(0) lgkmcnt(0)" if vm else "s_waitcnt lgkmcnt(0)"); waited = R
                    e("s_barrier")
                need = max(lastpos[(0, p)], lastpos[(1, q)])
                if need > waited:
                    e(f"s_waitcnt lgkmcnt({min(R - 1 - need + k, 15)})")
                    waited = need
                c = acc(p, q); fp = frag(st, 0, p); fq = frag(st, 1, q)
                if m32:
                    c = ((p >> 1) * (nQw // 2) + (q >> 1)) * 16
                    e(f"v_mfma_f32_32x32x16_bf16 v[{c}:{c+15}], v[{fp}:{fp+3}], v[{fq}:{fq+3}], v[{c}:{c+15}]")
                else:
                    e(f"v_mfma_f32_16x16x32_bf16 v[{c}:{c+3}], v[{fp}:{fp+3}], v[{fq}:{fq+3}], v[{c}:{c+3}]")
                for _ in range(2 if m32 else 1):
                    if rd:
                        e(rd.pop(0)[0]); k += 1
                if i == len(mo) - 2 and tail: e(tail)
            assert not rd
        for _ in range(prebar): e("s_barrier")
        e("s_waitcnt vmcnt(0) lgkmcnt(0)\ns_barrier" if (g.own and g.barvm is None) else "s_waitcnt lgkmcnt(0)\ns_barrier")
        if st0: st0()
        for r, _ in reads(g.first, 0, 0): e(r)
        e(f"s_mov_b32 s19, {(g.nsteps + g.first) // S}")
        if g.first: e(f"s_branch {g.nm}_c{g.first}")
        e(".p2align 6")
        for u in range(S):
            e(f"{g.nm}_c{u}:")
            half(0, reads(u, 1, 1), False)
            half(1, reads((u + 1) % S, 0, 0), True, "s_sub_u32 s19, s19, 1\ns_cmp_lg_u32 s19, 0" if u == S - 1 else "", vm=(g.barvm == u))
        e(f"s_cbranch_scc1 {g.nm}_c0")
        e("s_waitcnt lgkmcnt(0)\ns_barrier")
        if st1: st1()
        e("s_nop 7")
        return acc, nPw, nQw, FR

def pack4(a, dst, c0, c1):
    a.e(f"v_cvt_pk_bf16_f32 v{dst}, v{c0}, v{c0+1}\nv_cvt_pk_bf16_f32 v{dst+1}, v{c0+2}, v{c0+3}")
    a.e(f"v_cvt_pk_bf16_f32 v{dst+2}, v{c1}, v{c1+1}\nv_cvt_pk_bf16_f32 v{dst+3}, v{c1+2}, v{c1+3}")

SPIN = 1 << 15
def build(cfg):
    a = A(); e = a.e
    stf = cfg.get('stflags', 'sc1'); ldf = cfg.get('hflags', 'sc1')
    VL = 250
    def stamp(i, dbg=False):
        if (cfg.get('dbgD') or cfg.get('dbgP')) and i in (3, 4, 5, 6) and not dbg: return
        if dbg is True and not cfg.get('dbgD'): return
        if dbg == 'P' and not cfg.get('dbgP'): return
        if cfg.get('stamp'): e(f"s_memrealtime s[{68+2*i}:{69+2*i}]\ns_waitcnt lgkmcnt(0)")
    def stamp_out(t):
        if not cfg.get('stamp'): return
        e("s_waitcnt vmcnt(0)")
        stamp(7)
        if cfg.get('dbgout'):
            l = a.lbl("so")
            srd(a, 24, PDBG, 256)
            for i in range(8): e(f"s_sub_u32 s19, s{68+2*i}, s{NONCE}\nv_mov_b32 v{t+i}, s19")
            e(f"v_mov_b32 v{t+11}, 0\ns_cmp_lg_u32 s16, 4\ns_cbranch_scc1 {l}")
            e(f"s_cmp_eq_u32 s2, 101\ns_cselect_b32 s86, 4, 0\ns_cmp_eq_u32 s2, 5\ns_cselect_b32 s86, 36, s86\ns_cmp_eq_u32 s86, 0\ns_cbranch_scc1 {l}")
            e("s_mov_b64 exec, 1")
            for i in range(8): e(f"buffer_store_dword v{t+i}, v{t+11}, s[24:27], s86 offen offset:{4*i}")
            e(f"{l}:")
            return
        e("s_memtime s[86:87]\ns_getreg_b32 s88, hwreg(HW_REG_XCC_ID)\ns_waitcnt lgkmcnt(0)")
        srd(a, 24, PWS, 0x10000000)
        for i in range(8): e(f"v_mov_b32 v{t+i}, s{68+2*i}")
        e(f"s_sub_u32 s86, s86, s84\nv_mov_b32 v{t+8}, s86\nv_mov_b32 v{t+9}, s88\nv_mov_b32 v{t+10}, s100\nv_mov_b32 v{t+11}, 0")
        e(f"s_lshl_b32 s86, s2, 7\ns_and_b32 s87, s16, 4\ns_xor_b32 s87, s87, 4\ns_lshl_b32 s87, s87, 4\ns_add_u32 s86, s86, s87\ns_add_u32 s86, s86, {WS_STAMP}")
        l = a.lbl("st")
        e(f"s_and_b32 s87, s16, 3\ns_cmp_lg_u32 s87, 0\ns_cbranch_scc1 {l}")
        e("s_mov_b64 exec, 1")
        for i in range(3): e(f"buffer_store_dwordx4 v[{t+4*i}:{t+4*i+3}], v{t+11}, s[24:27], s86 offen offset:{16*i}")
        e(f"{l}:")
    def get_nonce(t, first_loaded=False):
        l = a.lbl("nn"); d = a.lbl("nd")
        rd = f"v_readfirstlane_b32 s{NONCE}, v{t+2}\nv_readfirstlane_b32 s{NONCE+1}, v{t+3}\ns_nop 3\ns_cmp_lg_u32 s{NONCE}, 0\ns_cbranch_scc1 {d}"
        e(f"s_mov_b32 s19, {SPIN}")
        if first_loaded: e(rd)
        e(f"{l}:")
        e(f"buffer_load_dwordx2 v[{t+2}:{t+3}], v{t}, s[28:31], 0 offen sc1\ns_waitcnt vmcnt(0)")
        e(rd)
        e(f"s_sleep 4\ns_sub_u32 s19, s19, 1\ns_cmp_lg_u32 s19, 0\ns_cbranch_scc1 {l}")
        e(f"{d}:")
    def flag_store(t, soff):
        e(f"v_mov_b32 v{t}, 0\nv_mov_b32 v{t+2}, s{NONCE}\nv_mov_b32 v{t+3}, s{NONCE+1}\ns_mov_b64 exec, 1")
        e(f"buffer_store_dwordx2 v[{t+2}:{t+3}], v{t}, s[24:27], s{soff} offen sc1")
        e("s_mov_b64 exec, -1")
    def flag_store0(t, soff):
        l = a.lbl("f0")
        e(f"s_cmp_lg_u32 s16, 0\ns_cbranch_scc1 {l}")
        flag_store(t, soff)
        e(f"{l}:")
    def poll_addr(t, nlanes):
        e(f"v_min_u32 v{t}, {nlanes-1}, v1\nv_lshlrev_b32 v{t}, 3, v{t}")
    def poll_load(t, soff):
        e(f"buffer_load_dwordx2 v[{t+2}:{t+3}], v{t}, s[24:27], s{soff} offen sc1")
    def poll_check(t, done):
        e(f"v_cmp_ne_u64 vcc, s[{NONCE}:{NONCE+1}], v[{t+2}:{t+3}]")
        e(f"s_nop 4\ns_cmp_eq_u64 vcc, 0\ns_cbranch_scc1 {done}")
    def poll(t, soff, nlanes, loaded=False):
        l = a.lbl("pl"); d = a.lbl("pd")
        if loaded: poll_check(t, d)
        else: poll_addr(t, nlanes)
        e(f"s_mov_b32 s19, {SPIN}")
        e(f"{l}:")
        poll_load(t, soff)
        e("s_waitcnt vmcnt(0)")
        poll_check(t, d)
        e(f"s_add_u32 s100, s100, 1\ns_sleep {cfg.get('psleep', 2)}\ns_sub_u32 s19, s19, 1\ns_cmp_lg_u32 s19, 0\ns_cbranch_scc1 {l}")
        e(f"{d}:")
    B = 40
    DL, DR, DKG, DVQ, DVS, DVO, DVQ2, DT = B, B+1, B+2, B+3, B+4, B+5, B+6, B+8
    DUN = B + 12; DQV = B + 44; DSV = B + 76; DNV = B + 92
    def dq_lanes():
        e(f"v_and_b32 v{DL}, 63, v0")
        e(f"v_lshrrev_b32 v{DKG}, 4, v{DL}\nv_bfe_u32 v{DR}, v{DL}, 3, 1\nv_lshl_add_u32 v{DR}, v{DKG}, 2, v{DR}")
        e(f"v_sub_u32 v{DKG}, 0, v{DKG}\nv_and_b32 v{DKG}, 3, v{DKG}\nv_xor_b32 v{DKG}, v{DKG}, v{DL}\nv_and_b32 v{DKG}, 7, v{DKG}")
        e(f"v_mul_u32_u24 v{DVQ}, 14336, v{DR}\nv_lshl_add_u32 v{DVQ}, v{DKG}, 4, v{DVQ}\nv_add_u32 v{DVQ2}, {2*14336}, v{DVQ}")
        e(f"v_lshlrev_b32 v{DVS}, 3, v{DKG}")
        e(f"v_bfe_u32 v{DVO}, v{DL}, 2, 1\nv_lshlrev_b32 v{DVO}, 10, v{DVO}\nv_lshl_add_u32 v{DVO}, v{DR}, 6, v{DVO}\nv_and_b32 v{DT}, 3, v{DL}\nv_lshl_add_u32 v{DVO}, v{DT}, 4, v{DVO}")
    def dq_scalars(sg, sks, sq, ss, so, sh=None):
        e(f"s_mul_i32 s{sq}, s{sg}, {32*14336}\ns_lshl_b32 s19, s{sks}, 8\ns_add_u32 s{sq}, s{sq}, s19")
        if sh is None: e(f"s_add_u32 s{sq+1}, s{sq}, {16*14336}")
        else: e(f"s_mul_i32 s19, s{sh}, {16*14336}\ns_add_u32 s{sq}, s{sq}, s19")
        e(f"s_mul_i32 s{ss}, s{sg}, 7168\ns_lshl_b32 s19, s{sks}, 7\ns_add_u32 s{ss}, s{ss}, s19")
        e(f"s_mul_i32 s{so}, s44, 56\ns_add_u32 s{so}, s{so}, s{sks}\ns_lshl_b32 s{so}, s{so}, 14")
        e(f"s_and_b32 s19, s{sg}, 3\ns_lshl_b32 s19, s19, 12\ns_add_u32 s{so}, s{so}, s19")
        if sh is not None: e(f"s_lshl_b32 s19, s{sh}, 11\ns_add_u32 s{so}, s{so}, s19")
    def dq_qload(h, ap, rq, sq):
        q = DQV + (h*2+ap)*8; v = DVQ2 if ap else DVQ
        e(f"buffer_load_dwordx4 v[{q}:{q+3}], v{v}, s[{rq}:{rq+3}], s{sq+h} offen {cfg.get('qflags', '')}")
        e(f"buffer_load_dwordx4 v[{q+4}:{q+7}], v{v}, s[{rq}:{rq+3}], s{sq+h} offen offset:128 {cfg.get('qflags', '')}")
    def dq_sload(rs, rz, ss):
        s_ = DSV
        for hf in range(2):
            e(f"buffer_load_dwordx2 v[{s_+2*hf}:{s_+2*hf+1}], v{DVS}, s[{rs}:{rs+3}], s{ss} offen offset:{hf*64}")
            e(f"buffer_load_dwordx2 v[{s_+4+2*hf}:{s_+5+2*hf}], v{DVS}, s[{rz}:{rz+3}], s{ss} offen offset:{hf*64}")
    def dq_unpack():
        u = DUN; s_ = DSV
        for j in range(4):
            e(f"v_lshlrev_b32 v{u+2*j}, 16, v{s_+j}\nv_and_b32 v{u+2*j+1}, 0xffff0000, v{s_+j}")
            e(f"v_lshlrev_b32 v{u+8+2*j}, 16, v{s_+4+j}\nv_and_b32 v{u+8+2*j+1}, 0xffff0000, v{s_+4+j}")
    def dq_conv1(h, ap):
        q = DQV + (h*2+ap)*8; T = DT
        for j in range(8): e(f"v_cvt_f32_i32 v{q+j}, v{q+j}")
        for j in range(4): e(f"v_cvt_pk_bf16_f32 v{T+j}, v{q+2*j}, v{q+2*j+1}")
        for j in range(4): e(f"v_lshlrev_b32 v{q+2*j}, 16, v{T+j}\nv_and_b32 v{q+2*j+1}, 0xffff0000, v{T+j}")
    def dq_conv2(h, ap, ro, so):
        q = DQV + (h*2+ap)*8; u = DUN; o = DUN + 16 + (h*2+ap)*4; T = DT
        for j in range(4): e(f"v_pk_add_f32 v[{q+2*j}:{q+2*j+1}], v[{q+2*j}:{q+2*j+1}], v[{u+8+2*j}:{u+9+2*j}] neg_lo:[0,1] neg_hi:[0,1]")
        for j in range(4): e(f"v_cvt_pk_bf16_f32 v{T+j}, v{q+2*j}, v{q+2*j+1}")
        for j in range(4): e(f"v_lshlrev_b32 v{q+2*j}, 16, v{T+j}\nv_and_b32 v{q+2*j+1}, 0xffff0000, v{T+j}")
        for j in range(4): e(f"v_pk_mul_f32 v[{q+2*j}:{q+2*j+1}], v[{q+2*j}:{q+2*j+1}], v[{u+2*j}:{u+2*j+1}]")
        for j in range(4): e(f"v_cvt_pk_bf16_f32 v{o+j}, v{q+2*j}, v{q+2*j+1}")
        e(f"buffer_store_dwordx4 v[{o}:{o+3}], v{DVO}, s[{ro}:{ro+3}], s{so} offen offset:{h*2048+ap*128} sc1")
    def dq_conv(h, ap, ro, so):
        dq_conv1(h, ap); dq_conv2(h, ap, ro, so)
    def dequant1():
        dq_lanes()
        e("s_and_b32 s36, s16, 3\ns_lshl_b32 s37, s44, 2\ns_add_u32 s36, s36, s37")
        dall = cfg.get('dall', 0)
        if dall:
            e("s_lshr_b32 s37, s16, 2\ns_mul_i32 s37, s37, 28\ns_add_u32 s37, s37, s45")
            dq_scalars(36, 37, 38, 40, 41)
        else:
            e("s_add_u32 s37, s23, s45\ns_lshr_b32 s39, s16, 2")
            dq_scalars(36, 37, 38, 40, 41, sh=39)
        e("s_waitcnt lgkmcnt(0)")
        srd(a, 12, PQW, 1024*3584*4)
        dq_qload(0, 0, 12, 38); dq_qload(0, 1, 12, 38)
        srd(a, 24, PSC, 32*3584*2)
        srd(a, 28, PZE, 32*3584*2)
        dq_sload(24, 28, 40)
        if dall: dq_qload(1, 0, 12, 38); dq_qload(1, 1, 12, 38)
        x = 4 if dall else 0
        srd(a, 28, PDBG, 256)
        e(f"v_mov_b32 v{DNV}, 0")
        e(f"buffer_load_dwordx2 v[{DNV+2}:{DNV+3}], v{DNV}, s[28:31], 0 offen sc1")
        srd(a, 4, PWS, 1024*3584*2, WS_WQ)
        stamp(3, True)
        if cfg.get('vearly', 2):
            e(f"s_mul_i32 s20, s44, {56*16384}\ns_lshl_b32 s21, s45, 8\ns_mov_b32 s47, s41")
            if cfg.get('remap', 0): e("s_lshr_b32 s19, s43, 2\ns_cmp_eq_u32 s19, 6\ns_cselect_b32 s3, -12, 2\ns_lshl_b32 s3, s3, 7")
            else: e("s_mov_b32 s3, 0")
            srd(a, 8, PV, 3584*3584*2)
            e("s_and_b32 s17, s16, 3")
            G1.p_setup()
        e(f"s_waitcnt vmcnt({7+x})")
        dq_conv1(0, 0)
        e(f"s_waitcnt vmcnt({5+x})")
        dq_conv1(0, 1)
        e(f"s_waitcnt vmcnt({1+x})")
        stamp(4, True)
        dq_unpack()
        dq_conv2(0, 0, 4, 41); dq_conv2(0, 1, 4, 41)
        if dall:
            e("s_waitcnt vmcnt(5)"); dq_conv(1, 0, 4, 41)
            e("s_waitcnt vmcnt(4)"); dq_conv(1, 1, 4, 41)
        stamp(6, True)
        e(f"s_waitcnt vmcnt({4 if dall else 2})")
        get_nonce(DNV, True)
        srd(a, 24, PWS, 32768, WS_FL)
        e("s_lshl_b32 s28, s44, 8\ns_lshl_b32 s41, s45, 3\ns_add_u32 s46, s28, s41")
        e("s_waitcnt vmcnt(0)\ns_barrier")
        flag_store0(DT, 46)
        e("s_barrier")

    def code_pf(vt, wave_sgpr):
        l = a.lbl("cp")
        e(f"s_getpc_b64 s[38:39]\n{l}:\ns_sub_u32 s38, s38, {l}-{KN}\ns_subb_u32 s39, s39, 0")
        e(f"s_lshl_b32 s19, s{wave_sgpr}, 13\nv_mbcnt_lo_u32_b32 v{vt}, -1, 0\nv_mbcnt_hi_u32_b32 v{vt}, -1, v{vt}\nv_lshl_add_u32 v{vt}, v{vt}, 7, s19")
        e(f"v_min_u32 v{vt}, L_end-{KN}, v{vt}")
        e(f"global_load_dword v{VL+1}, v{vt}, s[38:39]")
    G1 = Gemm(a, "p1", Op('lin', 8, 16384, lay='row', flags=ldf), Op('tr', 8, 64*7168, 7168, kmap='split64'), cfg.get('S1', 4), cfg.get('lag1', 0), 56, cfg.get('lead1', 4), cfg)
    G2 = Gemm(a, "p2", Op('lin', 16, 32768, flags=ldf), Op('lin', 8, 16384, lay='perm8', flags=ldf), 3, 0, 16, 0, cfg)
    G2.grid = (4, 1); G2.base = [131072, 65536]; G2.wrap = [163840, 0]; G2.rot = 1; G2.own = True; G2.lds = 163840; G2.barvm = (None if cfg.get('pub0', 1) else G2.first)
    GX = Gemm(a, "px", Op('tr', 16, 64*2048, 2048), Op('gather', 8, 128, 2048, lay='row'), 3, 0, 16, cfg.get('leadx', 2), cfg, rmask=1)
    G1.ops[1].splitcol = True
    G2.halfseq = bool(cfg.get('hs2', 1))
    G1.seq2 = bool(cfg.get('seq2', 7) & 1); G2.seq2 = bool(cfg.get('seq2', 7) & 2); GX.seq2 = bool(cfg.get('seq2', 7) & 4)
    assert G1.S == 4 and G1.lag == 0
    lds = max(G1.lds, G2.lds, GX.lds)
    e(f"; @launch grid=(256,1,1) block=(512,1,1) lds={lds}")
    e('.amdgcn_target "amdgcn-amd-amdhsa--gfx950"')
    e(f".text\n.globl {KN}\n.p2align 8\n.type {KN},@function\n{KN}:")
    e("s_cmp_ge_u32 s2, 256\ns_cbranch_scc1 L_end")
    e("s_load_dwordx16 s[48:63], s[0:1], 0\ns_load_dwordx2 s[64:65], s[0:1], 64")
    if cfg.get('stamp'):
        e("s_memtime s[84:85]")
        for i in range(1, 8): e(f"s_mov_b64 s[{68+2*i}:{69+2*i}], 0")
    e("s_memrealtime s[68:69]")
    e("v_lshrrev_b32 v1, 6, v0\ns_and_b32 s42, s2, 7\nv_readfirstlane_b32 s16, v1\ns_lshr_b32 s43, s2, 3\ns_mov_b32 s100, 0")
    e("s_or_b32 s19, s2, s16\ns_cmp_lg_u32 s19, 0\ns_cbranch_scc1 L_non")
    e("s_waitcnt lgkmcnt(0)")
    srd(a, 28, PDBG, 256)
    e("s_or_b32 s19, s68, 1\nv_mov_b32 v2, 0\nv_mov_b32 v4, s19\nv_mov_b32 v5, s69\ns_mov_b64 exec, 1")
    e("buffer_store_dwordx2 v[4:5], v2, s[28:31], 0 offen sc1\ns_mov_b64 exec, -1")
    e("L_non:")
    e("s_cmp_ge_u32 s2, 32\ns_cbranch_scc1 L_g")
    if cfg.get('cpf', 3) & 1:
        e("s_and_b32 s36, s16, 3")
        code_pf(VL, 36)
    e("s_branch L_xr\nL_g:")
    e("s_sub_u32 s43, s43, 4")
    e("s_and_b32 s44, s43, 3\ns_lshr_b32 s45, s43, 2")
    e("s_add_u32 s22, s44, s45\ns_and_b32 s22, s22, 3")
    e("s_and_b32 s46, s42, 1\ns_lshl_b32 s46, s46, 2\ns_add_u32 s44, s44, s46")
    e("s_lshr_b32 s46, s42, 1\ns_mul_i32 s46, s46, 7\ns_add_u32 s45, s45, s46")
    if cfg.get('kxor', 4):
        G1.usexor = True
        e(f"s_mov_b32 s23, 0\ns_and_b32 s94, s42, 1\ns_mul_i32 s94, s94, {cfg.get('kxor', 4)}")
    else:
        e(f"s_and_b32 s23, s42, 1\ns_mul_i32 s23, s23, {cfg.get('koff1', 28)}")
    for _ in range(cfg.get('gdelay', 0)): e("s_sleep 36")
    dequant1()
    stamp(1)
    e(f"s_mul_i32 s20, s44, {56*16384}\ns_lshl_b32 s21, s45, 8")
    srd(a, 8, PV, 3584*3584*2)
    srd(a, 12, PWS, 1024*3584*2, WS_WV)
    def g2_scalars():
        e("s_and_b32 s22, s44, 3\ns_lshl_b32 s22, s22, 1\ns_lshr_b32 s23, s44, 2\ns_lshl_b32 s23, s23, 3")
        e("s_lshl_b32 s21, s45, 18\ns_lshl_b32 s20, s44, 19")
        e("s_bfe_u32 s47, s43, 0x10002" if cfg.get('g2x', 1) else "s_mov_b32 s47, 0")
        srd(a, 4, PWS, 2048*1024*2, WS_XR)
        srd(a, 8, PWS, 1024*3584*2, WS_WV)
        srd(a, 12, POUT, 2048*3584*2)
    e("s_cmp_ge_u32 s16, 4\ns_cbranch_scc1 L_gc")
    def poll1(t, soff, nl, pre=None):
        l = a.lbl("p1w")
        e(f"s_cmp_lg_u32 s16, 0\ns_cbranch_scc1 {l}")
        if pre: pre()
        poll(t, soff, nl)
        e(f"{l}:\ns_barrier")
    if cfg.get('pprio'): e(f"s_setprio {cfg['pprio']}")
    G1.p_pre(1)
    e("s_add_u32 s29, s28, 2048\ns_add_u32 s30, s46, 2048")
    e("s_lshl_b32 s36, s44, 2\ns_add_u32 s36, s36, s16\ns_sub_u32 s37, 28, s23\ns_add_u32 s37, s37, s45")
    dq_scalars(36, 37, 90, 92, 93)
    e("s_lshl_b32 s95, s45, 6\ns_lshl_b32 s19, s44, 3\ns_add_u32 s95, s95, s19\ns_add_u32 s95, s95, 4096")
    poll1(24, 28, 28)
    stamp(2)
    e("s_waitcnt vmcnt(0)")
    G1.p_pre(0)
    Ta = cfg.get('Ta', 3)
    def d2_load():
        srd(a, 12, PSC, 32*3584*2)
        srd(a, 96, PZE, 32*3584*2)
        dq_sload(12, 96, 92)
        srd(a, 12, PQW, 1024*3584*4)
        for h in range(2):
            for ap in range(2): dq_qload(h, ap, 12, 90)
        G1.note('D2L', 12)
    def d2_conv(h, ap):
        def f():
            if h == 0 and ap == 0:
                G1.wait_for('D2L'); dq_unpack()
            dq_conv(h, ap, 4, 93)
            G1.note(('D2S', h, ap), 1)
        return f
    def d2_wait():
        G1.wait_for(('D2S', 1, 1))
    def d2_pub():
        flag_store0(DT, 30)
    def pre1():
        poll_addr(24, 28); poll_load(24, 29); G1.note('PL', 1)
    def post1():
        G1.wait_for('PL')
        poll(24, 29, 28, loaded=True)
    mids = {}
    k = G1.D - 1
    mids[Ta] = (d2_load, None, None)
    for n, (h, ap) in enumerate([(0, 0), (0, 1), (1, 0), (1, 1)]):
        mids[Ta + k + n] = (None, d2_conv(h, ap), None)
    mids[Ta + 2*k + 3] = (None, None, d2_wait)
    mids[Ta + 2*k + 4] = (d2_pub, None, None)
    T1 = cfg.get('T1', 19)
    if k == 1: mids[T1] = (pre1, None, post1)
    else:
        mids[T1 - k + 1] = (pre1, None, None); mids[T1] = (None, None, post1)
    if cfg.get('dbgP'):
        for i, T in enumerate(cfg.get('dbgT', (14, 28, 42, 54))):
            m = mids.get(T, (None, None, None))
            mids[T] = (m[0], m[1], (lambda i=i, p=m[2]: ((p() if p else None), stamp(3 + i, 'P'))))
    def prex():
        e("s_lshl_b32 s28, s44, 8\ns_lshr_b32 s19, s44, 2\ns_lshl_b32 s19, s19, 7\ns_add_u32 s28, s28, s19\ns_add_u32 s28, s28, 8192")
        poll_addr(24, 16); poll_load(24, 28); G1.note('XL', 1)
    def postx():
        G1.wait_for('XL')
        poll(24, 28, 16, loaded=True)
    mids[50] = (prex, None, None); mids[52] = (None, None, postx)
    def th0():
        g2_scalars()
        G2.p_setup()
        e("s_xor_b32 s29, s28, 128\ns_and_b32 s30, s95, -32\ns_xor_b32 s31, s30, 32")
        G2.p_issue((0,)); G1.note('X0', G2.npw[0])
    def th1():
        G2.p_issue((0,)); G1.note('X1', G2.npw[0])
    G1.p_loop(last_op=0, mid=mids, tailhook={54: th0, 55: th1})
    stamp(3)
    def pubw():
        e("s_cmp_lg_u32 s16, 0\ns_cbranch_scc1 L_w123")
        flag_store(28, 95)
        e("s_branch L_wj\nL_w123:\ns_sleep 2\nL_wj:")
    p2f = cfg.get('p2first', 1)
    if cfg.get('pub0', 1):
        e("s_waitcnt vmcnt(0)\ns_barrier")
        stamp(4)
        pubw()
        if p2f: G2.p_issue((0,), inc=False)
        e("s_barrier")
    else:
        G1.wait_for('X0', "\ns_barrier")
        e("s_waitcnt vmcnt(0)\ns_barrier")
        stamp(4)
        pubw()
        if p2f: G2.p_issue((0,), inc=False)
    poll(24, 30, 4)
    stamp(5)
    if p2f: G2.p_issue((1,)); h0 = [(2, G2.npw[1])]
    else: G2.p_issue(); h0 = [(2, G2.nld)]
    def pre2():
        poll_addr(24, 16); poll_load(24, 29)
        poll_addr(32, 4); poll_load(32, 31)
        G2.note('PL', 2)
    def post2():
        G2.wait_for('PL')
        poll(24, 29, 16, loaded=True)
        poll(32, 31, 4, loaded=True)
    G2.p_loop(mid={cfg.get('T2', 7): (pre2, None, post2)}, start=(3, 2, h0))
    stamp_out(32)
    e("s_endpgm")
    e("L_gc:")
    e(f"v_and_b32 v{VL}, 63, v0")
    e("s_bfe_u32 s17, s16, 0x10001\ns_and_b32 s18, s16, 1")
    if cfg.get('cprio', 2): e(f"s_setprio {cfg.get('cprio', 2)}")
    if cfg.get('xpf', 0):
        srd(a, 28, PX, 2048*1024*2)
        e(f"s_sub_u32 s36, s2, 32\ns_lshl_b32 s36, s36, 2\ns_and_b32 s37, s16, 3\ns_add_u32 s36, s36, s37\ns_lshl_b32 s36, s36, 13\nv_lshl_add_u32 v2, v{VL}, 7, s36")
        e(f"v_subrev_u32 v4, 0x400000, v2")
        e(f"buffer_load_dword v{VL+1}, v2, s[28:31], 0 offen")
        srd(a, 28, PU, 1024*1024*2)
        e(f"buffer_load_dword v{VL+1}, v4, s[28:31], 0 offen")
    acc, nPw, nQw, FR = G1.c_body(VL, lambda: stamp(2), lambda: stamp(3), prebar=1)
    t = FR + 40
    e("s_lshl_b32 s36, s45, 4\ns_lshl_b32 s37, s44, 1\ns_add_u32 s36, s36, s37\ns_add_u32 s36, s36, s17\ns_lshl_b32 s36, s36, 14")
    e(f"s_lshl_b32 s37, s18, 13\ns_add_u32 s36, s36, s37\ns_bfe_u32 s39, s43, {0x10002 if cfg.get('g2x', 1) else 0x1001f}\ns_xor_b32 s39, s39, s17\ns_lshl_b32 s39, s39, 14\ns_add_u32 s39, s39, s37\ns_add_u32 s39, s39, 65536\ns_add_u32 s37, s36, 4096")
    e(f"s_lshl_b32 s38, s18, 2\nv_xor_b32 v{t+8}, s38, v{VL}")
    for bq in range(nQw): e(f"v_xor_b32 v{t+bq}, {bq}, v{t+8}\nv_lshlrev_b32 v{t+bq}, 4, v{t+bq}\nv_add_u32 v{t+4+bq}, s39, v{t+bq}")
    k = 0
    for bq in range(nQw):
        for m in range(nPw // 2):
            d = FR + 4 * k; k += 1
            pack4(a, d, acc(2*m, bq), acc(2*m+1, bq))
            e(f"buffer_store_dwordx4 v[{d}:{d+3}], v{t+bq}, s[12:15], s{36+(bq>>1)} offen offset:{m*1024+(bq&1)*2048} sc1")
    k = 0
    for bq in range(nQw):
        for m in range(nPw // 2):
            d = FR + 4 * k; k += 1
            e(f"ds_write_b128 v{t+4+bq}, v[{d}:{d+3}] offset:{m*1024+bq*2048}")
    stamp(4)
    g2_scalars()
    e("s_and_b32 s17, s16, 3\ns_mov_b32 s18, 0\ns_waitcnt lgkmcnt(0)")
    acc, nPw, nQw, FR = G2.c_body(VL, lambda: stamp(5), lambda: stamp(6))
    t = FR + 90
    e(f"v_lshrrev_b32 v{t}, 4, v{VL}\nv_mul_u32_u24 v{t}, {4*7168}, v{t}")
    e(f"v_and_b32 v{t+1}, 15, v{VL}\nv_lshl_add_u32 v{t+1}, v{t+1}, 4, v{t}")
    e(f"s_lshl_b32 s36, s44, 2\ns_add_u32 s36, s36, s17\ns_mul_i32 s36, s36, {64*7168}\ns_lshl_b32 s37, s45, 8\ns_add_u32 s36, s36, s37")
    k = 0
    of = cfg.get('outflags', 'nt')
    for pb in range(nPw):
        for r in range(4):
            d = FR + 4 * k; k += 1
            e(f"s_add_u32 s37, s36, {(pb*16+r)*7168}")
            for j in range(4): e(f"v_cvt_pk_bf16_f32 v{d+j}, v{acc(pb,2*j)+r}, v{acc(pb,2*j+1)+r}")
            e(f"buffer_store_dwordx4 v[{d}:{d+3}], v{t+1}, s[12:15], s37 offen {of}")
    stamp_out(0)
    e("s_endpgm")
    e("L_xr:")
    e("s_waitcnt lgkmcnt(0)")
    if cfg.get('spf', 0):
        srd(a, 8, PV, 3584*3584*2)
        e("s_and_b32 s44, s42, 1\ns_lshl_b32 s44, s44, 2\ns_add_u32 s44, s44, s43\ns_lshl_b32 s44, s44, 3\ns_add_u32 s44, s44, s16\ns_lshl_b32 s44, s44, 6")
        e(f"s_lshr_b32 s45, s42, 1\ns_mul_i32 s45, s45, 1792\ns_add_u32 s45, s45, {cfg.get('sp0', 2)*64*7168}")
        e(f"v_and_b32 v1, 63, v0\nv_add_u32 v1, s44, v1\ns_mov_b32 s46, {(1<<32)//14+1}\ns_movk_i32 s47, 7168")
        for r in range(cfg['spf']):
            e("v_mul_hi_u32 v2, v1, s46\nv_mul_u32_u24 v3, 14, v2\nv_sub_u32 v3, v1, v3\nv_mul_lo_u32 v2, v2, s47\nv_lshl_add_u32 v2, v3, 7, v2")
            e(f"buffer_load_dword v{VL+1}, v2, s[8:11], s45 offen\nv_add_u32 v1, 4096, v1")
    srd(a, 4, PU, 1024*1024*2)
    srd(a, 8, PX, 2048*1024*2)
    srd(a, 12, PWS, 2048*1024*2, WS_XR)
    for _ in range(cfg.get('xdelay', 0)): e("s_sleep 36")
    e("s_mov_b32 s46, 0")
    def xr_scalars():
        e("s_and_b32 s45, s43, 1\ns_bfe_u32 s44, s43, 0x10001\ns_xor_b32 s22, s44, s45")
        e("s_lshl_b32 s47, s42, 1\ns_add_u32 s45, s45, s47")
        e("s_lshr_b32 s47, s42, 2\ns_xor_b32 s47, s46, s47\ns_and_b32 s47, s47, 1\ns_lshl_b32 s47, s47, 1\ns_add_u32 s44, s44, s47")
        e("s_and_b32 s23, s42, 3\ns_lshl_b32 s23, s23, 2")
        e("s_lshl_b32 s20, s44, 9\ns_lshl_b32 s21, s45, 18")
    e("s_cmp_ge_u32 s16, 4\ns_cbranch_scc1 L_xc")
    e("s_mov_b32 s17, s16")
    e("L_xp:")
    xr_scalars()
    GX.p_setup()
    GX.p_loop()
    e("s_add_u32 s46, s46, 1\ns_cmp_lt_u32 s46, 2\ns_cbranch_scc1 L_xp")
    stamp_out(32)
    e("s_endpgm")
    e("L_xc:")
    e(f"v_and_b32 v{VL}, 63, v0")
    e("s_bfe_u32 s17, s16, 0x10001\ns_and_b32 s18, s16, 1")
    srd(a, 28, PDBG, 256)
    srd(a, 24, PWS, 32768, WS_FL)
    e("L_xc2:")
    xr_scalars()
    acc, nPw, nQw, FR = GX.c_body(VL, lambda: stamp(2), lambda: stamp(3))
    t = FR + 80
    e(f"v_lshlrev_b32 v{t}, 4, v{VL}")
    e("s_lshl_b32 s36, s42, 4\ns_lshl_b32 s37, s44, 2\ns_add_u32 s36, s36, s37\ns_lshl_b32 s37, s17, 1\ns_add_u32 s36, s36, s37")
    e("s_lshl_b32 s36, s36, 15\ns_lshl_b32 s37, s18, 13\ns_add_u32 s36, s36, s37\ns_and_b32 s37, s45, 1\ns_lshl_b32 s37, s37, 14\ns_add_u32 s36, s36, s37")
    k = 0
    for mh in range(2):
        for bq in range(nQw):
            e(f"s_add_u32 s37, s36, {mh*32768 + bq*2048}")
            for kb in range(2):
                m = mh*2 + kb
                d = FR + 4 * k; k += 1
                pack4(a, d, acc(2*m, bq), acc(2*m+1, bq))
                e(f"buffer_store_dwordx4 v[{d}:{d+3}], v{t}, s[12:15], s37 offen offset:{kb*1024} sc1")
    e(f"v_mov_b32 v{t+2}, 0")
    get_nonce(t + 2)
    e("s_lshl_b32 s40, s42, 8\ns_lshr_b32 s41, s44, 1\ns_lshl_b32 s41, s41, 7\ns_add_u32 s40, s40, s41\ns_and_b32 s41, s45, 1\ns_lshl_b32 s41, s41, 6\ns_add_u32 s40, s40, s41")
    e("s_and_b32 s41, s44, 1\ns_lshl_b32 s41, s41, 5\ns_add_u32 s40, s40, s41\ns_and_b32 s41, s16, 3\ns_lshl_b32 s41, s41, 3\ns_add_u32 s40, s40, s41\ns_add_u32 s40, s40, 8192")
    e("s_waitcnt vmcnt(0)")
    flag_store(t + 6, 40)
    if cfg.get('cpf', 3) & 2:
        e("s_and_b32 s36, s16, 3")
        code_pf(t + 10, 36)
    if cfg.get('stamp'):
        l = a.lbl("sx")
        e(f"s_cmp_lg_u32 s46, 0\ns_cbranch_scc1 {l}")
        stamp(1)
        e(f"{l}:")
    e("s_add_u32 s46, s46, 1\ns_cmp_lt_u32 s46, 2\ns_cbranch_scc1 L_xc2")
    stamp_out(0)
    e("L_end:\ns_endpgm")
    e('.section .rodata,"a"\n.p2align 6')
    e(f""".amdhsa_kernel {KN}
  .amdhsa_next_free_vgpr 252
  .amdhsa_next_free_sgpr 102
  .amdhsa_accum_offset 252
  .amdhsa_group_segment_fixed_size 0
  .amdhsa_kernarg_size 72
  .amdhsa_user_sgpr_count 2
  .amdhsa_user_sgpr_kernarg_segment_ptr 1
  .amdhsa_system_sgpr_workgroup_id_x 1
  .amdhsa_float_denorm_mode_32 3
.end_amdhsa_kernel""")
    return a.text()

if __name__ == "__main__":
    out = sys.argv[1]
    cfg = {}
    for kv in sys.argv[2:]:
        k, v = kv.split("=", 1)
        cfg[k] = eval(v)
    open(out, "w").write(build(cfg))
```

```python
import sys

WS_WQ = 0
WS_WV = 8 << 20
WS_XR = 16 << 20
WS_FL = 24 << 20
WS_STAMP = 0xff00000
KN = "standalone__weight_only_int_quip__prompt_kernel"
PX, PQW, PSC, PZE, PU, PV, POUT, PDBG, PWS = 48, 50, 52, 54, 56, 58, 60, 62, 64
NONCE = 66

class A:
    def __init__(s): s.L = []; s.n = 0
    def e(s, t):
        for ln in t.split("\n"): s.L.append(ln)
    def lbl(s, p): s.n += 1; return f"{p}_{s.n}"
    def text(s): return "\n".join(s.L) + "\n"

def srd(a, d, p, nbytes, off=0):
    if off: a.e(f"s_add_u32 s{d}, s{p}, {off}\ns_addc_u32 s{d+1}, s{p+1}, 0")
    else: a.e(f"s_mov_b32 s{d}, s{p}\ns_mov_b32 s{d+1}, s{p+1}")
    a.e(f"s_mov_b32 s{d+2}, {nbytes}\ns_mov_b32 s{d+3}, 0x20000")

class Op:
    def __init__(s, kind, nblk, stepbytes, pitch=0, lay='kg', kmap='nat', flags=''):
        s.lay = lay; s.kmap = kmap; s.kind = kind; s.nblk = nblk; s.stepbytes = stepbytes; s.pitch = pitch
        s.stage = nblk * 2048; s.npieces = nblk * 2; s.R = nblk * 32; s.flags = flags

class Gemm:
    def __init__(g, a, nm, P, Q, S, lag, nsteps, lead, cfg, rmask=3):
        g.a = a; g.nm = nm; g.ops = [P, Q]; g.S = S; g.lag = lag; g.nsteps = nsteps; g.lead = lead; g.cfg = cfg; g.rmask = rmask
        g.base = [0, P.stage * S]
        g.rot = 0
        g.lds = (P.stage + Q.stage) * S
        g.npw = [P.npieces // 4, Q.npieces // 4]
        g.nld = sum(g.npw)
        g.D = S - 1 - lag
        g.first = (S - (nsteps % S)) % S
        g.sstride = [op.stage for op in g.ops]
        g.grid = (2, 2); g.wrap = [0, 0]; g.own = False; g.barvm = None
    def slotaddr(g, o, k):
        a_ = g.base[o] + k * g.sstride[o]
        return a_ % g.wrap[o] if g.wrap[o] else a_
    def p_setup(g, nv=8):
        e = g.a.e
        e("v_and_b32 v1, 63, v0")
        g.voff = [[], []]
        for o, op in enumerate(g.ops):
            sb = (20, 21)[o]; n = g.npw[o]
            if op.kind == 'lin':
                e(f"s_mul_i32 s19, s17, {n*1024}\ns_add_u32 s19, s19, s{sb}")
                e(f"v_lshl_add_u32 v{nv}, v1, 4, s19")
                g.voff[o].append(nv); nv += 1
                for u in range(1, n):
                    e(f"v_add_u32 v{nv}, {u*1024}, v{g.voff[o][0]}")
                    g.voff[o].append(nv); nv += 1
            elif op.kind == 'tr':
                cpr = op.R // 16; rpp = 1024 // op.R; sh = cpr.bit_length() - 1
                for u in range(n):
                    r = nv; nv += 1; g.voff[o].append(r)
                    e(f"s_mul_i32 s19, s17, {n*rpp}\ns_add_u32 s19, s19, {u*rpp}")
                    e(f"v_lshrrev_b32 v2, {sh}, v1\nv_add_u32 v2, s19, v2")
                    e(f"v_and_b32 v3, {cpr-1}, v1")
                    if op.kmap == 'nat':
                        e("v_and_b32 v4, 3, v2\nv_bfe_u32 v5, v2, 3, 1\nv_lshl_add_u32 v4, v5, 2, v4\nv_lshlrev_b32 v4, 1, v4")
                    else:
                        e("v_and_b32 v4, 7, v2\nv_lshlrev_b32 v4, 1, v4")
                    e("v_xor_b32 v3, v3, v4")
                    e(f"v_mul_u32_u24 v2, {op.pitch}, v2")
                    if getattr(op, 'splitcol', False):
                        e(f"v_lshrrev_b32 v4, 3, v3\nv_mul_lo_u32 v4, v4, s3\nv_add_u32 v2, v2, v4")
                    e(f"v_lshl_add_u32 v2, v3, 4, v2\nv_add_u32 v{r}, s{sb}, v2")
            else:
                e(f"s_mul_i32 s19, s17, {n//2*16}")
                e(f"v_lshrrev_b32 v2, 2, v1\nv_add_u32 v2, s19, v2\nv_mul_u32_u24 v2, {op.pitch}, v2")
                e(f"v_lshrrev_b32 v3, 4, v1\nv_sub_u32 v3, 0, v3\nv_xor_b32 v3, v3, v1\nv_and_b32 v3, 3, v3")
                e(f"v_lshl_add_u32 v2, v3, 4, v2\nv_add_u32 v2, s{sb}, v2")
                for u in range(n):
                    r = nv; nv += 1; g.voff[o].append(r)
                    e(f"v_add_u32 v{r}, {(u>>1)*16*op.pitch + (u&1)*64}, v2")
        for o, op in enumerate(g.ops):
            e(f"s_mul_i32 s{32+o}, s17, {g.npw[o]*1024}")
            if g.base[o]: e(f"s_add_u32 s{32+o}, s{32+o}, {g.base[o]}")
        g.p_rewind()
        return nv
    def p_rewind(g):
        g.a.e(f"s_mov_b32 s34, 0\ns_mov_b32 s35, {(g.first + g.rot) % g.S}")
    def p_issue(g, which=None, inc=True):
        e = g.a.e; P, Q = g.ops
        if which is None: which = g.cfg.get('order_' + g.nm, (1, 0))
        if g.own:
            e("s_xor_b32 s36, s34, s47\ns_add_u32 s36, s36, s22\ns_and_b32 s36, s36, 7\ns_and_b32 s37, s34, 8\ns_xor_b32 s37, s37, s23\ns_or_b32 s36, s36, s37")
        elif getattr(g, 'seq2', False):
            hs = getattr(g, 'halfseq', False)
            n = g.nsteps // 2 if hs else g.nsteps
            T = "s34"
            if hs:
                e(f"s_and_b32 s38, s34, {n-1}"); T = "s38"
            e(f"s_add_u32 s37, s22, {n - g.lead}\ns_cmp_gt_u32 {T}, s37\ns_cselect_b32 s37, 0, 1\ns_sub_u32 s37, {T}, s37")
            e(f"s_and_b32 s36, s37, {g.rmask}\ns_cmp_eq_u32 s36, s22\ns_cselect_b32 s36, {g.lead}, 0\ns_add_u32 s36, s36, s37")
            e(f"s_cmp_eq_u32 {T}, 0\ns_cselect_b32 s36, s22, s36\ns_add_u32 s36, s36, s23")
            if hs: e(f"s_and_b32 s37, s34, {n}\ns_add_u32 s36, s36, s37")
            e(f"s_sub_u32 s37, s36, {g.nsteps}\ns_cmp_ge_u32 s36, {g.nsteps}\ns_cselect_b32 s36, s37, s36")
        else:
            e(f"s_and_b32 s36, s34, {g.rmask}\ns_cmp_eq_u32 s36, s22")
            e(f"s_cselect_b32 s36, {g.lead}, 0\ns_add_u32 s36, s36, s34\ns_add_u32 s36, s36, s23")
            e(f"s_sub_u32 s37, s36, {g.nsteps}\ns_cmp_ge_u32 s36, {g.nsteps}\ns_cselect_b32 s36, s37, s36")
        if getattr(g, 'usexor', False): e("s_xor_b32 s36, s36, s94")
        for o in which:
            e(f"s_mul_i32 s{38+o}, s36, {g.ops[o].stepbytes}")
            e(f"s_mul_i32 s{40+o}, s35, {g.sstride[o]}\ns_add_u32 s{40+o}, s{40+o}, s{32+o}")
            if g.wrap[o]: e(f"s_sub_u32 s37, s{40+o}, {g.wrap[o]}\ns_cmp_ge_u32 s{40+o}, {g.wrap[o]}\ns_cselect_b32 s{40+o}, s37, s{40+o}")
        for o in which:
            for u in range(g.npw[o]):
                e(f"s_add_u32 m0, s{40+o}, {u*1024}")
                e("s_nop 0")
                e(f"buffer_load_dwordx4 v{g.voff[o][u]}, s[{4+4*o}:{7+4*o}], s{38+o} offen {g.ops[o].flags} lds")
        if not inc: return
        e("s_add_u32 s34, s34, 1")
        e(f"s_add_u32 s35, s35, 1\ns_cmp_eq_u32 s35, {g.S}\ns_cselect_b32 s35, 0, s35")
    def p_pre(g, o):
        l = g.a.lbl(g.nm + "_pre")
        g.p_rewind()
        g.a.e(f"{l}:")
        g.p_issue((o,))
        g.a.e(f"s_cmp_lt_u32 s34, 2\ns_cbranch_scc1 {l}")
    def wait_for(g, tag, extra=""):
        n = 0
        for t, c in reversed(g.hist):
            if t == tag: break
            n += c
        else: raise Exception("tag " + str(tag))
        g.a.e(f"s_waitcnt vmcnt({min(n, 63)}){extra}")
    def note(g, tag, n): g.hist.append((tag, n))
    def p_loop(g, last_op=None, mid=None, tailhook=None, start=None):
        e = g.a.e; D = g.D; N = g.nsteps
        mid = mid or {}
        g.hist = []
        if last_op is None and start is None:
            assert D == 2 and not mid
            l = g.a.lbl(g.nm + "_pl")
            e(f"{l}:")
            g.p_issue()
            e(f"s_cmp_lt_u32 s34, {D}\ns_cbranch_scc1 {l}")
            e(f"s_waitcnt vmcnt({g.nld*(D-1)})\ns_barrier")
            e(f"s_cmp_lt_u32 s34, {N}\ns_cbranch_scc1 {l}")
        else:
            if start:
                cur, nb, g.hist = start
            else:
                g.note(0, g.npw[last_op]); g.note(1, g.npw[last_op])
                g.wait_for(0, "\ns_barrier")
                cur = 2
                nb = 1
            def one(stage):
                pre, after, post = mid.get(stage, (None, None, None))
                if pre: pre()
                g.p_issue(); g.note(stage, g.nld)
                if after: after()
                return post
            def steady_ok():
                return all(isinstance(t, int) and c == g.nld for t, c in g.hist[-(D-2):]) if D > 2 else True
            while cur < N:
                ramp = (cur - nb) < D - 1 and nb >= 2
                nxt = min([k for k in mid if k >= cur] + [N])
                if not ramp and (cur - nb) == D - 1 and nxt - cur >= 2 and steady_ok():
                    l0 = g.a.lbl(g.nm + "_pm")
                    e(f"{l0}:")
                    g.p_issue()
                    e(f"s_waitcnt vmcnt({g.nld*(D-1)})\ns_barrier")
                    e(f"s_cmp_lt_u32 s34, {nxt}\ns_cbranch_scc1 {l0}")
                    for k in range(cur, nxt): g.note(k, g.nld)
                    nb += nxt - cur; cur = nxt
                    continue
                posts = [one(cur)]; cur += 1
                if ramp and cur < N:
                    posts.append(one(cur)); cur += 1
                g.wait_for(nb)
                for p in posts:
                    if p: p()
                e("s_barrier"); nb += 1
            while nb <= N:
                if tailhook and nb in tailhook: tailhook[nb]()
                if nb < N: g.wait_for(nb, "\ns_barrier")
                else: e("s_barrier")
                nb += 1
            e("s_barrier")
            return
        for i in range(D):
            e(f"s_waitcnt vmcnt({g.nld*max(D-2-i,0)})\ns_barrier")
        e("s_barrier")
    def c_body(g, VL, st0=None, st1=None, prebar=0):
        e = g.a.e; cfg = g.cfg; ops = g.ops; S = g.S; P, Q = ops
        nPw, nQw = P.nblk // g.grid[0], Q.nblk // g.grid[1]
        nacc = nPw * nQw * 4
        FR = nacc; setsz = (nPw + nQw) * 4; AD = FR + 2 * setsz
        def acc(p, q): return (p * nQw + q) * 4
        def frag(st, o, b): return FR + st * setsz + (b if o == 0 else nPw + b) * 4
        tt = FR; vt = VL
        addr = {}; nxt = AD
        for o, op in enumerate(ops):
            nw = (nPw, nQw)[o]; sw = (17, 18)[o]
            nwin = (g.sstride[o] * S + 65535) // 65536
            if op.kind == 'tr':
                e(f"v_lshrrev_b32 v{tt+1}, 4, v{vt}")
                e(f"v_bfe_u32 v{tt+2}, v{vt}, 2, 2")
                e(f"v_and_b32 v{tt+3}, 3, v{vt}")
                e(f"v_lshl_add_u32 v{tt+4}, v{tt+1}, {3 if op.kmap == 'nat' else 2}, v{tt+2}")
                e(f"v_mul_u32_u24 v{tt+4}, {op.R}, v{tt+4}")
                e(f"v_and_b32 v{tt+5}, 1, v{tt+1}")
                e(f"v_lshl_add_u32 v{tt+5}, v{tt+5}, 2, v{tt+2}")
                e(f"v_lshlrev_b32 v{tt+5}, 1, v{tt+5}")
                e(f"v_lshl_add_u32 v{tt+4}, v{tt+3}, 3, v{tt+4}")
                e(f"s_mul_i32 s19, s{sw}, {2*nw}")
                for b in range(nw):
                    e(f"s_add_u32 s36, s19, {2*b}")
                    e(f"v_xor_b32 v{tt+6}, s36, v{tt+5}")
                    e(f"v_lshl_add_u32 v{tt+6}, v{tt+6}, 4, v{tt+4}")
                    for w in range(nwin):
                        e(f"v_add_u32 v{nxt}, {g.base[o] + w*65536}, v{tt+6}")
                        addr[(o, b, w)] = nxt; nxt += 1
            elif op.lay == 'perm8':
                assert nw == 8 and nwin == 1 and op.nblk == 8
                e(f"v_bfe_u32 v{tt+1}, v{vt}, 1, 3")
                e(f"v_lshlrev_b32 v{tt+2}, 11, v{tt+1}\nv_add_u32 v{tt+2}, {g.base[o]}, v{tt+2}")
                e(f"v_lshrrev_b32 v{tt+3}, 4, v{vt}\nv_lshl_add_u32 v{tt+2}, v{tt+3}, 8, v{tt+2}")
                e(f"v_and_b32 v{tt+3}, 1, v{vt}\nv_lshl_add_u32 v{tt+2}, v{tt+3}, 7, v{tt+2}")
                for b in range(nw):
                    e(f"v_xor_b32 v{tt+3}, {b}, v{tt+1}\nv_lshl_add_u32 v{nxt}, v{tt+3}, 4, v{tt+2}")
                    addr[(o, b, 0)] = nxt; nxt += 1
            else:
                e(f"s_mul_i32 s19, s{sw}, {nw*2048}")
                if op.lay == 'kg':
                    e(f"v_lshl_add_u32 v{tt+6}, v{vt}, 4, s19")
                else:
                    e(f"v_and_b32 v{tt+1}, 15, v{vt}\nv_lshl_add_u32 v{tt+6}, v{tt+1}, 6, s19")
                    e(f"v_lshrrev_b32 v{tt+1}, 2, v{tt+1}\nv_sub_u32 v{tt+1}, 0, v{tt+1}\nv_lshrrev_b32 v{tt+2}, 4, v{vt}\nv_xor_b32 v{tt+1}, v{tt+1}, v{tt+2}\nv_and_b32 v{tt+1}, 3, v{tt+1}")
                    e(f"v_lshl_add_u32 v{tt+6}, v{tt+1}, 4, v{tt+6}")
                wins = sorted(set((g.slotaddr(o, k) + b*2048 + kb*1024) // 65536 for k in range(S) for b in range(nw) for kb in range(2)))
                for w in wins:
                    e(f"v_add_u32 v{nxt}, {w*65536}, v{tt+6}")
                    addr[(o, None, w)] = nxt; nxt += 1
        assert nxt <= VL, (nxt, VL)
        for i in range(0, nacc, 2): e(f"v_mov_b64 v[{i}:{i+1}], 0")
        def rd1(slot, kb, st, o, b):
            op = ops[o]; f = frag(st, o, b); out = []; slot = (slot + g.rot) % S
            if op.kind == 'tr':
                for t in range(2):
                    off = slot * op.stage + {'nat': kb*32 + t*4, 'split': kb*32 + t*16, 'split64': kb*16 + t*32}[op.kmap] * op.R
                    w, off = off // 65536, off % 65536
                    out.append((f"ds_read_b64_tr_b16 v[{f+2*t}:{f+2*t+1}], v{addr[(o,b,w)]} offset:{off}", (o, b)))
            elif op.lay == 'perm8':
                out.append((f"ds_read_b128 v[{f}:{f+3}], v{addr[(o,b,0)]} offset:{slot*g.sstride[o] + kb*1024}", (o, b)))
            else:
                off = g.slotaddr(o, slot) + b * 2048 + kb * 1024
                w, off = off // 65536, off % 65536
                out.append((f"ds_read_b128 v[{f}:{f+3}], v{addr[(o,None,w)]} offset:{off}", (o, b)))
            return out
        morder = []
        mo_ = cfg.get('morder', 'auto'); snake = cfg.get('snake', 1)
        if mo_ == 'p' or (mo_ == 'auto' and nPw >= nQw):
            for p in range(nPw):
                for q in (range(nQw) if (p % 2 == 0 or not snake) else range(nQw - 1, -1, -1)): morder.append((p, q))
        elif mo_ == 'diag':
            for d_ in range(nQw):
                for p in range(nPw): morder.append((p, (p + d_) % nQw))
        else:
            for q in range(nQw):
                for p in (range(nPw) if (q % 2 == 0 or not snake) else range(nPw - 1, -1, -1)): morder.append((p, q))
        forder = []
        for (p, q) in morder:
            for f in ((0, p), (1, q)):
                if f not in forder: forder.append(f)
        def reads(slot, kb, st):
            out = []
            for (o, b) in forder: out += rd1(slot, kb, st, o, b)
            return out
        R = len(reads(0, 0, 0))
        lastpos = {}
        for i, (_, f) in enumerate(reads(0, 0, 0)): lastpos[f] = i
        def half(st, rd, barrier, tail="", vm=False):
            rd = list(rd); k = 0; waited = -1
            mo = morder
            m32 = cfg.get('mf32')
            if m32:
                mo = [(p, q) for (p, q) in morder if (p & 1) == (q & 1)]
            for i, (p, q) in enumerate(mo):
                if barrier and i == 0:
                    if g.lag == 0:
                        e("s_waitcnt vmcnt(0) lgkmcnt(0)" if vm else "s_waitcnt lgkmcnt(0)"); waited = R
                    e("s_barrier")
                need = max(lastpos[(0, p)], lastpos[(1, q)])
                if need > waited:
                    e(f"s_waitcnt lgkmcnt({min(R - 1 - need + k, 15)})")
                    waited = need
                c = acc(p, q); fp = frag(st, 0, p); fq = frag(st, 1, q)
                if m32:
                    c = ((p >> 1) * (nQw // 2) + (q >> 1)) * 16
                    e(f"v_mfma_f32_32x32x16_bf16 v[{c}:{c+15}], v[{fp}:{fp+3}], v[{fq}:{fq+3}], v[{c}:{c+15}]")
                else:
                    e(f"v_mfma_f32_16x16x32_bf16 v[{c}:{c+3}], v[{fp}:{fp+3}], v[{fq}:{fq+3}], v[{c}:{c+3}]")
                for _ in range(2 if m32 else 1):
                    if rd:
                        e(rd.pop(0)[0]); k += 1
                if i == len(mo) - 2 and tail: e(tail)
            assert not rd
        for _ in range(prebar): e("s_barrier")
        e("s_waitcnt vmcnt(0) lgkmcnt(0)\ns_barrier" if (g.own and g.barvm is None) else "s_waitcnt lgkmcnt(0)\ns_barrier")
        if st0: st0()
        for r, _ in reads(g.first, 0, 0): e(r)
        e(f"s_mov_b32 s19, {(g.nsteps + g.first) // S}")
        if g.first: e(f"s_branch {g.nm}_c{g.first}")
        e(".p2align 6")
        for u in range(S):
            e(f"{g.nm}_c{u}:")
            half(0, reads(u, 1, 1), False)
            half(1, reads((u + 1) % S, 0, 0), True, "s_sub_u32 s19, s19, 1\ns_cmp_lg_u32 s19, 0" if u == S - 1 else "", vm=(g.barvm == u))
        e(f"s_cbranch_scc1 {g.nm}_c0")
        e("s_waitcnt lgkmcnt(0)\ns_barrier")
        if st1: st1()
        e("s_nop 7")
        return acc, nPw, nQw, FR

def pack4(a, dst, c0, c1):
    a.e(f"v_cvt_pk_bf16_f32 v{dst}, v{c0}, v{c0+1}\nv_cvt_pk_bf16_f32 v{dst+1}, v{c0+2}, v{c0+3}")
    a.e(f"v_cvt_pk_bf16_f32 v{dst+2}, v{c1}, v{c1+1}\nv_cvt_pk_bf16_f32 v{dst+3}, v{c1+2}, v{c1+3}")

SPIN = 1 << 15
def build(cfg):
    a = A(); e = a.e
    stf = cfg.get('stflags', 'sc1'); ldf = cfg.get('hflags', 'sc1')
    VL = 250
    def stamp(i, dbg=False):
        if (cfg.get('dbgD') or cfg.get('dbgP')) and i in (3, 4, 5, 6) and not dbg: return
        if dbg is True and not cfg.get('dbgD'): return
        if dbg == 'P' and not cfg.get('dbgP'): return
        if cfg.get('stamp'): e(f"s_memrealtime s[{68+2*i}:{69+2*i}]\ns_waitcnt lgkmcnt(0)")
    def stamp_out(t):
        if not cfg.get('stamp'): return
        e("s_waitcnt vmcnt(0)")
        stamp(7)
        if cfg.get('dbgout'):
            l = a.lbl("so")
            srd(a, 24, PDBG, 256)
            for i in range(8): e(f"s_sub_u32 s19, s{68+2*i}, s{NONCE}\nv_mov_b32 v{t+i}, s19")
            e(f"v_mov_b32 v{t+11}, 0\ns_cmp_lg_u32 s16, 4\ns_cbranch_scc1 {l}")
            e(f"s_cmp_eq_u32 s2, 101\ns_cselect_b32 s86, 4, 0\ns_cmp_eq_u32 s2, 5\ns_cselect_b32 s86, 36, s86\ns_cmp_eq_u32 s86, 0\ns_cbranch_scc1 {l}")
            e("s_mov_b64 exec, 1")
            for i in range(8): e(f"buffer_store_dword v{t+i}, v{t+11}, s[24:27], s86 offen offset:{4*i}")
            e(f"{l}:")
            return
        e("s_memtime s[86:87]\ns_getreg_b32 s88, hwreg(HW_REG_XCC_ID)\ns_waitcnt lgkmcnt(0)")
        srd(a, 24, PWS, 0x10000000)
        for i in range(8): e(f"v_mov_b32 v{t+i}, s{68+2*i}")
        e(f"s_sub_u32 s86, s86, s84\nv_mov_b32 v{t+8}, s86\nv_mov_b32 v{t+9}, s88\nv_mov_b32 v{t+10}, s100\nv_mov_b32 v{t+11}, 0")
        e(f"s_lshl_b32 s86, s2, 7\ns_and_b32 s87, s16, 4\ns_xor_b32 s87, s87, 4\ns_lshl_b32 s87, s87, 4\ns_add_u32 s86, s86, s87\ns_add_u32 s86, s86, {WS_STAMP}")
        l = a.lbl("st")
        e(f"s_and_b32 s87, s16, 3\ns_cmp_lg_u32 s87, 0\ns_cbranch_scc1 {l}")
        e("s_mov_b64 exec, 1")
        for i in range(3): e(f"buffer_store_dwordx4 v[{t+4*i}:{t+4*i+3}], v{t+11}, s[24:27], s86 offen offset:{16*i}")
        e(f"{l}:")
    def get_nonce(t, first_loaded=False):
        l = a.lbl("nn"); d = a.lbl("nd")
        rd = f"v_readfirstlane_b32 s{NONCE}, v{t+2}\nv_readfirstlane_b32 s{NONCE+1}, v{t+3}\ns_nop 3\ns_cmp_lg_u32 s{NONCE}, 0\ns_cbranch_scc1 {d}"
        e(f"s_mov_b32 s19, {SPIN}")
        if first_loaded: e(rd)
        e(f"{l}:")
        e(f"buffer_load_dwordx2 v[{t+2}:{t+3}], v{t}, s[28:31], 0 offen sc1\ns_waitcnt vmcnt(0)")
        e(rd)
        e(f"s_sleep 4\ns_sub_u32 s19, s19, 1\ns_cmp_lg_u32 s19, 0\ns_cbranch_scc1 {l}")
        e(f"{d}:")
    def flag_store(t, soff):
        e(f"v_mov_b32 v{t}, 0\nv_mov_b32 v{t+2}, s{NONCE}\nv_mov_b32 v{t+3}, s{NONCE+1}\ns_mov_b64 exec, 1")
        e(f"buffer_store_dwordx2 v[{t+2}:{t+3}], v{t}, s[24:27], s{soff} offen sc1")
        e("s_mov_b64 exec, -1")
    def flag_store0(t, soff):
        l = a.lbl("f0")
        e(f"s_cmp_lg_u32 s16, 0\ns_cbranch_scc1 {l}")
        flag_store(t, soff)
        e(f"{l}:")
    def poll_addr(t, nlanes):
        e(f"v_min_u32 v{t}, {nlanes-1}, v1\nv_lshlrev_b32 v{t}, 3, v{t}")
    def poll_load(t, soff):
        e(f"buffer_load_dwordx2 v[{t+2}:{t+3}], v{t}, s[24:27], s{soff} offen sc1")
    def poll_check(t, done):
        e(f"v_cmp_ne_u64 vcc, s[{NONCE}:{NONCE+1}], v[{t+2}:{t+3}]")
        e(f"s_nop 4\ns_cmp_eq_u64 vcc, 0\ns_cbranch_scc1 {done}")
    def poll(t, soff, nlanes, loaded=False):
        l = a.lbl("pl"); d = a.lbl("pd")
        if loaded: poll_check(t, d)
        else: poll_addr(t, nlanes)
        e(f"s_mov_b32 s19, {SPIN}")
        e(f"{l}:")
        poll_load(t, soff)
        e("s_waitcnt vmcnt(0)")
        poll_check(t, d)
        e(f"s_add_u32 s100, s100, 1\ns_sleep {cfg.get('psleep', 2)}\ns_sub_u32 s19, s19, 1\ns_cmp_lg_u32 s19, 0\ns_cbranch_scc1 {l}")
        e(f"{d}:")
    B = 40
    DL, DR, DKG, DVQ, DVS, DVO, DVQ2, DT = B, B+1, B+2, B+3, B+4, B+5, B+6, B+8
    DUN = B + 12; DQV = B + 44; DSV = B + 76; DNV = B + 92
    def dq_lanes():
        e(f"v_and_b32 v{DL}, 63, v0")
        e(f"v_lshrrev_b32 v{DKG}, 4, v{DL}\nv_bfe_u32 v{DR}, v{DL}, 3, 1\nv_lshl_add_u32 v{DR}, v{DKG}, 2, v{DR}")
        e(f"v_sub_u32 v{DKG}, 0, v{DKG}\nv_and_b32 v{DKG}, 3, v{DKG}\nv_xor_b32 v{DKG}, v{DKG}, v{DL}\nv_and_b32 v{DKG}, 7, v{DKG}")
        e(f"v_mul_u32_u24 v{DVQ}, 14336, v{DR}\nv_lshl_add_u32 v{DVQ}, v{DKG}, 4, v{DVQ}\nv_add_u32 v{DVQ2}, {2*14336}, v{DVQ}")
        e(f"v_lshlrev_b32 v{DVS}, 3, v{DKG}")
        e(f"v_bfe_u32 v{DVO}, v{DL}, 2, 1\nv_lshlrev_b32 v{DVO}, 10, v{DVO}\nv_lshl_add_u32 v{DVO}, v{DR}, 6, v{DVO}\nv_and_b32 v{DT}, 3, v{DL}\nv_lshl_add_u32 v{DVO}, v{DT}, 4, v{DVO}")
    def dq_scalars(sg, sks, sq, ss, so, sh=None):
        e(f"s_mul_i32 s{sq}, s{sg}, {32*14336}\ns_lshl_b32 s19, s{sks}, 8\ns_add_u32 s{sq}, s{sq}, s19")
        if sh is None: e(f"s_add_u32 s{sq+1}, s{sq}, {16*14336}")
        else: e(f"s_mul_i32 s19, s{sh}, {16*14336}\ns_add_u32 s{sq}, s{sq}, s19")
        e(f"s_mul_i32 s{ss}, s{sg}, 7168\ns_lshl_b32 s19, s{sks}, 7\ns_add_u32 s{ss}, s{ss}, s19")
        e(f"s_mul_i32 s{so}, s44, 56\ns_add_u32 s{so}, s{so}, s{sks}\ns_lshl_b32 s{so}, s{so}, 14")
        e(f"s_and_b32 s19, s{sg}, 3\ns_lshl_b32 s19, s19, 12\ns_add_u32 s{so}, s{so}, s19")
        if sh is not None: e(f"s_lshl_b32 s19, s{sh}, 11\ns_add_u32 s{so}, s{so}, s19")
    def dq_qload(h, ap, rq, sq):
        q = DQV + (h*2+ap)*8; v = DVQ2 if ap else DVQ
        e(f"buffer_load_dwordx4 v[{q}:{q+3}], v{v}, s[{rq}:{rq+3}], s{sq+h} offen {cfg.get('qflags', '')}")
        e(f"buffer_load_dwordx4 v[{q+4}:{q+7}], v{v}, s[{rq}:{rq+3}], s{sq+h} offen offset:128 {cfg.get('qflags', '')}")
    def dq_sload(rs, rz, ss):
        s_ = DSV
        for hf in range(2):
            e(f"buffer_load_dwordx2 v[{s_+2*hf}:{s_+2*hf+1}], v{DVS}, s[{rs}:{rs+3}], s{ss} offen offset:{hf*64}")
            e(f"buffer_load_dwordx2 v[{s_+4+2*hf}:{s_+5+2*hf}], v{DVS}, s[{rz}:{rz+3}], s{ss} offen offset:{hf*64}")
    def dq_unpack():
        u = DUN; s_ = DSV
        for j in range(4):
            e(f"v_lshlrev_b32 v{u+2*j}, 16, v{s_+j}\nv_and_b32 v{u+2*j+1}, 0xffff0000, v{s_+j}")
            e(f"v_lshlrev_b32 v{u+8+2*j}, 16, v{s_+4+j}\nv_and_b32 v{u+8+2*j+1}, 0xffff0000, v{s_+4+j}")
    def dq_conv1(h, ap):
        q = DQV + (h*2+ap)*8; T = DT
        for j in range(8): e(f"v_cvt_f32_i32 v{q+j}, v{q+j}")
        for j in range(4): e(f"v_cvt_pk_bf16_f32 v{T+j}, v{q+2*j}, v{q+2*j+1}")
        for j in range(4): e(f"v_lshlrev_b32 v{q+2*j}, 16, v{T+j}\nv_and_b32 v{q+2*j+1}, 0xffff0000, v{T+j}")
    def dq_conv2(h, ap, ro, so):
        q = DQV + (h*2+ap)*8; u = DUN; o = DUN + 16 + (h*2+ap)*4; T = DT
        for j in range(4): e(f"v_pk_add_f32 v[{q+2*j}:{q+2*j+1}], v[{q+2*j}:{q+2*j+1}], v[{u+8+2*j}:{u+9+2*j}] neg_lo:[0,1] neg_hi:[0,1]")
        for j in range(4): e(f"v_cvt_pk_bf16_f32 v{T+j}, v{q+2*j}, v{q+2*j+1}")
        for j in range(4): e(f"v_lshlrev_b32 v{q+2*j}, 16, v{T+j}\nv_and_b32 v{q+2*j+1}, 0xffff0000, v{T+j}")
        for j in range(4): e(f"v_pk_mul_f32 v[{q+2*j}:{q+2*j+1}], v[{q+2*j}:{q+2*j+1}], v[{u+2*j}:{u+2*j+1}]")
        for j in range(4): e(f"v_cvt_pk_bf16_f32 v{o+j}, v{q+2*j}, v{q+2*j+1}")
        e(f"buffer_store_dwordx4 v[{o}:{o+3}], v{DVO}, s[{ro}:{ro+3}], s{so} offen offset:{h*2048+ap*128} sc1")
    def dq_conv(h, ap, ro, so):
        dq_conv1(h, ap); dq_conv2(h, ap, ro, so)
    def dequant1():
        dq_lanes()
        e("s_and_b32 s36, s16, 3\ns_lshl_b32 s37, s44, 2\ns_add_u32 s36, s36, s37")
        dall = cfg.get('dall', 0)
        if dall:
            e("s_lshr_b32 s37, s16, 2\ns_mul_i32 s37, s37, 28\ns_add_u32 s37, s37, s45")
            dq_scalars(36, 37, 38, 40, 41)
        else:
            e("s_add_u32 s37, s23, s45\ns_lshr_b32 s39, s16, 2")
            dq_scalars(36, 37, 38, 40, 41, sh=39)
        e("s_waitcnt lgkmcnt(0)")
        srd(a, 12, PQW, 1024*3584*4)
        dq_qload(0, 0, 12, 38); dq_qload(0, 1, 12, 38)
        srd(a, 24, PSC, 32*3584*2)
        srd(a, 28, PZE, 32*3584*2)
        dq_sload(24, 28, 40)
        if dall: dq_qload(1, 0, 12, 38); dq_qload(1, 1, 12, 38)
        x = 4 if dall else 0
        srd(a, 28, PDBG, 256)
        e(f"v_mov_b32 v{DNV}, 0")
        e(f"buffer_load_dwordx2 v[{DNV+2}:{DNV+3}], v{DNV}, s[28:31], 0 offen sc1")
        srd(a, 4, PWS, 1024*3584*2, WS_WQ)
        stamp(3, True)
        if cfg.get('vearly', 2):
            e(f"s_mul_i32 s20, s44, {56*16384}\ns_lshl_b32 s21, s45, 8\ns_mov_b32 s47, s41")
            if cfg.get('remap', 0): e("s_lshr_b32 s19, s43, 2\ns_cmp_eq_u32 s19, 6\ns_cselect_b32 s3, -12, 2\ns_lshl_b32 s3, s3, 7")
            else: e("s_mov_b32 s3, 0")
            srd(a, 8, PV, 3584*3584*2)
            e("s_and_b32 s17, s16, 3")
            G1.p_setup()
        e(f"s_waitcnt vmcnt({7+x})")
        dq_conv1(0, 0)
        e(f"s_waitcnt vmcnt({5+x})")
        dq_conv1(0, 1)
        e(f"s_waitcnt vmcnt({1+x})")
        stamp(4, True)
        dq_unpack()
        dq_conv2(0, 0, 4, 41); dq_conv2(0, 1, 4, 41)
        if dall:
            e("s_waitcnt vmcnt(5)"); dq_conv(1, 0, 4, 41)
            e("s_waitcnt vmcnt(4)"); dq_conv(1, 1, 4, 41)
        stamp(6, True)
        e(f"s_waitcnt vmcnt({4 if dall else 2})")
        get_nonce(DNV, True)
        srd(a, 24, PWS, 32768, WS_FL)
        e("s_lshl_b32 s28, s44, 8\ns_lshl_b32 s41, s45, 3\ns_add_u32 s46, s28, s41")
        e("s_waitcnt vmcnt(0)\ns_barrier")
        flag_store0(DT, 46)
        e("s_barrier")

    def code_pf(vt, wave_sgpr):
        l = a.lbl("cp")
        e(f"s_getpc_b64 s[38:39]\n{l}:\ns_sub_u32 s38, s38, {l}-{KN}\ns_subb_u32 s39, s39, 0")
        e(f"s_lshl_b32 s19, s{wave_sgpr}, 13\nv_mbcnt_lo_u32_b32 v{vt}, -1, 0\nv_mbcnt_hi_u32_b32 v{vt}, -1, v{vt}\nv_lshl_add_u32 v{vt}, v{vt}, 7, s19")
        e(f"v_min_u32 v{vt}, L_end-{KN}, v{vt}")
        e(f"global_load_dword v{VL+1}, v{vt}, s[38:39]")
    G1 = Gemm(a, "p1", Op('lin', 8, 16384, lay='row', flags=ldf), Op('tr', 8, 64*7168, 7168, kmap='split64'), cfg.get('S1', 4), cfg.get('lag1', 0), 56, cfg.get('lead1', 4), cfg)
    G2 = Gemm(a, "p2", Op('lin', 16, 32768, flags=ldf), Op('lin', 8, 16384, lay='perm8', flags=ldf), 3, 0, 16, 0, cfg)
    G2.grid = (4, 1); G2.base = [131072, 65536]; G2.wrap = [163840, 0]; G2.rot = 1; G2.own = True; G2.lds = 163840; G2.barvm = (None if cfg.get('pub0', 1) else G2.first)
    GX = Gemm(a, "px", Op('tr', 16, 64*2048, 2048), Op('gather', 8, 128, 2048, lay='row'), 3, 0, 16, cfg.get('leadx', 2), cfg, rmask=1)
    G1.ops[1].splitcol = True
    G2.halfseq = bool(cfg.get('hs2', 1))
    G1.seq2 = bool(cfg.get('seq2', 7) & 1); G2.seq2 = bool(cfg.get('seq2', 7) & 2); GX.seq2 = bool(cfg.get('seq2', 7) & 4)
    assert G1.S == 4 and G1.lag == 0
    lds = max(G1.lds, G2.lds, GX.lds)
    e("; 256 workgroups (one per CU), 8 waves = 4 LDS-DMA producer waves + 4 MFMA consumer waves.")
    e(f"; @launch grid=(256,1,1) block=(512,1,1) lds={lds}")
    e('.amdgcn_target "amdgcn-amd-amdhsa--gfx950"')
    e(f".text\n.globl {KN}\n.p2align 8\n.type {KN},@function\n{KN}:")
    e("s_cmp_ge_u32 s2, 256\ns_cbranch_scc1 L_end")
    e("s_load_dwordx16 s[48:63], s[0:1], 0\ns_load_dwordx2 s[64:65], s[0:1], 64")
    if cfg.get('stamp'):
        e("s_memtime s[84:85]")
        for i in range(1, 8): e(f"s_mov_b64 s[{68+2*i}:{69+2*i}], 0")
    e("s_memrealtime s[68:69]")
    e("v_lshrrev_b32 v1, 6, v0\ns_and_b32 s42, s2, 7\nv_readfirstlane_b32 s16, v1\ns_lshr_b32 s43, s2, 3\ns_mov_b32 s100, 0")
    e("s_or_b32 s19, s2, s16\ns_cmp_lg_u32 s19, 0\ns_cbranch_scc1 L_non")
    e("s_waitcnt lgkmcnt(0)")
    srd(a, 28, PDBG, 256)
    e("s_or_b32 s19, s68, 1\nv_mov_b32 v2, 0\nv_mov_b32 v4, s19\nv_mov_b32 v5, s69\ns_mov_b64 exec, 1")
    e("buffer_store_dwordx2 v[4:5], v2, s[28:31], 0 offen sc1\ns_mov_b64 exec, -1")
    e("L_non:")
    e("s_cmp_ge_u32 s2, 32\ns_cbranch_scc1 L_g")
    if cfg.get('cpf', 3) & 1:
        e("s_and_b32 s36, s16, 3")
        code_pf(VL, 36)
    e("s_branch L_xr\nL_g:")
    e("s_sub_u32 s43, s43, 4")
    e("s_and_b32 s44, s43, 3\ns_lshr_b32 s45, s43, 2")
    e("s_add_u32 s22, s44, s45\ns_and_b32 s22, s22, 3")
    e("s_and_b32 s46, s42, 1\ns_lshl_b32 s46, s46, 2\ns_add_u32 s44, s44, s46")
    e("s_lshr_b32 s46, s42, 1\ns_mul_i32 s46, s46, 7\ns_add_u32 s45, s45, s46")
    if cfg.get('kxor', 4):
        G1.usexor = True
        e(f"s_mov_b32 s23, 0\ns_and_b32 s94, s42, 1\ns_mul_i32 s94, s94, {cfg.get('kxor', 4)}")
    else:
        e(f"s_and_b32 s23, s42, 1\ns_mul_i32 s23, s23, {cfg.get('koff1', 28)}")
    for _ in range(cfg.get('gdelay', 0)): e("s_sleep 36")
    dequant1()
    stamp(1)
    e(f"s_mul_i32 s20, s44, {56*16384}\ns_lshl_b32 s21, s45, 8")
    srd(a, 8, PV, 3584*3584*2)
    srd(a, 12, PWS, 1024*3584*2, WS_WV)
    def g2_scalars():
        e("s_and_b32 s22, s44, 3\ns_lshl_b32 s22, s22, 1\ns_lshr_b32 s23, s44, 2\ns_lshl_b32 s23, s23, 3")
        e("s_lshl_b32 s21, s45, 18\ns_lshl_b32 s20, s44, 19")
        e("s_bfe_u32 s47, s43, 0x10002" if cfg.get('g2x', 1) else "s_mov_b32 s47, 0")
        srd(a, 4, PWS, 2048*1024*2, WS_XR)
        srd(a, 8, PWS, 1024*3584*2, WS_WV)
        srd(a, 12, POUT, 2048*3584*2)
    e("s_cmp_ge_u32 s16, 4\ns_cbranch_scc1 L_gc")
    def poll1(t, soff, nl, pre=None):
        l = a.lbl("p1w")
        e(f"s_cmp_lg_u32 s16, 0\ns_cbranch_scc1 {l}")
        if pre: pre()
        poll(t, soff, nl)
        e(f"{l}:\ns_barrier")
    if cfg.get('pprio'): e(f"s_setprio {cfg['pprio']}")
    G1.p_pre(1)
    e("s_add_u32 s29, s28, 2048\ns_add_u32 s30, s46, 2048")
    e("s_lshl_b32 s36, s44, 2\ns_add_u32 s36, s36, s16\ns_sub_u32 s37, 28, s23\ns_add_u32 s37, s37, s45")
    dq_scalars(36, 37, 90, 92, 93)
    e("s_lshl_b32 s95, s45, 6\ns_lshl_b32 s19, s44, 3\ns_add_u32 s95, s95, s19\ns_add_u32 s95, s95, 4096")
    poll1(24, 28, 28)
    stamp(2)
    e("s_waitcnt vmcnt(0)")
    G1.p_pre(0)
    Ta = cfg.get('Ta', 3)
    def d2_load():
        srd(a, 12, PSC, 32*3584*2)
        srd(a, 96, PZE, 32*3584*2)
        dq_sload(12, 96, 92)
        srd(a, 12, PQW, 1024*3584*4)
        for h in range(2):
            for ap in range(2): dq_qload(h, ap, 12, 90)
        G1.note('D2L', 12)
    def d2_conv(h, ap):
        def f():
            if h == 0 and ap == 0:
                G1.wait_for('D2L'); dq_unpack()
            dq_conv(h, ap, 4, 93)
            G1.note(('D2S', h, ap), 1)
        return f
    def d2_wait():
        G1.wait_for(('D2S', 1, 1))
    def d2_pub():
        flag_store0(DT, 30)
    def pre1():
        poll_addr(24, 28); poll_load(24, 29); G1.note('PL', 1)
    def post1():
        G1.wait_for('PL')
        poll(24, 29, 28, loaded=True)
    mids = {}
    k = G1.D - 1
    mids[Ta] = (d2_load, None, None)
    for n, (h, ap) in enumerate([(0, 0), (0, 1), (1, 0), (1, 1)]):
        mids[Ta + k + n] = (None, d2_conv(h, ap), None)
    mids[Ta + 2*k + 3] = (None, None, d2_wait)
    mids[Ta + 2*k + 4] = (d2_pub, None, None)
    T1 = cfg.get('T1', 19)
    if k == 1: mids[T1] = (pre1, None, post1)
    else:
        mids[T1 - k + 1] = (pre1, None, None); mids[T1] = (None, None, post1)
    if cfg.get('dbgP'):
        for i, T in enumerate(cfg.get('dbgT', (14, 28, 42, 54))):
            m = mids.get(T, (None, None, None))
            mids[T] = (m[0], m[1], (lambda i=i, p=m[2]: ((p() if p else None), stamp(3 + i, 'P'))))
    def prex():
        e("s_lshl_b32 s28, s44, 8\ns_lshr_b32 s19, s44, 2\ns_lshl_b32 s19, s19, 7\ns_add_u32 s28, s28, s19\ns_add_u32 s28, s28, 8192")
        poll_addr(24, 16); poll_load(24, 28); G1.note('XL', 1)
    def postx():
        G1.wait_for('XL')
        poll(24, 28, 16, loaded=True)
    mids[50] = (prex, None, None); mids[52] = (None, None, postx)
    def th0():
        g2_scalars()
        G2.p_setup()
        e("s_xor_b32 s29, s28, 128\ns_and_b32 s30, s95, -32\ns_xor_b32 s31, s30, 32")
        G2.p_issue((0,)); G1.note('X0', G2.npw[0])
    def th1():
        G2.p_issue((0,)); G1.note('X1', G2.npw[0])
    G1.p_loop(last_op=0, mid=mids, tailhook={54: th0, 55: th1})
    stamp(3)
    p2f = cfg.get('p2first', 1)
    e("s_waitcnt vmcnt(0)\ns_barrier")
    stamp(4)
    flag_store0(28, 95)
    e("s_barrier")
    if p2f: G2.p_issue((0,), inc=False)
    poll(24, 30, 4)
    stamp(5)
    if p2f: G2.p_issue((1,)); h0 = [(2, G2.npw[1])]
    else: G2.p_issue(); h0 = [(2, G2.nld)]
    def pre2():
        poll_addr(24, 16); poll_load(24, 29)
        poll_addr(32, 4); poll_load(32, 31)
        G2.note('PL', 2)
    def post2():
        G2.wait_for('PL')
        poll(24, 29, 16, loaded=True)
        poll(32, 31, 4, loaded=True)
    G2.p_loop(mid={cfg.get('T2', 7): (pre2, None, post2)}, start=(3, 2, h0))
    stamp_out(32)
    e("s_endpgm")
    e("L_gc:")
    e(f"v_and_b32 v{VL}, 63, v0")
    e("s_bfe_u32 s17, s16, 0x10001\ns_and_b32 s18, s16, 1")
    if cfg.get('cprio', 2): e(f"s_setprio {cfg.get('cprio', 2)}")
    if cfg.get('xpf', 0):
        srd(a, 28, PX, 2048*1024*2)
        e(f"s_sub_u32 s36, s2, 32\ns_lshl_b32 s36, s36, 2\ns_and_b32 s37, s16, 3\ns_add_u32 s36, s36, s37\ns_lshl_b32 s36, s36, 13\nv_lshl_add_u32 v2, v{VL}, 7, s36")
        e(f"v_subrev_u32 v4, 0x400000, v2")
        e(f"buffer_load_dword v{VL+1}, v2, s[28:31], 0 offen")
        srd(a, 28, PU, 1024*1024*2)
        e(f"buffer_load_dword v{VL+1}, v4, s[28:31], 0 offen")
    acc, nPw, nQw, FR = G1.c_body(VL, lambda: stamp(2), lambda: stamp(3), prebar=1)
    t = FR + 40
    e("s_lshl_b32 s36, s45, 4\ns_lshl_b32 s37, s44, 1\ns_add_u32 s36, s36, s37\ns_add_u32 s36, s36, s17\ns_lshl_b32 s36, s36, 14")
    e(f"s_lshl_b32 s37, s18, 13\ns_add_u32 s36, s36, s37\ns_bfe_u32 s39, s43, {0x10002 if cfg.get('g2x', 1) else 0x1001f}\ns_xor_b32 s39, s39, s17\ns_lshl_b32 s39, s39, 14\ns_add_u32 s39, s39, s37\ns_add_u32 s39, s39, 65536\ns_add_u32 s37, s36, 4096")
    e(f"s_lshl_b32 s38, s18, 2\nv_xor_b32 v{t+8}, s38, v{VL}")
    for bq in range(nQw): e(f"v_xor_b32 v{t+bq}, {bq}, v{t+8}\nv_lshlrev_b32 v{t+bq}, 4, v{t+bq}\nv_add_u32 v{t+4+bq}, s39, v{t+bq}")
    k = 0
    for bq in range(nQw):
        for m in range(nPw // 2):
            d = FR + 4 * k; k += 1
            pack4(a, d, acc(2*m, bq), acc(2*m+1, bq))
            e(f"buffer_store_dwordx4 v[{d}:{d+3}], v{t+bq}, s[12:15], s{36+(bq>>1)} offen offset:{m*1024+(bq&1)*2048} sc1")
    k = 0
    for bq in range(nQw):
        for m in range(nPw // 2):
            d = FR + 4 * k; k += 1
            e(f"ds_write_b128 v{t+4+bq}, v[{d}:{d+3}] offset:{m*1024+bq*2048}")
    stamp(4)
    g2_scalars()
    e("s_and_b32 s17, s16, 3\ns_mov_b32 s18, 0\ns_waitcnt lgkmcnt(0)")
    acc, nPw, nQw, FR = G2.c_body(VL, lambda: stamp(5), lambda: stamp(6))
    t = FR + 90
    e(f"v_lshrrev_b32 v{t}, 4, v{VL}\nv_mul_u32_u24 v{t}, {4*7168}, v{t}")
    e(f"v_and_b32 v{t+1}, 15, v{VL}\nv_lshl_add_u32 v{t+1}, v{t+1}, 4, v{t}")
    e(f"s_lshl_b32 s36, s44, 2\ns_add_u32 s36, s36, s17\ns_mul_i32 s36, s36, {64*7168}\ns_lshl_b32 s37, s45, 8\ns_add_u32 s36, s36, s37")
    k = 0
    of = cfg.get('outflags', 'nt')
    for pb in range(nPw):
        for r in range(4):
            d = FR + 4 * k; k += 1
            e(f"s_add_u32 s37, s36, {(pb*16+r)*7168}")
            for j in range(4): e(f"v_cvt_pk_bf16_f32 v{d+j}, v{acc(pb,2*j)+r}, v{acc(pb,2*j+1)+r}")
            e(f"buffer_store_dwordx4 v[{d}:{d+3}], v{t+1}, s[12:15], s37 offen {of}")
    stamp_out(0)
    e("s_endpgm")
    e("L_xr:")
    e("s_waitcnt lgkmcnt(0)")
    if cfg.get('spf', 0):
        srd(a, 8, PV, 3584*3584*2)
        e("s_and_b32 s44, s42, 1\ns_lshl_b32 s44, s44, 2\ns_add_u32 s44, s44, s43\ns_lshl_b32 s44, s44, 3\ns_add_u32 s44, s44, s16\ns_lshl_b32 s44, s44, 6")
        e(f"s_lshr_b32 s45, s42, 1\ns_mul_i32 s45, s45, 1792\ns_add_u32 s45, s45, {cfg.get('sp0', 2)*64*7168}")
        e(f"v_and_b32 v1, 63, v0\nv_add_u32 v1, s44, v1\ns_mov_b32 s46, {(1<<32)//14+1}\ns_movk_i32 s47, 7168")
        for r in range(cfg['spf']):
            e("v_mul_hi_u32 v2, v1, s46\nv_mul_u32_u24 v3, 14, v2\nv_sub_u32 v3, v1, v3\nv_mul_lo_u32 v2, v2, s47\nv_lshl_add_u32 v2, v3, 7, v2")
            e(f"buffer_load_dword v{VL+1}, v2, s[8:11], s45 offen\nv_add_u32 v1, 4096, v1")
    srd(a, 4, PU, 1024*1024*2)
    srd(a, 8, PX, 2048*1024*2)
    srd(a, 12, PWS, 2048*1024*2, WS_XR)
    for _ in range(cfg.get('xdelay', 0)): e("s_sleep 36")
    e("s_mov_b32 s46, 0")
    def xr_scalars():
        e("s_and_b32 s45, s43, 1\ns_bfe_u32 s44, s43, 0x10001\ns_xor_b32 s22, s44, s45")
        e("s_lshl_b32 s47, s42, 1\ns_add_u32 s45, s45, s47")
        e("s_lshr_b32 s47, s42, 2\ns_xor_b32 s47, s46, s47\ns_and_b32 s47, s47, 1\ns_lshl_b32 s47, s47, 1\ns_add_u32 s44, s44, s47")
        e("s_and_b32 s23, s42, 3\ns_lshl_b32 s23, s23, 2")
        e("s_lshl_b32 s20, s44, 9\ns_lshl_b32 s21, s45, 18")
    e("s_cmp_ge_u32 s16, 4\ns_cbranch_scc1 L_xc")
    e("s_mov_b32 s17, s16")
    e("L_xp:")
    xr_scalars()
    GX.p_setup()
    GX.p_loop()
    e("s_add_u32 s46, s46, 1\ns_cmp_lt_u32 s46, 2\ns_cbranch_scc1 L_xp")
    stamp_out(32)
    e("s_endpgm")
    e("L_xc:")
    e(f"v_and_b32 v{VL}, 63, v0")
    e("s_bfe_u32 s17, s16, 0x10001\ns_and_b32 s18, s16, 1")
    srd(a, 28, PDBG, 256)
    srd(a, 24, PWS, 32768, WS_FL)
    e("L_xc2:")
    xr_scalars()
    acc, nPw, nQw, FR = GX.c_body(VL, lambda: stamp(2), lambda: stamp(3))
    t = FR + 80
    e(f"v_lshlrev_b32 v{t}, 4, v{VL}")
    e("s_lshl_b32 s36, s42, 4\ns_lshl_b32 s37, s44, 2\ns_add_u32 s36, s36, s37\ns_lshl_b32 s37, s17, 1\ns_add_u32 s36, s36, s37")
    e("s_lshl_b32 s36, s36, 15\ns_lshl_b32 s37, s18, 13\ns_add_u32 s36, s36, s37\ns_and_b32 s37, s45, 1\ns_lshl_b32 s37, s37, 14\ns_add_u32 s36, s36, s37")
    k = 0
    for mh in range(2):
        for bq in range(nQw):
            e(f"s_add_u32 s37, s36, {mh*32768 + bq*2048}")
            for kb in range(2):
                m = mh*2 + kb
                d = FR + 4 * k; k += 1
                pack4(a, d, acc(2*m, bq), acc(2*m+1, bq))
                e(f"buffer_store_dwordx4 v[{d}:{d+3}], v{t}, s[12:15], s37 offen offset:{kb*1024} sc1")
    e(f"v_mov_b32 v{t+2}, 0")
    get_nonce(t + 2)
    e("s_lshl_b32 s40, s42, 8\ns_lshr_b32 s41, s44, 1\ns_lshl_b32 s41, s41, 7\ns_add_u32 s40, s40, s41\ns_and_b32 s41, s45, 1\ns_lshl_b32 s41, s41, 6\ns_add_u32 s40, s40, s41")
    e("s_and_b32 s41, s44, 1\ns_lshl_b32 s41, s41, 5\ns_add_u32 s40, s40, s41\ns_and_b32 s41, s16, 3\ns_lshl_b32 s41, s41, 3\ns_add_u32 s40, s40, s41\ns_add_u32 s40, s40, 8192")
    e("s_waitcnt vmcnt(0)")
    flag_store(t + 6, 40)
    if cfg.get('cpf', 3) & 2:
        e("s_and_b32 s36, s16, 3")
        code_pf(t + 10, 36)
    if cfg.get('stamp'):
        l = a.lbl("sx")
        e(f"s_cmp_lg_u32 s46, 0\ns_cbranch_scc1 {l}")
        stamp(1)
        e(f"{l}:")
    e("s_add_u32 s46, s46, 1\ns_cmp_lt_u32 s46, 2\ns_cbranch_scc1 L_xc2")
    stamp_out(0)
    e("L_end:\ns_endpgm")
    e('.section .rodata,"a"\n.p2align 6')
    e(f""".amdhsa_kernel {KN}
  .amdhsa_next_free_vgpr 252
  .amdhsa_next_free_sgpr 102
  .amdhsa_accum_offset 252
  .amdhsa_group_segment_fixed_size 0
  .amdhsa_kernarg_size 72
  .amdhsa_user_sgpr_count 2
  .amdhsa_user_sgpr_kernarg_segment_ptr 1
  .amdhsa_system_sgpr_workgroup_id_x 1
  .amdhsa_float_denorm_mode_32 3
.end_amdhsa_kernel""")
    return a.text()

if __name__ == "__main__":
    out = sys.argv[1]
    cfg = {}
    for kv in sys.argv[2:]:
        k, v = kv.split("=", 1)
        cfg[k] = eval(v)
    open(out, "w").write(build(cfg))
```
